```python
import torch

def _softmax(x, axis=-1):
    return torch.softmax(x, dim=axis)
def _gelu(x):
    return torch.nn.functional.gelu(x, approximate="tanh")
def _silu(x):
    return torch.nn.functional.silu(x)
def _sigmoid(x):
    return torch.sigmoid(x)
def _layernorm(x, axis=-1, eps=1e-5):
    m = x.mean(dim=axis, keepdim=True)
    v = x.var(dim=axis, keepdim=True, unbiased=False)
    return (x - m) / torch.sqrt(v + eps)
def _scatter_add(tgt, idx, src, axis=0):
    return tgt.clone().index_add_(axis, idx, src)
def _segment_sum(src, seg, n):
    out = torch.zeros((n,) + src.shape[1:], dtype=src.dtype)
    return out.index_add_(0, seg, src)
def _pad(x, pw):
    flat = tuple(v for pair in reversed(pw) for v in pair)
    return torch.nn.functional.pad(x, flat)

kernel_name = 'gated_mix__ssm_conv_h3__glu_gated_swiglu__prompt'

def setup_inputs():

    _w = (lambda a: (lambda t: t.to(torch.bfloat16) if t.is_floating_point() else t)(torch.as_tensor(a)))
    def _A_setup():
        B, S, D = 1, 2048, 576
        ks = 4
        return {
            "q": _w((lambda *s: torch.randn(*s, dtype=torch.bfloat16) * 0.05)(B, S, D)),
            "k": _w((lambda *s: torch.randn(*s, dtype=torch.bfloat16) * 0.05)(B, S, D)),
            "v": _w((lambda *s: torch.randn(*s, dtype=torch.bfloat16) * 0.05)(B, S, D)),
            "shift_k": _w((lambda *s: torch.randn(*s, dtype=torch.bfloat16) * 0.05)(D, ks) * 0.5),
            "ssm_k": _w((lambda *s: torch.randn(*s, dtype=torch.bfloat16) * 0.05)(D, S) * (1.0 / S ** 0.5)),
            "ssm_D": _w((lambda *s: torch.randn(*s, dtype=torch.bfloat16) * 0.05)(D)),
        }
    _A_in = _A_setup()

    def _B_setup():
        B, S, D, F = 1, 2048, 576, 4608
        return {
            "x": _w((lambda *s: torch.randn(*s, dtype=torch.bfloat16) * 0.05)(B, S, D)),
            "w1": _w((lambda *s: torch.randn(*s, dtype=torch.bfloat16) * 0.05)(D, F) * (2.0 / D) ** 0.5),
            "w3": _w((lambda *s: torch.randn(*s, dtype=torch.bfloat16) * 0.05)(D, F) * (2.0 / D) ** 0.5),
            "w2": _w((lambda *s: torch.randn(*s, dtype=torch.bfloat16) * 0.05)(F, D) * (2.0 / F) ** 0.5),
        }
    _B_in = _B_setup()

    return {
        "A_q": _A_in["q"],
        "A_k": _A_in["k"],
        "A_v": _A_in["v"],
        "A_shift_k": _A_in["shift_k"],
        "A_ssm_k": _A_in["ssm_k"],
        "A_ssm_D": _A_in["ssm_D"],
        "B_x": _B_in["x"],
        "B_w1": _B_in["w1"],
        "B_w3": _B_in["w3"],
        "B_w2": _B_in["w2"],
        "gate_w": _w((lambda *s: torch.randn(*s, dtype=torch.bfloat16) * 0.05)(576) * 16.0),
    }

def reference(A_q, A_k, A_v, A_shift_k, A_ssm_k, A_ssm_D, B_x, B_w1, B_w3, B_w2, gate_w):
    def _A_ref(q, k, v, shift_k, ssm_k, ssm_D):
        B, S, D = q.shape
        ks = shift_k.shape[-1]
        k_pad = _pad(k, ((0, 0), (ks - 1, 0), (0, 0)))
        k_shift = torch.zeros_like(k)
        for t in range(ks):
            k_shift = k_shift + k_pad[:, t:t + S, :] * shift_k[:, ks - 1 - t][None, None, :]
        kv = k_shift * v
        L = 2 * S
        kv_pad = _pad(kv, ((0, 0), (0, S), (0, 0)))
        kf_pad = _pad(ssm_k, ((0, 0), (0, S)))
        kv_f = (lambda x, axes=(-2,-1): torch.fft.rfft2(x.float(), dim=axes))(kv_pad[:, None, :, :], axes=(1, 2))
        kf_f = (lambda x, axes=(-2,-1): torch.fft.rfft2(x.float(), dim=axes))(kf_pad[:, None, :], axes=(1, 2))
        kf_f = (lambda x, *d: x.permute(*d))(kf_f, 1, 2, 0)
        y_f = kv_f * kf_f[None, :, :, :]
        y = (lambda x, s, axes=(-2,-1): torch.fft.irfft2(x, s=s, dim=axes).to(torch.bfloat16))(y_f, (1, L), axes=(1, 2))[:, 0, :S, :]
        y = y + kv * ssm_D[None, None, :]
        return q * y

    def _B_ref(x, w1, w3, w2):
        gate = torch.einsum("bsd,df->bsf", x, w1)
        up = torch.einsum("bsd,df->bsf", x, w3)
        h = _silu(gate) * up
        out = torch.einsum("bsf,fd->bsd", h, w2)
        return out

    x = A_q
    g = _sigmoid((x * gate_w).sum(-1, keepdims=True))
    a = _A_ref(x, A_k, A_v, A_shift_k, A_ssm_k, A_ssm_D)
    b = _B_ref(x, B_w1, B_w3, B_w2)
    return g * a + (1 - g) * b
```

```python
import re

def regs(spec):
    if spec is None: return set()
    if isinstance(spec, (list, tuple, set)):
        r = set()
        for s in spec: r |= regs(s)
        return r
    if not isinstance(spec, str): return set()
    spec = spec.strip()
    if spec.startswith('-'): spec = spec[1:]
    m = re.fullmatch(r'([vas])(\d+)', spec)
    if m: return {(m.group(1), int(m.group(2)))}
    m = re.fullmatch(r'([vas])\[(\d+):(\d+)\]', spec)
    if m: return {(m.group(1), i) for i in range(int(m.group(2)), int(m.group(3)) + 1)}
    if spec in ('vcc', 'exec', 'm0', 'scc'): return {(spec, 0)}
    return set()

def R(f, lo, n=1):
    return f"{f}{lo}" if n == 1 else f"{f}[{lo}:{lo+n-1}]"
def V(lo, n=1): return R('v', lo, n)
def A(lo, n=1): return R('a', lo, n)
def S(lo, n=1): return R('s', lo, n)

class Inst:
    __slots__ = ('text', 'kind', 'rd', 'wr', 'tag', 'nvm', 'nlg', 'passes', 'srcc', 'cost')
    def __init__(self, text, kind, rd=None, wr=None, tag=None, nvm=None, nlg=None, passes=0, srcc=None, cost=1):
        self.text = text; self.kind = kind
        self.rd = regs(rd); self.wr = regs(wr)
        self.tag = tag
        self.nvm = list(nvm) if nvm else []
        self.nlg = list(nlg) if nlg else []
        self.passes = passes
        self.srcc = regs(srcc)
        self.cost = cost
    def need(self, vm=None, lg=None):
        if vm: self.nvm += list(vm) if isinstance(vm, (list, tuple)) else [vm]
        if lg: self.nlg += list(lg) if isinstance(lg, (list, tuple)) else [lg]
        return self

TRANS = ('v_exp_f32', 'v_rcp_f32', 'v_log_f32', 'v_rsq_f32', 'v_sqrt_f32', 'v_sin_f32', 'v_cos_f32')

def mfma32(d, a, b, c):
    return Inst(f"v_mfma_f32_32x32x16_bf16 {d}, {a}, {b}, {c}", 'mfma', rd=[a, b, c], wr=[d], passes=8, srcc=c)
def mfma16(d, a, b, c):
    return Inst(f"v_mfma_f32_16x16x32_bf16 {d}, {a}, {b}, {c}", 'mfma', rd=[a, b, c], wr=[d], passes=4, srcc=c)
def valu(op, d, *src, extra_rd=None, extra_wr=None, mod=""):
    kind = 'trans' if op in TRANS else ('dot' if op.startswith('v_dot') else ('perml' if 'permlane' in op else 'valu'))
    rd = list(src) + (extra_rd or [])
    wr = [d] + (extra_wr or [])
    if op in ('v_fmac_f32', 'v_dot2c_f32_bf16'): rd.append(d)
    if kind == 'perml':
        rd.append(d); wr += list(src)
    return Inst(f"{op} {d}, " + ", ".join(str(s) for s in src) + (" " + mod if mod else ""), kind, rd=rd, wr=wr, cost=2 if kind == 'trans' else 1)
def salu(op, d, *src):
    wr = [d]
    if op.startswith('s_cmp') or op.startswith('s_bitcmp'):
        return Inst(f"{op} {d}, " + ", ".join(str(s) for s in src), 'salu', rd=[d] + list(src), wr=['scc'])
    rd = list(src)
    if op in ('s_cselect_b32', 's_cselect_b64', 's_addc_u32'): rd.append('scc')
    return Inst(f"{op} {d}, " + ", ".join(str(s) for s in src), 'salu', rd=rd, wr=wr + ['scc'])
def raw(text, kind='other', **kw):
    return Inst(text, kind, **kw)
def bload(d, voff, srd, soff, off=0, width=4, tag=None, flags=""):
    op = {1: 'buffer_load_dword', 2: 'buffer_load_dwordx2', 4: 'buffer_load_dwordx4', 'u16': 'buffer_load_ushort', 'd16': 'buffer_load_short_d16', 'd16hi': 'buffer_load_short_d16_hi'}[width]
    t = f"{op} {d}, {voff}, {srd}, {soff} offen" + (f" offset:{off}" if off else "") + (" " + flags if flags else "")
    rd = [voff, srd, soff] + ([d] if width in ('d16', 'd16hi') else [])
    return Inst(t, 'vmem', rd=rd, wr=[d], tag=tag)
def bload_lds(voff, srd, soff, off=0, tag=None, flags=""):
    t = f"buffer_load_dwordx4 {voff}, {srd}, {soff} offen" + (f" offset:{off}" if off else "") + (" " + flags if flags else "") + " lds"
    return Inst(t, 'vmem_lds', rd=[voff, srd, soff, 'm0'], tag=tag)
def bstore(d, voff, srd, soff, off=0, width=4, tag=None, flags=""):
    op = {1: 'buffer_store_dword', 2: 'buffer_store_dwordx2', 4: 'buffer_store_dwordx4'}[width]
    t = f"{op} {d}, {voff}, {srd}, {soff} offen" + (f" offset:{off}" if off else "") + (" " + flags if flags else "")
    return Inst(t, 'vstore', rd=[d, voff, srd, soff], tag=tag)
def dsread(op, d, addr, off=0, tag=None, offtext=None):
    t = f"{op} {d}, {addr}" + (f" {offtext}" if offtext else (f" offset:{off}" if off else ""))
    return Inst(t, 'ds', rd=[addr], wr=[d], tag=tag)
def dswrite(op, addr, d, off=0, tag=None):
    t = f"{op} {addr}, {d}" + (f" offset:{off}" if off else "")
    return Inst(t, 'ds', rd=[addr, d], tag=tag)
def barrier():
    return Inst("s_barrier", 'barrier')
def nop(n):
    return Inst(f"s_nop {n}", 'nop', cost=n + 1)
def label(name):
    return Inst(f"{name}:", 'label', cost=0)
def comment(t):
    return Inst(f"; {t}", 'comment', cost=0)

VM_KINDS = ('vmem', 'vmem_lds', 'vstore', 'vatomic')

def insert_waits(insts, max_vm=63):
    out = []
    vm = []; lg = []
    vm_done = 0; lg_done = 0
    for ins in insts:
        if ins.kind == 'drain':
            vm_done = len(vm); lg_done = len(lg)
            out.append(ins); continue
        if ins.kind == 'drain_lg':
            lg_done = len(lg); out.append(ins); continue
        if ins.kind == 'drain_vm':
            vm_done = len(vm); out.append(ins); continue
        wv = None; wl = None
        if ins.nvm:
            idx = max(max(i for i, t in enumerate(vm) if t == tg) for tg in ins.nvm)
            if idx + 1 > vm_done:
                wv = len(vm) - 1 - idx
                assert wv <= max_vm, f"vmcnt {wv} too large at {ins.text}"
                vm_done = idx + 1
        if ins.nlg:
            idx = max(max(i for i, t in enumerate(lg) if t == tg) for tg in ins.nlg)
            if idx + 1 > lg_done:
                wl = len(lg) - 1 - idx
                if wl > 15: wl = 15
                lg_done = len(lg) - wl
        if wv is not None or wl is not None:
            t = "s_waitcnt" + (f" vmcnt({wv})" if wv is not None else "") + (f" lgkmcnt({wl})" if wl is not None else "")
            out.append(Inst(t, 'wait'))
        if ins.kind in VM_KINDS and len(vm) - vm_done >= 63:
            out.append(Inst("s_waitcnt vmcnt(62)", 'wait')); vm_done = len(vm) - 62
        out.append(ins)
        if ins.kind in VM_KINDS:
            vm.append(ins.tag)
        if ins.kind == 'ds':
            lg.append(ins.tag)
    return out

def is_valu(k): return k in ('valu', 'trans', 'dot', 'perml')

def need_states(p, c):
    n = 0
    pw = p.wr;
    vw = {r for r in pw if r[0] in 'va'}
    sw = {r for r in pw if r[0] == 's' or r[0] in ('vcc',)}
    if is_valu(p.kind):
        if c.kind == 'mfma' and (vw & c.rd): n = max(n, 2)
        if c.kind == 'perml' and (vw & c.rd): n = max(n, 2)
        if p.kind == 'trans' and is_valu(c.kind) and c.kind != 'trans' and (vw & c.rd): n = max(n, 1)
        if p.kind == 'trans' and c.kind == 'trans' and (vw & c.rd): n = max(n, 1)
        if p.kind == 'dot' and (vw & (c.rd | c.wr)):
            if not (c.kind == 'dot' and c.text.split()[0] == p.text.split()[0] and not (vw & (c.rd - c.srcc)) ):
                n = max(n, 3)
        if sw:
            if c.kind in VM_KINDS and (sw & c.rd): n = max(n, 5)
            if is_valu(c.kind) and (sw & c.rd): n = max(n, 2)
            if c.kind == 'salu' and (sw & c.rd): n = max(n, 1)
        if ('readfirstlane' in c.text or 'readlane' in c.text) and (vw & c.rd): n = max(n, 1)
        if 'dpp' in c.text and (vw & c.rd): n = max(n, 2)
        if ('exec', 0) in pw and c.kind == 'mfma': n = max(n, 4)
    if p.kind == 'mfma':
        big = {2: 5, 4: 8, 8: 12, 16: 20}[p.passes]
        if c.kind == 'mfma':
            ab = c.rd - c.srcc
            if vw & ab: n = max(n, big)
            if (vw & c.srcc) and not (vw == c.srcc and p.passes == c.passes): n = max(n, big - 2)
        else:
            if vw & (c.rd | c.wr): n = max(n, big)
            if is_valu(c.kind) and (p.srcc & c.wr): n = max(n, {2: 1, 4: 3, 8: 7, 16: 15}[p.passes])
    if p.kind == 'salu' and ('m0', 0) in pw and c.kind == 'vmem_lds': n = max(n, 1)
    if p.kind == 'vstore' and 'x4' in p.text.split()[0] and (p.rd & c.wr): n = max(n, 2)
    return n

def pad_hazards(insts, window=24):
    out = []
    for ins in insts:
        if ins.kind in ('label', 'comment'):
            out.append(ins); continue
        dist = 0; need = 0
        for p in reversed(out):
            if p.kind == 'comment': continue
            if p.kind == 'label': continue
            rq = need_states(p, ins)
            if rq > dist: need = max(need, rq - dist)
            dist += p.cost if p.kind == 'nop' else 1
            if dist >= window: break
        while need > 0:
            k = min(need, 16)
            out.append(nop(k - 1)); need -= k
        out.append(ins)
    return out

def render(insts):
    lines = []
    for i in insts:
        if i.kind == 'label': lines.append(i.text)
        else: lines.append("    " + i.text)
    return "\n".join(lines)
```

```python
from asmlib import *
from layout import *

def srd(e, base, ptr, nbytes):
    e(salu('s_mov_b32', f's{base}', f's{ptr}'))
    e(salu('s_mov_b32', f's{base+1}', f's{ptr+1}'))
    e(salu('s_mov_b32', f's{base+2}', nbytes))
    e(salu('s_mov_b32', f's{base+3}', 0x20000))

def fin(seg):
    return pad_hazards(insert_waits(seg))

def gen_k0():
    out = []
    P = []; e = P.append
    e(salu('s_cmp_ge_u32', 's2', 256))
    e(raw('s_cbranch_scc1 K0_END', 'branch'))
    e(raw('s_load_dwordx8 s[4:11], s[0:1], 0', 'smem', wr=['s[4:11]']))
    e(raw('s_load_dwordx4 s[12:15], s[0:1], 72', 'smem', wr=['s[12:15]']))
    e(raw('s_load_dwordx2 s[16:17], s[0:1], 104', 'smem', wr=['s[16:17]']))
    vL = 1
    e(valu('v_lshrrev_b32', 'v2', 6, 'v0'))
    e(valu('v_and_b32', V(vL), 63, 'v0'))
    e(nop(0))
    e(valu('v_readfirstlane_b32', 's18', 'v2'))
    e(salu('s_lshl_b32', 's19', 's2', 2))
    e(salu('s_add_u32', 's19', 's19', 's18'))
    e(raw('s_waitcnt lgkmcnt(0)', 'drain_lg'))
    srd(e, 20, 4, 2048 * 1152)
    srd(e, 24, 6, 2048 * 1152)
    srd(e, 28, 8, 2048 * 1152)
    srd(e, 32, 10, 576 * 8)
    srd(e, 36, 12, 4608 * 1152)
    srd(e, 40, 14, 1152)
    srd(e, 44, 16, WS_END)
    sQ, sK, sV, sSK, sW2, sGW, sWS = [S(b, 4) for b in (20, 24, 28, 32, 36, 40, 44)]
    e(salu('s_cmp_ge_u32', 's19', 576))
    e(raw('s_cbranch_scc1 K0_W2T', 'branch'))
    out += fin(P)
    P = []; e = P.append
    e(salu('s_mul_i32', 's48', 's19', 7282))
    e(salu('s_lshr_b32', 's48', 's48', 16))
    e(salu('s_mul_i32', 's49', 's48', 9))
    e(salu('s_sub_u32', 's49', 's19', 's49'))
    e(valu('v_lshrrev_b32', 'v2', 3, V(vL)))
    e(valu('v_lshlrev_b32', 'v2', 2, 'v2'))
    e(salu('s_lshl_b32', 's50', 's48', 5))
    e(valu('v_add_u32', 'v2', 's50', 'v2'))
    e(salu('s_movk_i32', 's51', 1152))
    e(valu('v_mul_lo_u32', 'v3', 'v2', 's51'))
    e(valu('v_and_b32', 'v4', 7, V(vL)))
    e(valu('v_lshl_add_u32', 'v3', 'v4', 4, 'v3'))
    e(salu('s_lshl_b32', 's50', 's49', 7))
    e(valu('v_add_u32', 'v3', 's50', 'v3'))
    e(valu('v_subrev_u32', 'v5', 3456, 'v3'))
    e(salu('s_lshl_b32', 's50', 's49', 9))
    e(valu('v_lshlrev_b32', 'v6', 6, 'v4'))
    e(valu('v_add_u32', 'v6', 's50', 'v6'))
    KR = 16
    VR = KR + 28
    SK = VR + 16
    PP = SK + 16
    AC = PP + 48
    for r in range(3): e(bload(V(KR + 4 * r, 4), 'v5', sK, '0', off=r * 1152, tag='k'))
    for r in range(4): e(bload(V(KR + 12 + 4 * r, 4), 'v3', sK, '0', off=r * 1152, tag='k'))
    for r in range(4): e(bload(V(SK + 4 * r, 4), 'v6', sSK, '0', off=r * 16, tag='k'))
    for r in range(4): e(bload(V(VR + 4 * r, 4), 'v3', sV, '0', off=r * 1152, tag='v'))
    e(valu('v_lshlrev_b32', 'v7', 15, 'v4'))
    e(valu('v_lshlrev_b32', 'v8', 1, 'v2'))
    e(valu('v_sub_u32', 'v7', 'v7', 'v8'))
    e(salu('s_lshl_b32', 's50', 's49', 18))
    e(salu('s_add_u32', 's50', 's50', WS_UR + 4088))
    e(valu('v_add_u32', 'v7', 's50', 'v7'))
    e(salu('s_mov_b32', 's52', '0x01000504'))
    e(salu('s_mov_b32', 's53', '0x03020706'))
    e(salu('s_mov_b32', 's54', '0xffff0000'))
    first = True
    for i in range(1, 7):
        for d in range(4):
            for h in range(2):
                ins = valu('v_perm_b32', V(PP + (i - 1) * 8 + 2 * d + h), V(KR + 4 * i + d), V(KR + 4 * (i - 1) + d), 's52' if h == 0 else 's53')
                if first: ins.need(vm=['k']); first = False
                e(ins)
    for r in range(4):
        for c in range(8):
            e(valu('v_dot2_f32_bf16', V(AC + r * 8 + c), V(PP + (3 + r - 1) * 8 + c), V(SK + 2 * c), 0))
    for r in range(4):
        for c in range(8):
            e(valu('v_dot2_f32_bf16', V(AC + r * 8 + c), V(PP + (1 + r - 1) * 8 + c), V(SK + 2 * c + 1), V(AC + r * 8 + c)))
    first = True
    for r in range(4):
        for c in range(8):
            t = PP + r * 8 + c
            if c & 1: ins = valu('v_and_b32', V(t), 's54', V(VR + 4 * r + (c >> 1)))
            else: ins = valu('v_lshlrev_b32', V(t), 16, V(VR + 4 * r + (c >> 1)))
            if first: ins.need(vm=['v']); first = False
            e(ins)
    for r in range(4):
        for c in range(8):
            e(valu('v_mul_f32', V(AC + r * 8 + c), V(AC + r * 8 + c), V(PP + r * 8 + c)))
    for c in range(8):
        e(valu('v_cvt_pk_bf16_f32', V(KR + 2 * c), V(AC + 24 + c), V(AC + 16 + c)))
        e(valu('v_cvt_pk_bf16_f32', V(KR + 2 * c + 1), V(AC + 8 + c), V(AC + c)))
    for c in range(8):
        e(salu('s_mov_b32', 's50', c * 4096))
        e(bstore(V(KR + 2 * c, 2), 'v7', sWS, 's50', width=2))
    out += fin(P)
    out.append(label('K0_W2T'))
    P = []; e = P.append
    e(valu('v_lshrrev_b32', 'v2', 3, V(vL)))
    e(salu('s_movk_i32', 's51', 1152))
    e(valu('v_mul_lo_u32', 'v2', 'v2', 's51'))
    e(valu('v_and_b32', 'v3', 7, V(vL)))
    e(valu('v_lshl_add_u32', 'v2', 'v3', 4, 'v2'))
    e(valu('v_lshrrev_b32', 'v3', 5, V(vL)))
    e(valu('v_lshlrev_b32', 'v3', 4, 'v3'))
    e(valu('v_bfe_u32', 'v4', V(vL), 4, 1))
    e(valu('v_lshl_add_u32', 'v3', 'v4', 2, 'v3'))
    e(valu('v_bfe_u32', 'v4', V(vL), 2, 2))
    e(valu('v_add_u32', 'v3', 'v3', 'v4'))
    e(valu('v_lshlrev_b32', 'v3', 7, 'v3'))
    e(valu('v_and_b32', 'v4', 3, V(vL)))
    e(valu('v_lshl_add_u32', 'v3', 'v4', 3, 'v3'))
    e(salu('s_lshl_b32', 's55', 's18', 12))
    e(valu('v_add_u32', 'v3', 's55', 'v3'))
    e(valu('v_lshlrev_b32', 'v4', 4, V(vL)))
    e(salu('s_mov_b32', 'm0', 's55'))
    e(salu('s_mov_b32', 's56', 's19'))
    out += fin(P)
    out.append(label('K0_W2T_LOOP'))
    P = []; e = P.append
    e(salu('s_mul_i32', 's48', 's56', 7282))
    e(salu('s_lshr_b32', 's48', 's48', 16))
    e(salu('s_mul_i32', 's49', 's48', 9))
    e(salu('s_sub_u32', 's49', 's56', 's49'))
    e(salu('s_mul_i32', 's50', 's48', 32 * 1152))
    e(salu('s_lshl_b32', 's51', 's49', 7))
    e(salu('s_add_u32', 's50', 's50', 's51'))
    for i in range(4):
        e(bload_lds('v2', sW2, 's50', off=i * 1024, tag='w'))
        if i < 3: e(salu('s_add_u32', 's50', 's50', 8 * 1152 - 1024))
    e(salu('s_mul_i32', 's57', 's48', 57))
    e(salu('s_lshr_b32', 's57', 's57', 11))
    e(salu('s_mul_i32', 's58', 's57', 36))
    e(salu('s_sub_u32', 's58', 's48', 's58'))
    for jj in range(4):
        for t in range(2):
            ins = dsread('ds_read_b64_tr_b16', V(8 + 4 * jj + 2 * t, 2), 'v3', off=t * 1024 + jj * 32, tag=('r', jj))
            if jj == 0 and t == 0: ins.need(vm=['w'])
            e(ins)
    for jj in range(4):
        e(salu('s_lshl_b32', 's59', 's49', 2))
        e(salu('s_add_u32', 's59', 's59', jj))
        e(salu('s_mul_i32', 's60', 's59', 57))
        e(salu('s_lshr_b32', 's60', 's60', 9))
        e(salu('s_mul_i32', 's61', 's60', 9))
        e(salu('s_sub_u32', 's61', 's59', 's61'))
        e(salu('s_lshl_b32', 's60', 's60', 2))
        e(salu('s_add_u32', 's60', 's60', 's57'))
        e(salu('s_mul_i32', 's60', 's60', 36))
        e(salu('s_add_u32', 's60', 's60', 's58'))
        e(salu('s_mul_i32', 's60', 's60', 9))
        e(salu('s_add_u32', 's60', 's60', 's61'))
        e(salu('s_lshl_b32', 's60', 's60', 10))
        e(salu('s_add_u32', 's60', 's60', WS_W2T))
        e(bstore(V(8 + 4 * jj, 4), 'v4', sWS, 's60').need(lg=[('r', jj)]))
    e(salu('s_add_u32', 's56', 's56', 1024))
    e(salu('s_cmp_lt_u32', 's56', 1296))
    e(raw('s_waitcnt vmcnt(0) lgkmcnt(0)', 'drain'))
    e(raw('s_cbranch_scc1 K0_W2T_LOOP', 'branch'))
    e(salu('s_cmp_lt_u32', 's19', 768))
    e(raw('s_cbranch_scc1 K0_END', 'branch'))
    out += fin(P)
    P = []; e = P.append
    e(salu('s_sub_u32', 's48', 's19', 768))
    e(salu('s_mul_i32', 's50', 's48', 8 * 1152))
    e(valu('v_and_b32', 'v5', 7, V(vL)))
    e(valu('v_lshlrev_b32', 'v5', 4, 'v5'))
    X = 8; G = X + 36
    for i in range(9):
        e(bload(V(X + 4 * i, 4), 'v2', sQ, 's50', off=128 * i, tag='x'))
        e(bload(V(G + 4 * i, 4), 'v5', sGW, '0', off=128 * i, tag='x'))
    for i in range(36):
        ins = valu('v_dot2_f32_bf16', V(4 + (i & 3)), V(X + i), V(G + i), 0 if i < 4 else V(4 + (i & 3)))
        if i == 0: ins.need(vm=['x'])
        e(ins)
    e(valu('v_add_f32', 'v4', 'v4', 'v5'))
    e(valu('v_add_f32', 'v6', 'v6', 'v7'))
    e(valu('v_add_f32', 'v4', 'v4', 'v6'))
    for pat in (0x041F, 0x081F, 0x101F):
        e(Inst(f'ds_swizzle_b32 v5, v4 offset:{pat}', 'ds', rd=['v4'], wr=['v5'], tag='sw'))
        e(valu('v_add_f32', 'v4', 'v4', 'v5').need(lg=['sw']))
    e(valu('v_cvt_pk_bf16_f32', 'v4', 'v4', 'v4'))
    e(valu('v_lshlrev_b32', 'v4', 16, 'v4'))
    e(valu('v_mul_f32', 'v4', '0xbfb8aa3b', 'v4'))
    e(valu('v_exp_f32', 'v4', 'v4'))
    e(valu('v_add_f32', 'v4', '1.0', 'v4'))
    e(valu('v_rcp_f32', 'v4', 'v4'))
    e(valu('v_cvt_pk_bf16_f32', 'v4', 'v4', 'v4'))
    e(valu('v_lshlrev_b32', 'v4', 16, 'v4'))
    e(valu('v_lshrrev_b32', 'v5', 3, V(vL)))
    e(valu('v_lshlrev_b32', 'v5', 2, 'v5'))
    e(salu('s_lshl_b32', 's50', 's48', 5))
    e(salu('s_add_u32', 's50', 's50', WS_G))
    e(bstore('v4', 'v5', sWS, 's50', width=1))
    out += fin(P)
    out.append(label('K0_END'))
    out.append(raw('s_endpgm', 'end'))
    return out
```

```python
from asmlib import *
from sched import *

from layout import *

def gen_k1(hflags="", D=4, NB=5, stamps=False, rot=True, QSP=10, pst=False):
    P = []
    e = P.append
    VX0 = 0
    ACC = 32
    WF = 192
    TMP = WF + 4 * NB
    ADR = TMP + 8
    AS0 = ADR + 12; AS1 = AS0 + 3
    XR = AS1 + 1
    vX0 = XR + 4; vX1 = vX0 + 1; vW = vX1 + 1; vS = vW + 1; vH = vS + 1
    vT0 = vH + 1; vT1 = vT0 + 1; vT2 = vT1 + 1; vL = vT2 + 1
    assert vL < 256
    def xreg(s, rt):
        if s < 4: return V(VX0 + s * 8 + rt * 4, 4)
        return A((s - 4) * 8 + rt * 4, 4)
    def acc(s, rt): return ACC + s * 32 + rt * 16
    sX, sW, sH = S(12, 4), S(16, 4), S(20, 4)
    e(salu('s_cmp_ge_u32', 's2', 256))
    e(raw('s_cbranch_scc1 K1_END', 'branch'))
    e(raw('s_load_dwordx2 s[4:5], s[0:1], 0', 'smem', wr=['s[4:5]']))
    e(raw('s_load_dwordx4 s[8:11], s[0:1], 56', 'smem', wr=['s[8:11]']))
    e(raw('s_load_dwordx2 s[6:7], s[0:1], 104', 'smem', wr=['s[6:7]']))
    e(valu('v_lshrrev_b32', V(vT0), 6, 'v0'))
    e(valu('v_and_b32', V(vL), 63, 'v0'))
    e(salu('s_and_b32', 's30', 's2', 7))
    e(valu('v_readfirstlane_b32', 's40', V(vT0)))
    e(salu('s_lshr_b32', 's31', 's2', 3))
    e(salu('s_and_b32', 's32', 's30', 1))
    e(salu('s_lshl_b32', 's32', 's32', 2))
    e(salu('s_and_b32', 's33', 's31', 3))
    e(salu('s_add_u32', 's32', 's32', 's33'))
    e(salu('s_lshr_b32', 's33', 's30', 1))
    e(salu('s_lshr_b32', 's34', 's31', 2))
    e(salu('s_mul_i32', 's35', 's33', 18))
    e(salu('s_lshl_b32', 's36', 's34', 1))
    e(salu('s_add_u32', 's36', 's36', 's35'))
    e(salu('s_lshr_b32', 's37', 's34', 2))
    e(salu('s_add_u32', 's37', 's37', 's35'))
    e(salu('s_add_u32', 's37', 's37', 16))
    e(salu('s_and_b32', 's38', 's34', 3))
    e(salu('s_add_u32', 's58', 's34', 's31'))
    e(salu('s_and_b32', 's58', 's58', 3))
    e(salu('s_lshl_b32', 's58', 's58', 1 if rot else 8))
    if not rot: e(salu('s_mov_b32', 's58', 0))
    e(salu('s_mul_i32', 's59', 's58', 589824))
    e(salu('s_lshr_b32', 's41', 's40', 1))
    e(salu('s_and_b32', 's42', 's40', 1))
    e(valu('v_lshrrev_b32', V(TMP), 3, V(vL)))
    e(salu('s_lshl_b32', 's43', 's42', 5))
    e(valu('v_add_u32', V(vT0), 's43', V(TMP)))
    e(salu('s_movk_i32', 's44', 9216))
    e(valu('v_mul_lo_u32', V(vW), V(vT0), 's44'))
    e(valu('v_bfe_u32', V(vT0), V(vL), 1, 2))
    e(valu('v_bfe_u32', V(vT1), V(vL), 4, 1))
    e(salu('s_lshl_b32', 's45', 's41', 1))
    e(valu('v_add_u32', V(vT1), 's45', V(vT1)))
    e(valu('v_xor_b32', V(vT0), V(vT0), V(vT1)))
    e(valu('v_lshl_add_u32', V(vW), V(vT0), 5, V(vW)))
    e(valu('v_and_b32', V(vT2), 1, V(vL)))
    e(valu('v_lshl_add_u32', V(vW), V(vT2), 4, V(vW)))
    e(salu('s_lshl_b32', 's46', 's36', 7))
    e(salu('s_add_u32', 's46', 's46', 's59'))
    e(valu('v_add_u32', V(vW), 's46', V(vW)))
    e(salu('s_lshl_b32', 's46', 's32', 8))
    e(salu('s_lshl_b32', 's47', 's40', 6))
    e(salu('s_add_u32', 's46', 's46', 's47'))
    e(valu('v_add_u32', V(vT0), 's46', V(TMP)))
    e(salu('s_movk_i32', 's47', 1152))
    e(valu('v_mul_lo_u32', V(vX0), V(vT0), 's47'))
    e(salu('s_lshl_b32', 's47', 's58', 7))
    e(valu('v_add_u32', V(vX0), 's47', V(vX0)))
    e(valu('v_lshrrev_b32', V(vT0), 4, V(vL)))
    e(valu('v_and_b32', V(vT1), 7, V(vL)))
    e(valu('v_xor_b32', V(vT0), V(vT0), V(vT1)))
    e(valu('v_xor_b32', V(vT1), 4, V(vT0)))
    e(valu('v_lshl_add_u32', V(vX1), V(vT1), 4, V(vX0)))
    e(valu('v_lshl_add_u32', V(vX0), V(vT0), 4, V(vX0)))
    e(salu('s_lshl_b32', 's48', 's41', 13))
    e(salu('s_lshl_b32', 's49', 's42', 12))
    e(salu('s_add_u32', 's48', 's48', 's49'))
    e(salu('s_lshr_b32', 's49', 's48', 2))
    e(salu('s_lshl_b32', 's57', 's40', 13))
    for j in range(1, 8):
        e(salu('s_mov_b32', f's{84+j}', j * 9216 - (j & 3) * 1024))
    e(salu('s_mov_b32', 's27', 72704))
    e(salu('s_mov_b32', 's28', 2 * 72704))
    e(salu('s_mov_b32', 's29', 3 * 72704))
    e(salu('s_mov_b32', 's14', 2048 * 1152))
    e(salu('s_mov_b32', 's15', 0x20000))
    e(salu('s_mov_b32', 's18', 576 * 9216))
    e(salu('s_mov_b32', 's19', 0x20000))
    e(salu('s_mov_b32', 's22', WS_H + WS_H_BYTES))
    e(salu('s_mov_b32', 's23', 0x20000))
    e(salu('s_mov_b32', 'm0', 's48'))
    e(raw('s_waitcnt lgkmcnt(0)', 'drain_lg'))
    e(salu('s_cmp_eq_u32', 's41', 0))
    e(salu('s_cselect_b32', 's16', 's8', 's10'))
    e(salu('s_cselect_b32', 's17', 's9', 's11'))
    e(salu('s_mov_b32', 's12', 's4'))
    e(salu('s_mov_b32', 's13', 's5'))
    e(salu('s_mov_b32', 's20', 's6'))
    e(salu('s_mov_b32', 's21', 's7'))

    WI = ['0', 's27', 's28', 's29']
    XJ = ['0'] + [f's{84+j}' for j in range(1, 8)]
    def slotQ1(t): return t % 4
    Q2SLOT = [8, 9, 6, 7, 1, 4, 5, 2, 3]
    def slotQ2(t): return Q2SLOT[t]
    SBASE = 0
    def spos(t): return t if t < 4 else 32 + (t - 4)
    def step(vreg, t, stride, extra=0, vreg2=None):
        r = []
        wr = (9 - t) % 9
        if wr in (0, 2, 4, 6):
            r.append(salu('s_cmp_eq_u32', 's58', wr))
            r.append(salu('s_mov_b32', 's46', stride + extra))
            r.append(salu('s_cselect_b32', 's46', hex((-8 * stride + extra) & 0xffffffff), 's46'))
            src = 's46'
        else:
            src = stride + extra
        r.append(valu('v_add_u32', V(vreg), src, V(vreg)))
        if vreg2 is not None: r.append(valu('v_add_u32', V(vreg2), src, V(vreg2)))
        return r
    def wdma(ph, t, first=False):
        r = []
        slot = slotQ1(t) if ph == 'Q1' else slotQ2(t)
        if not first:
            r += step(vW, t, 589824, 128 if (ph == 'Q2' and t == 0) else 0)
            r.append(salu('s_add_u32', 'm0', 's48', slot * 16384))
        for i in range(4):
            r.append(bload_lds(V(vW), sW, WI[i], off=i * 1024, tag=('w', ph, t)))
        return r
    def xdma(t):
        r = []
        if t > 0: r += step(vX0, t, 128, 0, vX1)
        for j in range(8):
            if j % 4 == 0: r.append(salu('s_add_u32', 'm0', 's57', 65536 + (t % 2) * 32768 + (j >> 2) * 4096))
            ins = bload_lds(V(vX0 + (j & 1)), sX, XJ[j], off=(j & 3) * 1024, tag=('xd', t, j >> 2))
            if j == 0 and t >= 2: ins.need(lg=[('xr', t - 2)])
            r.append(ins)
        return r
    def xread(t):
        r = []
        for rt in range(2):
            for s in range(4):
                ins = dsread('ds_read_b128', xreg(4 * t + s, rt), V(XR + s), off=(t % 2) * 32768 + rt * 4096, tag=('xr', t))
                if s == 0: ins.need(vm=[('xd', t, rt)])
                r.append(ins)
        return r
    def sdma(t):
        r = []
        if t > 0: r += step(vS, t, 589824)
        r.append(salu('s_add_u32', 'm0', 's49', SBASE + spos(t) * 4096))
        r.append(bload_lds(V(vS), sW, '0', tag=('s', t)))
        return r
    if pst: e(comment('STAMP 1'))
    P += wdma('Q1', 0, first=True)
    P += xdma(0)
    if pst: e(comment('STAMP 2'))
    e(valu('v_lshrrev_b32', V(vT0), 1, V(vL)))
    e(salu('s_lshl_b32', 's46', 's41', 2))
    e(valu('v_xor_b32', V(vT0), 's46', V(vT0)))
    e(valu('v_add_u32', V(vT0), 's43', V(vT0)))
    e(valu('v_mul_lo_u32', V(vS), V(vT0), 's44'))
    e(valu('v_lshl_add_u32', V(vS), V(vT2), 4, V(vS)))
    e(salu('s_lshl_b32', 's46', 's37', 7))
    e(salu('s_lshl_b32', 's47', 's38', 5))
    e(salu('s_add_u32', 's46', 's46', 's47'))
    e(salu('s_add_u32', 's46', 's46', 's59'))
    e(valu('v_add_u32', V(vS), 's46', V(vS)))
    P += wdma('Q1', 1)
    P += xdma(1)
    if pst: e(comment('STAMP 3'))
    t_regl, t_r, t_base, t_sw = TMP, TMP + 1, TMP + 2, TMP + 3
    e(valu('v_bfe_u32', V(t_regl), V(vL), 1, 1))
    e(valu('v_bfe_u32', V(t_r), V(vL), 2, 2))
    e(valu('v_lshrrev_b32', V(TMP + 7), 5, V(vL)))
    e(valu('v_lshl_add_u32', V(vT0), V(TMP + 7), 3, V(t_r)))
    e(valu('v_bfe_u32', V(vT1), V(vL), 4, 1))
    e(valu('v_lshlrev_b32', V(vT1), 4, V(vT1)))
    e(valu('v_lshl_add_u32', V(vT1), V(vT2), 3, V(vT1)))
    e(valu('v_lshl_add_u32', V(t_base), V(vT0), 7, V(vT1)))
    e(valu('v_lshl_add_u32', V(t_base), V(t_regl), 13, V(t_base)))
    e(valu('v_lshrrev_b32', V(t_sw), 1, V(t_r)))
    e(valu('v_lshl_add_u32', V(t_sw), V(t_regl), 1, V(t_sw)))
    for cc in range(4):
        e(valu('v_xor_b32', V(TMP + 4), cc, V(t_sw)))
        e(valu('v_lshl_add_u32', V(ADR + cc), V(TMP + 4), 5, V(t_base)))
        e(valu('v_add_u32', V(ADR + 4 + cc), 65536, V(ADR + cc)))
        e(valu('v_add_u32', V(ADR + 8 + cc), 131072, V(ADR + cc)))
    e(valu('v_lshlrev_b32', V(TMP + 4), 2, V(t_regl)))
    e(valu('v_lshl_add_u32', V(TMP + 5), V(t_regl), 11, V(vT1)))
    e(valu('v_add_u32', V(TMP + 5), SBASE, V(TMP + 5)))
    e(valu('v_xor_b32', V(TMP + 6), V(vT0), V(TMP + 4)))
    e(valu('v_lshl_add_u32', V(AS0), V(TMP + 6), 5, V(TMP + 5)))
    e(valu('v_xor_b32', V(TMP + 6), 4, V(TMP + 6)))
    e(valu('v_lshl_add_u32', V(AS0 + 1), V(TMP + 6), 5, V(TMP + 5)))
    e(valu('v_add_u32', V(AS0 + 2), 131072, V(AS0)))
    e(valu('v_add_u32', V(AS0 + 3), 131072, V(AS0 + 1)))
    e(valu('v_lshlrev_b32', V(vH), 4, V(vL)))
    e(valu('v_and_b32', V(TMP + 4), 31, V(vL)))
    e(valu('v_lshlrev_b32', V(TMP + 4), 7, V(TMP + 4)))
    e(salu('s_add_u32', 's46', 's57', 65536))
    e(valu('v_add_u32', V(TMP + 4), 's46', V(TMP + 4)))
    e(valu('v_bfe_u32', V(TMP + 5), V(vL), 1, 3))
    e(valu('v_xor_b32', V(TMP + 5), V(TMP + 5), V(TMP + 7)))
    for s in range(4):
        e(valu('v_xor_b32', V(TMP + 6), 2 * s, V(TMP + 5)))
        e(valu('v_lshl_add_u32', V(XR + s), V(TMP + 6), 4, V(TMP + 4)))
    e(salu('s_lshl_b32', 's46', 's32', 3))
    e(salu('s_lshl_b32', 's47', 's40', 1))
    e(salu('s_add_u32', 's46', 's46', 's47'))
    e(salu('s_mul_i32', 's46', 's46', 288))
    e(salu('s_lshl_b32', 's47', 's36', 2))
    e(salu('s_add_u32', 's50', 's46', 's47'))
    e(salu('s_add_u32', 's54', 's50', 4))
    e(salu('s_lshl_b32', 's47', 's37', 2))
    e(salu('s_add_u32', 's47', 's47', 's38'))
    e(salu('s_add_u32', 's52', 's46', 's47'))
    for k in (50, 52, 54):
        e(salu('s_lshl_b32', f's{k}', f's{k}', 10))
        if WS_H: e(salu('s_add_u32', f's{k}', f's{k}', WS_H))
        e(salu('s_add_u32', f's{k+1}', f's{k}', 288 * 1024))
    e(salu('s_mov_b32', 's56', '0xbfb8aa3b'))

    frags = []
    for s in range(36):
        for cc in range(4): frags.append(('Q1', s, cc, cc))
    QSET = [4, 0, 1, 2]
    for cc in range(4):
        for s in range(36): frags.append(('Q2', s, cc, QSET[cc]))
    for s in range(36): frags.append(('S', s, 0, 3))
    NF = len(frags)
    def fread(f):
        ph, s, cc, st = frags[f]
        b = WF + 4 * (f % NB)
        r = []
        for t in range(2):
            if ph == 'S':
                sp = spos(s >> 2)
                a = V(AS0 + t + (2 if sp >= 32 else 0)); off = (sp & 31) * 4096 + (16 * (s & 3)) * 32
            else:
                slot = slotQ1(s >> 2) if ph == 'Q1' else slotQ2(s >> 2)
                a = V(ADR + 4 * (slot >> 2) + cc); off = (slot & 3) * 16384 + (16 * (s & 3) + 4 * t) * 128
            r.append(dsread('ds_read_b64_tr_b16', V(b + 2 * t, 2), a, off=off, tag=('f', f)))
        return r
    mf = []
    for f, (ph, s, cc, st) in enumerate(frags):
        b = WF + 4 * (f % NB)
        for rt in range(2):
            a = V(acc(st, rt), 16)
            m = mfma32(a, V(b, 4), xreg(s, rt), a if s != 0 else '0')
            if rt == 0: m.need(lg=[('f', f)])
            if ph == 'Q1' and cc == 0 and rt == 0 and (s & 3) == 0: m.need(lg=[('xr', s >> 2)])
            mf.append(m)
    def epi(st, soff_base, cc):
        r = []
        for rt in range(2):
            a = acc(st, rt)
            for half in range(2):
                g = [a + 8 * half + i for i in range(4)]
                u = [a + 8 * half + 4 + i for i in range(4)]
                T = [TMP + 4 * half + i for i in range(4)]
                for i in range(4): r.append(valu('v_mul_f32', V(T[i]), 's56', V(g[i])))
                for i in range(4): r.append(valu('v_exp_f32', V(T[i]), V(T[i])))
                for i in range(4): r.append(valu('v_mul_f32', V(g[i]), V(g[i]), V(u[i])))
                for i in range(4): r.append(valu('v_add_f32', V(T[i]), '1.0', V(T[i])))
                for i in range(4): r.append(valu('v_rcp_f32', V(T[i]), V(T[i])))
                for i in range(4): r.append(valu('v_mul_f32', V(g[i]), V(g[i]), V(T[i])))
                for i in range(2): r.append(valu('v_cvt_pk_bf16_f32', V(a + 4 + 2 * half + i), V(g[2 * i]), V(g[2 * i + 1])))
            r.append(bstore(V(a + 4, 4), V(vH), sH, f's{soff_base + rt}', off=cc * 1024, tag=('h', st, rt), flags=hflags))
        return r

    if pst: P.append(raw('s_nop 0', 'nop').need(vm=[('w', 'Q1', 0)])); e(comment('STAMP 4'))
    P.append(barrier().need(vm=[('w', 'Q1', 0)]))
    if pst: e(comment('STAMP 5'))
    for f in range(D): P += fread(f)
    P += xread(0)
    sF = Stream('frag', 0)
    sL = Stream('load', 2)
    sE = Stream('epi', 3)
    bar_gap = {}
    def first_frag_of(ph, stage):
        for f, fr in enumerate(frags):
            if fr[0] == ph and fr[1] == 4 * stage and fr[2] == 0: return f
    bars = {}
    for t in range(1, 9): bars[first_frag_of('Q1', t)] = (('Q1', t), [('w', 'Q1', t)], [('xr', t)])
    Q2G = {0: (0, 1), 2: (2, 3, 4), 5: (5, 6, 7), 8: (8,)}
    for t, g in Q2G.items(): bars[first_frag_of('Q2', t)] = (('Q2', t), [('w', 'Q2', k) for k in g], [])
    bars[144 + 3 * 36 + 4 * 3] = (('C3', 3), [], [])
    SGROUP = {0: (0, 1, 2, 3), 4: (4, 5, 6, 7, 8)}
    for t, g in SGROUP.items(): bars[first_frag_of('S', t)] = (('S', t), [('s', k) for k in g], [])
    XRG = 12
    pend = {}
    for t in range(1, 9):
        for j, ins in enumerate(xread(t)): pend[32 * (t - 1) + XRG + j] = ins
    for f in range(D, NF):
        g0 = 2 * (f - D)
        if f in bars:
            key, tags, ltags = bars[f]
            sF.add(barrier().need(vm=tags, lg=ltags), g0 - 1, g0 - 1)
            bar_gap[key] = g0 - 1
        r = fread(f)
        for k in range(2):
            sF.add(r[k], g0 + k, g0 + k)
            if g0 + k in pend: sF.add(pend.pop(g0 + k), g0 + k, g0 + k)
    assert not pend
    for u in range(0, 7):
        lo = 0 if u == 0 else bar_gap[('Q1', u)] + 1
        lst = wdma('Q1', u + 2) + xdma(u + 2)
        sL.spread(lst, lo, lo + (22 if u == 0 else 31))
    q2_after = [('Q1', 7), ('Q1', 7), ('Q1', 7), ('Q1', 7), ('Q1', 7), ('Q1', 8), ('Q1', 8), ('Q1', 8), ('Q2', 0)]
    cur = 0
    for t in range(9):
        lo2 = max(cur, bar_gap[q2_after[t]] + 1)
        lst = wdma('Q2', t)
        sL.spread(lst, lo2, lo2 + QSP)
        cur = lo2 + QSP
    lst = []
    for t in range(4): lst += sdma(t)
    lo2 = max(cur, bar_gap[('Q2', 8)] + 1)
    sL.spread(lst, lo2, lo2 + 40)
    lst = []
    for t in range(4, 9): lst += sdma(t)
    lo2 = bar_gap[('C3', 3)] + 1
    assert lo2 >= 2 * (144 + 108 + 8)
    sL.spread(lst, lo2, lo2 + 40)
    g_S = 288; g_Q2 = [288 + 72 * c for c in range(5)]
    EP = [(0, 50, 0, g_Q2[1] - 2), (1, 50, 1, g_Q2[2] - 2), (2, 50, 2, g_Q2[3] - 2), (3, 50, 3, g_Q2[4] - 2), (4, 54, 0, 10**8), (0, 54, 1, 10**8), (1, 54, 2, 10**8), (2, 54, 3, 10**8)]
    for k, (st, so, cc, dl) in enumerate(EP):
        sE.spread(epi(st, so, cc), g_S + 3 + (k * 356) // 8, g_S + 3 + ((k + 1) * 356) // 8, dl)
    sE.spread(epi(3, 52, 0), 10**6, 10**6 + 1, 10**8)
    body = schedule(mf, [sF, sL, sE], 24)
    if stamps:
        marks = {0: 1, 32: 2, 96: 3, 160: 4, 288: 5, 360: 6, 432: 7, 504: 8, 576: 9} if not pst else {0: 6, 32: 7, 64: 8, 288: 9}
        body = add_stamps(P, body, marks, 648, sH, 's40', vT0, vT1)
    allins = P + body
    allins = insert_waits(allins)
    allins = pad_hazards(allins)
    allins.append(label('K1_END'))
    allins.append(raw('s_endpgm', 'end'))
    return allins

if __name__ == '__main__':
    ins = gen_k1()
    print(render(ins))
```

```python
from asmlib import *
from sched import *
from layout import *

RING_U = 13
SCR = RING_U * 8192
SCR_W = 12928
NCONV = 144

def gen_k2(stamps=False, pflags="", D=4, NB=6, TAILKC=8, TAILKN=4, PACEC=5, PACEN=3.7):
    CACC = 32; CA = 64; CB = 128
    ETMP = 64
    GACC = 128; WF = 200
    vWr0 = 224; vWr1 = 225; vWd = 226; vHl = 227; vP = 228
    vA0 = 229
    vB = 233; vE = 234; vY = 235; vL = 236; vT0 = 237; vT1 = 238; vT2 = 239; vC = 240; vCW = 241
    sWS, sSK = S(12, 4), S(16, 4)
    def hreg(k, mh):
        if k < 4: return V(k * 8 + mh * 4, 4)
        return A((k - 4) * 8 + mh * 4, 4)
    P = []; e = P.append
    e(salu('s_cmp_ge_u32', 's2', 256))
    e(raw('s_cbranch_scc1 K2_END', 'branch'))
    e(raw('s_load_dwordx4 s[4:7], s[0:1], 32', 'smem', wr=['s[4:7]']))
    e(raw('s_load_dwordx2 s[8:9], s[0:1], 104', 'smem', wr=['s[8:9]']))
    e(valu('v_lshrrev_b32', V(vT0), 6, 'v0'))
    e(valu('v_and_b32', V(vL), 63, 'v0'))
    e(salu('s_and_b32', 's30', 's2', 7))
    e(valu('v_readfirstlane_b32', 's40', V(vT0)))
    e(salu('s_lshr_b32', 's31', 's2', 3))
    e(salu('s_lshr_b32', 's33', 's30', 1))
    e(salu('s_and_b32', 's32', 's30', 1))
    e(salu('s_lshl_b32', 's32', 's32', 3))
    e(salu('s_and_b32', 's34', 's31', 7))
    e(salu('s_add_u32', 's32', 's32', 's34'))
    e(salu('s_lshr_b32', 's34', 's31', 3))
    e(salu('s_lshl_b32', 's35', 's32', 2))
    e(salu('s_add_u32', 's35', 's35', 's40'))
    e(salu('s_mul_i32', 's41', 's35', 288 * 1024))
    e(salu('s_mul_i32', 's36', 's33', 73728))
    e(salu('s_add_u32', 's41', 's41', 's36'))
    if WS_H: e(salu('s_add_u32', 's41', 's41', WS_H))
    e(salu('s_lshl_b32', 's36', 's34', 2))
    e(salu('s_add_u32', 's36', 's36', 's33'))
    e(salu('s_mul_i32', 's42', 's36', 331776))
    e(salu('s_lshl_b32', 's43', 's40', 11))
    e(salu('s_add_u32', 's42', 's42', 's43'))
    e(salu('s_add_u32', 's42', 's42', WS_W2T))
    e(salu('s_lshl_b32', 's36', 's33', 7))
    e(salu('s_lshl_b32', 's37', 's35', 1))
    e(salu('s_add_u32', 's36', 's36', 's37'))
    e(salu('s_mul_i32', 's36', 's36', 36))
    e(salu('s_mul_i32', 's37', 's34', 9))
    e(salu('s_add_u32', 's36', 's36', 's37'))
    e(salu('s_lshl_b32', 's36', 's36', 10))
    e(salu('s_add_u32', 's44', 's36', WS_P))
    e(valu('v_lshlrev_b32', V(vWd), 4, V(vL)))
    e(valu('v_mov_b32', V(vWr0), V(vWd)))
    e(valu('v_add_u32', V(vWr1), 65536, V(vWd)))
    e(valu('v_lshrrev_b32', V(vT0), 4, V(vL)))
    e(valu('v_and_b32', V(vT1), 15, V(vL)))
    e(valu('v_lshlrev_b32', V(vHl), 9, V(vT0)))
    e(valu('v_lshl_add_u32', V(vHl), V(vT1), 4, V(vHl)))
    e(salu('s_mov_b32', 's14', WS_END))
    e(salu('s_mov_b32', 's15', 0x20000))
    e(salu('s_mov_b32', 's18', 576 * 4096))
    e(salu('s_mov_b32', 's19', 0x20000))
    e(raw('s_waitcnt lgkmcnt(0)', 'drain_lg'))
    e(salu('s_mov_b32', 's12', 's8'))
    e(salu('s_mov_b32', 's13', 's9'))
    e(salu('s_mov_b32', 's16', 's4'))
    e(salu('s_mov_b32', 's17', 's5'))
    e(salu('s_cmp_ge_u32', 's2', NCONV))
    e(raw('s_cbranch_scc1 K2_NOCONV', 'branch'))
    head = P

    def path(conv):
        P = []; e = P.append
        def wdma(n):
            r = []
            if n > 0: r.append(salu('s_add_u32', 's42', 's42', 8192))
            r.append(salu('s_add_u32', 'm0', 's43', (n % RING_U) * 8192))
            for i in range(2): r.append(bload_lds(V(vWd), sWS, 's42', off=i * 1024, tag=('w', n)))
            return r
        def hld(k):
            r = []
            if k > 0 and k % 2 == 0: r.append(salu('s_add_u32', 's41', 's41', 4096))
            for mh in range(2):
                r.append(bload(hreg(k, mh), V(vHl), sWS, 's41', off=(k & 1) * 2048 + mh * 256, tag=('h', k)))
            return r
        mf = []
        sF = Stream('frag', 0); sL = Stream('load', 2); sE = Stream('epi', 3); sS = Stream('st', 4)
        if conv:
            e(salu('s_lshl_b32', 's45', 's2', 2))
            e(salu('s_add_u32', 's45', 's45', 's40'))
            e(salu('s_lshl_b32', 's46', 's45', 12))
            e(salu('s_mul_i32', 's47', 's40', SCR_W))
            e(salu('s_add_u32', 's47', 's47', SCR))
            e(salu('s_add_u32', 'm0', 's47', 32))
            e(salu('s_lshr_b32', 's48', 's45', 1))
            e(salu('s_lshl_b32', 's48', 's48', 2))
            for i in range(4): e(bload_lds(V(vWd), sSK, 's46', off=i * 1024, tag='c0'))
            R0 = CB + 32; R1 = CB + 48
            for i in range(4):
                e(bload(V(R0 + 4 * i, 4), V(vWd), sSK, 's46', off=i * 1024, tag='r'))
                e(bload(V(R1 + 4 * i, 4), V(vWd), sSK, 's46', off=i * 1024 + 4, tag='r'))
            e(salu('s_add_u32', 'm0', 's47', 8320))
            e(salu('s_add_u32', 's49', 's46', WS_UR))
            for i in range(4): e(bload_lds(V(vWd), sWS, 's49', off=i * 1024, tag='ur'))
            e(raw('s_load_dword s50, s[6:7], s48', 'smem', wr=['s50']))
            e(valu('v_lshl_add_u32', V(vT2), V(vT0), 3, V(vT1)))
            e(valu('v_add_u32', V(vT2), 1, V(vT2)))
            e(valu('v_and_b32', V(vC), 1, V(vT2)))
            e(valu('v_lshrrev_b32', V(vT2), 1, V(vT2)))
            e(valu('v_mul_u32_u24', V(vC), 4160, V(vC)))
            e(valu('v_lshl_add_u32', V(vC), V(vT2), 2, V(vC)))
            e(valu('v_add_u32', V(vA0), 's47', V(vC)))
            for b in range(1, 4): e(valu('v_add_u32', V(vA0 + b), 1024 * b, V(vA0)))
            e(valu('v_lshlrev_b32', V(vT2), 5, V(vT1)))
            e(valu('v_lshlrev_b32', V(vC), 4, V(vT0)))
            e(valu('v_sub_u32', V(vC), V(vC), V(vT2)))
            e(salu('s_add_u32', 's51', 's47', 8320 + 480))
            e(valu('v_add_u32', V(vB), 's51', V(vC)))
            e(valu('v_lshl_add_u32', V(vY), V(vT0), 3, V(vT2)))
            e(salu('s_add_u32', 's51', 's47', 8320 + 504))
            e(valu('v_sub_u32', V(vE), 's51', V(vY)))
            e(salu('s_add_u32', 's52', 's46', WS_Y2))
            e(valu('v_mov_b32', V(CA), 0))
            e(valu('v_mov_b32', V(CA + 1), 0))
            e(valu('v_lshlrev_b32', V(vC), 3, V(vL)))
            e(salu('s_add_u32', 's51', 's47', 8320 + 4096))
            e(valu('v_add_u32', V(vC), 's51', V(vC)))
            e(dswrite('ds_write_b64', V(vC), V(CA, 2), tag='pad'))
            e(valu('v_and_b32', V(vT2), 7, V(vL)))
            e(valu('v_lshlrev_b32', V(vC), 2, V(vT2)))
            e(valu('v_add_u32', V(vC), 's47', V(vC)))
            e(dswrite('ds_write_b32', V(vC), V(CA), tag='pad'))
            e(salu('s_add_u32', 's51', 's47', 4160 + 32))
            e(valu('v_add_u32', V(vCW), 's51', V(vWd)))
            pre = wdma(0) + hld(0) + wdma(1) + hld(1)
            P += pre
            first = True
            for i in range(16):
                ins = valu('v_alignbit_b32', V(R1 + i), V(R1 + i), V(R0 + i), 16)
                if first: ins.need(vm=['r']); first = False
                e(ins)
            e(valu('v_readfirstlane_b32', 's53', V(R0)))
            for i in range(4): e(dswrite('ds_write_b128', V(vCW), V(R1 + 4 * i, 4), off=i * 1024, tag='pad'))
            e(salu('s_lshl_b32', 's53', 's53', 16))
            e(valu('v_mov_b32', V(CA + 2), 's53'))
            e(valu('v_cmp_eq_u32', 'vcc', 7, V(vT2)))
            e(valu('v_cndmask_b32', V(CA + 2), V(CA), V(CA + 2), 'vcc'))
            e(dswrite('ds_write_b32', V(vC), V(CA + 2), off=4160, tag='pad'))
            e(raw('s_waitcnt lgkmcnt(0)', 'drain_lg'))
            e(salu('s_and_b32', 's51', 's45', 1))
            e(salu('s_cmp_eq_u32', 's51', 1))
            e(salu('s_lshl_b32', 's51', 's50', 16))
            e(salu('s_and_b32', 's50', 's50', '0xffff0000'))
            e(salu('s_cmp_eq_u32', 's45', 's45'))
            e(salu('s_bitcmp1_b32', 's45', 0))
            e(salu('s_cselect_b32', 's50', 's50', 's51'))
            e(salu('s_mov_b32', 's54', '0xffff0000'))
            def creads(k0):
                r = []
                bb = (k0 & 1) * 32
                def ar(k1):
                    beta = 8 * k1 + k0
                    o = (beta & 15) * 16
                    return [dsread('ds_read2_b32', V(CA + bb + 4 * k1 + 2 * t, 2), V(vA0 + (beta >> 4)), offtext=f"offset0:{o+2*t} offset1:{o+2*t+1}", tag=('c', k0)) for t in range(2)]
                def br(dl):
                    return [dsread('ds_read_b128', V(CB + bb + 4 * dl, 4), V(vB), off=512 * (7 - dl) + 64 * k0, tag=('c', k0))]
                r += ar(0)
                for dl in range(8): r += br(dl)
                for k1 in range(1, 8): r += ar(k1)
                return r
            r0 = creads(0)
            r0[0].need(vm=['c0', 'ur'])
            P += r0
            for k0 in range(8):
                bb = (k0 & 1) * 32
                first = True
                for k1 in range(8):
                    for c in range(k1, 8):
                        a = V(CACC + 4 * c, 4)
                        m = mfma16(a, V(CA + bb + 4 * k1, 4), V(CB + bb + 4 * (c - k1), 4), '0' if (k0 == 0 and k1 == 0) else a)
                        if first: m.need(lg=[('c', k0)]); first = False
                        mf.append(m)
                if k0 < 7:
                    sF.spread(creads(k0 + 1), 36 * k0 + 1, 36 * k0 + 30, 36 * k0 + 33)
            G0 = 288
            ep = []
            for c in range(8):
                ep.append(dsread('ds_read_b64', V(ETMP + 2 * c, 2), V(vE), off=512 * (7 - c), tag=('e', c)))
            for c in range(8):
                t = ETMP + 16 + 4 * (c & 1)
                lo, hi = ETMP + 2 * c, ETMP + 2 * c + 1
                ep.append(valu('v_and_b32', V(t), 's54', V(hi)).need(lg=[('e', c)]))
                ep.append(valu('v_lshlrev_b32', V(t + 1), 16, V(hi)))
                ep.append(valu('v_and_b32', V(t + 2), 's54', V(lo)))
                ep.append(valu('v_lshlrev_b32', V(t + 3), 16, V(lo)))
                for r in range(4): ep.append(valu('v_fmac_f32', V(CACC + 4 * c + r), 's50', V(t + r)))
                ep.append(valu('v_cvt_pk_bf16_f32', V(lo), V(CACC + 4 * c), V(CACC + 4 * c + 1)))
                ep.append(valu('v_cvt_pk_bf16_f32', V(hi), V(CACC + 4 * c + 2), V(CACC + 4 * c + 3)))
                ep.append(bstore(V(lo, 2), V(vY), sWS, 's52', off=512 * c, width=2, tag='y'))
            sE.spread(ep, G0 + 4, G0 + 4 + len(ep) * 3 // 2)
            npre_w, npre_h = 2, 2
        else:
            G0 = 0
            pre = wdma(0) + hld(0) + wdma(1) + hld(1) + wdma(2) + hld(2)
            P += pre
            npre_w, npre_h = 3, 3
        TAILK = TAILKC if conv else TAILKN
        KO = 36 - TAILK
        frags = [(k, j) for k in range(KO) for j in range(9)] + [(k, j) for j in range(9) for k in range(KO, 36)]
        NF = len(frags)
        def funit(f): k, j = frags[f]; return (9 * k + j) >> 3
        def fread(f):
            k, j = frags[f]
            so = (9 * k + j)
            addr = ((so >> 3) % RING_U) * 8192 + (so & 7) * 1024
            return dsread('ds_read_b128', V(WF + 4 * (f % NB), 4), V(vWr1 if addr >= 65536 else vWr0), off=addr & 65535, tag=('f', f))
        seen_h = set()
        for f, (k, j) in enumerate(frags):
            for mh in range(2):
                a = V(GACC + 8 * j + 4 * mh, 4)
                m = mfma16(a, V(WF + 4 * (f % NB), 4), hreg(k, mh), a if k else '0')
                if mh == 0:
                    m.need(lg=[('f', f)])
                    if k not in seen_h: m.need(vm=[('h', k)]); seen_h.add(k)
                mf.append(m)
        NU = 41
        covered = -1
        bar_at = []
        lastread = {}
        for f in range(NF): lastread[funit(f)] = f
        for f in range(NF):
            g0 = G0 + 2 * (f - D)
            u = funit(f)
            if u > covered:
                upto = min(NU - 1, u + 1)
                if f == 0: upto = 0
                if f >= 9 * KO: upto = NU - 1
                b = barrier().need(vm=[('w', n) for n in range(covered + 1, upto + 1)])
                covered = upto
                if g0 - 1 < 0: P.append(b); gb = -1
                else: sF.add(b, g0 - 1, g0 - 1); gb = g0 - 1
                free = max([n for n in range(NU) if G0 + 2 * lastread[n] + 1 <= gb and all(G0 + 2 * lastread[m] + 1 <= gb for m in range(n))], default=-1)
                bar_at.append((gb, free))
            r = fread(f)
            if g0 < 0: P.append(r)
            else: sF.add(r, g0, g0)
        def w_earliest(n):
            if n < RING_U: return 0
            for gb, free in bar_at:
                if free >= n - RING_U: return gb + 1
            raise Exception("no slot")
        seq = []
        wn = npre_w
        for k in range(npre_h, 36):
            need_u = min(NU - 1, (9 * k + 8) >> 3)
            while wn <= need_u: seq.append(('w', wn)); wn += 1
            seq.append(('h', k))
        while wn < NU: seq.append(('w', wn)); wn += 1
        wq = [n for t, n in seq if t == 'w']; hq = [n for t, n in seq if t == 'h']
        order = {x: i for i, x in enumerate(seq)}
        g = 0
        PACE = PACEC if conv else PACEN
        while wq or hq:
            cw = wq and w_earliest(wq[0]) <= g
            if cw and (not hq or order[('w', wq[0])] < order[('h', hq[0])]):
                lst = wdma(wq.pop(0))
            elif hq:
                lst = hld(hq.pop(0))
            else:
                g = w_earliest(wq[0]); continue
            for ins in lst:
                sL.add(ins, int(g))
                if ins.kind in ('vmem', 'vmem_lds'): g += PACE
        for j in range(9):
            fl = 9 * KO + TAILK * j + TAILK - 1
            gl = G0 + 2 * fl + 1
            for mh in range(2):
                st = [salu('s_add_u32', 's55', 's44', mh * 36864 + j * 1024), bstore(V(GACC + 8 * j + 4 * mh, 4), V(vWd), sWS, 's55', tag='p', flags=pflags)]
                for ins in st: sS.add(ins, gl + 4 + 2 * mh)
        body = schedule(mf, [sF, sL, sE, sS], 8)
        if stamps:
            marks = {0: 1, 144: 2, 288: 3, 288 + 144: 4, 288 + 288: 5, 288 + 432: 6, 288 + 504: 7} if conv else {0: 3, 144: 4, 288: 5, 432: 6, 504: 7}
            dummy = [None, None]
            body = add_stamps(dummy, body, marks, len(mf), sWS, 's40', vT0, vT1, base=65 << 20)
        allins = P + body
        allins.append(raw('s_endpgm', 'end'))
        return allins
    if stamps:
        head[2:2] = [raw('s_memtime s[60:61]', 'smem', wr=['s[60:61]']), raw('s_waitcnt lgkmcnt(0)', 'drain_lg')]
        for i in range(1, 12):
            head.insert(4, salu('s_mov_b32', f's{60+2*i}', 's60'))
    out = pad_hazards(insert_waits(head + path(True)))
    out.append(label('K2_NOCONV'))
    out += pad_hazards(insert_waits(path(False)))
    out.append(label('K2_END'))
    out.append(raw('s_endpgm', 'end'))
    return out
```

```python
from asmlib import *
from layout import *

def gen_k3():
    P = []; e = P.append
    e(salu('s_cmp_ge_u32', 's2', 256))
    e(raw('s_cbranch_scc1 K3_END', 'branch'))
    e(raw('s_load_dwordx2 s[4:5], s[0:1], 0', 'smem', wr=['s[4:5]']))
    e(raw('s_load_dwordx2 s[6:7], s[0:1], 88', 'smem', wr=['s[6:7]']))
    e(raw('s_load_dwordx2 s[8:9], s[0:1], 104', 'smem', wr=['s[8:9]']))
    vL, vT0, vT1, vP, vQ, vG, vY, vR = 1, 2, 3, 4, 5, 6, 7, 8
    PR = 12
    QR = PR + 32
    YR = QR + 4
    GR = YR + 4
    T = GR + 2
    sQ, sO, sWS = S(12, 4), S(16, 4), S(20, 4)
    e(valu('v_lshrrev_b32', V(vT0), 6, 'v0'))
    e(valu('v_and_b32', V(vL), 63, 'v0'))
    e(salu('s_and_b32', 's30', 's2', 7))
    e(valu('v_readfirstlane_b32', 's40', V(vT0)))
    e(salu('s_lshr_b32', 's31', 's2', 3))
    e(salu('s_lshl_b32', 's32', 's30', 3))
    e(salu('s_lshr_b32', 's33', 's31', 2))
    e(salu('s_add_u32', 's32', 's32', 's33'))
    e(salu('s_and_b32', 's33', 's31', 3))
    e(salu('s_mul_i32', 's33', 's33', 9))
    e(salu('s_add_u32', 's33', 's33', 's40'))
    e(salu('s_mul_i32', 's34', 's32', 72))
    e(salu('s_add_u32', 's34', 's34', 's33'))
    e(salu('s_lshl_b32', 's34', 's34', 10))
    e(salu('s_add_u32', 's34', 's34', WS_P))
    e(valu('v_lshlrev_b32', V(vP), 4, V(vL)))
    e(valu('v_lshrrev_b32', V(vT0), 4, V(vL)))
    e(valu('v_and_b32', V(vT1), 15, V(vL)))
    e(valu('v_mul_u32_u24', V(vQ), 1152, V(vT1)))
    e(valu('v_lshl_add_u32', V(vQ), V(vT0), 3, V(vQ)))
    e(valu('v_lshlrev_b32', V(vG), 2, V(vT1)))
    e(salu('s_mul_i32', 's35', 's32', 32 * 1152))
    e(salu('s_lshl_b32', 's36', 's33', 5))
    e(salu('s_add_u32', 's35', 's35', 's36'))
    e(salu('s_add_u32', 's36', 's35', 18432))
    e(salu('s_lshl_b32', 's37', 's32', 7))
    e(salu('s_add_u32', 's37', 's37', WS_G))
    e(valu('v_lshrrev_b32', V(vY), 2, V(vL)))
    e(valu('v_lshlrev_b32', V(vR), 6, V(vY)))
    e(valu('v_lshlrev_b32', V(vY), 12, V(vY)))
    e(valu('v_and_b32', V(vT1), 3, V(vL)))
    e(valu('v_lshl_add_u32', V(vY), V(vT1), 4, V(vY)))
    e(valu('v_lshl_add_u32', V(vR), V(vT1), 3, V(vR)))
    e(salu('s_lshl_b32', 's38', 's33', 16))
    e(salu('s_lshl_b32', 's39', 's32', 6))
    e(salu('s_add_u32', 's38', 's38', 's39'))
    e(salu('s_add_u32', 's38', 's38', WS_Y2))
    e(salu('s_lshl_b32', 's39', 's40', 10))
    e(valu('v_add_u32', V(vR), 's39', V(vR)))
    e(salu('s_mov_b32', 'm0', 's39'))
    e(salu('s_mov_b32', 's14', 2048 * 1152))
    e(salu('s_mov_b32', 's15', 0x20000))
    e(salu('s_mov_b32', 's18', 2048 * 1152))
    e(salu('s_mov_b32', 's19', 0x20000))
    e(salu('s_mov_b32', 's22', WS_END))
    e(salu('s_mov_b32', 's23', 0x20000))
    e(salu('s_mov_b32', 's41', '0xffff0000'))
    e(raw('s_waitcnt lgkmcnt(0)', 'drain_lg'))
    e(salu('s_mov_b32', 's20', 's8'))
    e(salu('s_mov_b32', 's21', 's9'))
    e(salu('s_mov_b32', 's12', 's4'))
    e(salu('s_mov_b32', 's13', 's5'))
    e(salu('s_mov_b32', 's16', 's6'))
    e(salu('s_mov_b32', 's17', 's7'))
    e(bload_lds(V(vY), sWS, 's38', tag='y'))
    for mh in range(2):
        e(bload(V(GR + mh), V(vG), sWS, 's37', off=64 * mh, width=1, tag='g'))
        e(bload(V(QR + 2 * mh, 2), V(vQ), sQ, f's{35+mh}', width=2, tag='q'))
    for mh in range(2):
        for q in range(4):
            o = q * 128 * 36 * 1024 + mh * 36864
            if o: e(salu('s_add_u32', 's42', 's34', o))
            e(bload(V(PR + 16 * mh + 4 * q, 4), V(vP), sWS, 's42' if o else 's34', tag=('p', mh)))
    for mh in range(2):
        ins = dsread('ds_read_b64_tr_b16', V(YR + 2 * mh, 2), V(vR), off=32 * mh, tag='yr')
        if mh == 0: ins.need(vm=['y'])
        e(ins)
    for mh in range(2):
        for r in range(4):
            src_q = V(QR + 2 * mh + (r >> 1)); src_y = V(YR + 2 * mh + (r >> 1))
            if r & 1:
                i1 = valu('v_and_b32', V(T + r), 's41', src_q); i2 = valu('v_and_b32', V(T + 4 + r), 's41', src_y)
            else:
                i1 = valu('v_lshlrev_b32', V(T + r), 16, src_q); i2 = valu('v_lshlrev_b32', V(T + 4 + r), 16, src_y)
            if r == 0: i1.need(vm=['q', 'g']); i2.need(lg=['yr'])
            e(i1); e(i2)
        for r in range(4): e(valu('v_mul_f32', V(T + r), V(T + r), V(T + 4 + r)))
        for r in range(4): e(valu('v_mul_f32', V(T + r), V(T + r), V(GR + mh)))
        e(valu('v_sub_f32', V(GR + mh), '1.0', V(GR + mh)))
        p = PR + 16 * mh
        for r in range(4):
            i1 = valu('v_add_f32', V(p + r), V(p + r), V(p + 4 + r))
            if r == 0: i1.need(vm=[('p', mh)])
            e(i1)
            e(valu('v_add_f32', V(p + 8 + r), V(p + 8 + r), V(p + 12 + r)))
        for r in range(4): e(valu('v_add_f32', V(p + r), V(p + r), V(p + 8 + r)))
        for r in range(4): e(valu('v_fmac_f32', V(T + r), V(p + r), V(GR + mh)))
        e(valu('v_cvt_pk_bf16_f32', V(p), V(T), V(T + 1)))
        e(valu('v_cvt_pk_bf16_f32', V(p + 1), V(T + 2), V(T + 3)))
        e(bstore(V(p, 2), V(vQ), sO, f's{35+mh}', width=2))
    out = pad_hazards(insert_waits(P))
    out.append(label('K3_END'))
    out.append(raw('s_endpgm', 'end'))
    return out
```

```python
WS_H = 0
WS_H_BYTES = 64 * 288 * 1024
WS_W2T = WS_H + WS_H_BYTES
WS_W2T_BYTES = 5184 * 1024
WS_UR = WS_W2T + WS_W2T_BYTES
WS_UR_BYTES = 576 * 4096
WS_Y2 = WS_UR + WS_UR_BYTES
WS_Y2_BYTES = 576 * 4096
WS_G = WS_Y2 + WS_Y2_BYTES
WS_G_BYTES = 8192
WS_P = WS_G + WS_G_BYTES
WS_P_BYTES = 4 * 128 * 36 * 1024
WS_END = WS_P + WS_P_BYTES
```

```python
from asmlib import *
class Item:
    __slots__ = ('ins', 'at', 'dl')
    def __init__(self, ins, at, dl): self.ins = ins; self.at = at; self.dl = dl

class Stream:
    def __init__(self, name, prio=0): self.name = name; self.prio = prio; self.items = []; self.pos = 0
    def add(self, ins, at, dl=10**9): self.items.append(Item(ins, at, dl))
    def head(self): return self.items[self.pos] if self.pos < len(self.items) else None
    def spread(self, lst, lo, hi, dl=10**9):
        n = len(lst)
        for j, ins in enumerate(lst): self.add(ins, lo + (j * (hi - lo)) // n, dl)

def icost(ins):
    k = ins.kind
    if k == 'trans': return 8
    if k in ('comment', 'label'): return 0
    if k == 'nop': return 4 * ins.cost
    return 4

def schedule(mfmas, streams, budget):
    out = []
    for n, m in enumerate(mfmas):
        out.append(m)
        rem = budget
        while True:
            c = [s for s in streams if s.head() is not None and s.head().at <= n]
            if not c: break
            s = min(c, key=lambda s: (s.head().dl, s.prio))
            it = s.head()
            k = icost(it.ins)
            if k > rem and it.dl > n: break
            out.append(it.ins); rem -= k; s.pos += 1
    for s in sorted(streams, key=lambda s: s.prio):
        while s.head() is not None:
            out.append(s.head().ins); s.pos += 1
    return out

def add_stamps(P, body, marks, nm, srd, wave_s, vt0, vt1, base=64 << 20, sbase=60):
    def stamp(i):
        return [raw(f's_memtime s[{sbase+2*i}:{sbase+1+2*i}]', 'smem', wr=[f's[{sbase+2*i}:{sbase+1+2*i}]']), raw('s_waitcnt lgkmcnt(0)', 'drain_lg')]
    nb = []; n = 0
    last = 10
    for ins in body:
        if ins.kind == 'mfma':
            if n in marks: nb += stamp(marks[n])
            n += 1
            if n == nm:
                nb.append(ins); nb += stamp(last); continue
        nb.append(ins)
    body = nb
    body.append(raw('s_waitcnt vmcnt(0)', 'drain_vm'))
    body += stamp(last + 1)
    P[2:2] = stamp(0)
    newP = []
    for ins in P:
        if ins is not None and ins.kind == 'comment' and ins.text.startswith('; STAMP'):
            newP += stamp(int(ins.text.split()[2]))
        else: newP.append(ins)
    P[:] = newP
    import re
    lo = int(re.match(r's\[(\d+):', srd).group(1))
    body.append(salu('s_lshl_b32', 's46', 's2', 2))
    body.append(salu('s_add_u32', 's46', 's46', wave_s))
    body.append(salu('s_lshl_b32', 's46', 's46', 7))
    body.append(salu('s_add_u32', 's46', 's46', base))
    body.append(salu('s_mov_b32', f's{lo+2}', 128 << 20))
    body.append(valu('v_mov_b32', V(vt1), 0))
    for i in range(last + 2):
        body.append(valu('v_mov_b32', V(vt0), f's{sbase+2*i}'))
        body.append(bstore(V(vt0), V(vt1), srd, 's46', off=4 * i, width=1))
    return body
```

```python
import sys, argparse
from asmlib import *
import gen_k1, gen_k0, gen_k2, gen_k3

HEADER = open('gated_mix__ssm_conv_h3__glu_gated_swiglu__prompt.s.ref').read().split('; Override launch')[0]

def kernel_text(name, ins):
    return f""".globl {name}
.p2align 8
.type {name},@function
{name}:
{render(ins)}
"""
def desc(name, nvgpr, accum, nsgpr=96):
    return f""".p2align 6
.amdhsa_kernel {name}
  .amdhsa_next_free_vgpr {nvgpr}
  .amdhsa_next_free_sgpr {nsgpr}
  .amdhsa_accum_offset {accum}
  .amdhsa_group_segment_fixed_size 0
  .amdhsa_kernarg_size 112
  .amdhsa_user_sgpr_count 2
  .amdhsa_user_sgpr_kernarg_segment_ptr 1
  .amdhsa_system_sgpr_workgroup_id_x 1
.end_amdhsa_kernel
"""
def build(kernels):
    s = HEADER
    for k in kernels:
        s += f"; @launch kernel={k[0]} grid=({k[2]},1,1) block=({k[3]},1,1) lds={k[4]}\n"
    s += '.amdgcn_target "amdgcn-amd-amdhsa--gfx950"\n.text\n'
    for k in kernels: s += kernel_text(k[0], k[1])
    s += '.section .rodata,"a"\n'
    for k in kernels: s += desc(k[0], k[5], k[6])
    return s

if __name__ == '__main__':
    ap = argparse.ArgumentParser()
    ap.add_argument('-o', default='test.s')
    ap.add_argument('--only', default='')
    ap.add_argument('--hflags', default='')
    ap.add_argument('--stamps', action='store_true')
    ap.add_argument('--norot', action='store_true')
    ap.add_argument('--pst', action='store_true')
    a = ap.parse_args()
    ks = []
    only = a.only.split(',') if a.only else ['k0','k1','k2','k3']
    if 'k0' in only: ks.append(('k0_kernel', gen_k0.gen_k0(), 256, 256, 16384, 160, 160))
    if 'k1' in only: ks.append(('k1_kernel', gen_k1.gen_k1(hflags=a.hflags, stamps=a.stamps, rot=not a.norot, pst=a.pst), 256, 256, 163840, 512, 256))
    if 'k2' in only: ks.append(('k2_kernel', gen_k2.gen_k2(stamps=a.stamps), 256, 256, 163840, 512, 256))
    if 'k3' in only: ks.append(('k3_kernel', gen_k3.gen_k3(), 256, 576, 9216, 64, 64))
    open(a.o, 'w').write(build(ks))
```

```python
from asmlib import *
from sched2 import *
from layout_f import *

SC = "sc1"

def gen_f(stamps=False, rot=True, QSP=10, D=4, NB=5, D2=4, NB2=6, PACE=4.4, NBF=16, SPIN=20000, verbose=False, fHS=SC, fWS=SC, fHL=SC, fUL=SC, FHLG=210, JBF=22, GHE=60, GHL=150, LDL=6, SEGV=1, W2=0, EPACE=3, FLG=430, RCV=50):
    VX0 = 0; ACC = 32; WF = 192; TMP = 212; ADR = 220; AS0 = 232; XR = 236
    vX0 = 240; vX1 = 241; vW = 242; vS = 243; vH = 244; vT0 = 245; vT1 = 246; vST = 247; vL = 248
    pK, pV, pSK, pSSM, pD, pW2, pGW, pOUT, pDBG = 6, 8, 10, 12, 14, 22, 24, 26, 28
    sX, sW, sWS, sT, sU = S(32, 4), S(36, 4), S(40, 4), S(44, 4), S(48, 4)
    sWv, sQ, sRot, sM0, sM0S, sM0X = 's52', 's53', 's54', 's55', 's56', 's57'
    WI = ['0', 's58', 's59', 's60']
    XJ = ['0'] + [f's{60+j}' for j in range(1, 8)]
    HS = 68
    sNL, sNonce = 's76', 's77'
    sJM, sJM2 = 's[78:79]', 's[80:81]'
    tL = 's82'
    tJ = ['s83', 's84', 's85']
    sCC = 's[86:87]'
    GSEQ = ['s61', 's62', 's63', 's64', 's65', 's66', 's67', 's4', 's5']
    TT = ['s16', 's17', 's18', 's19', 's20', 's21', 's30']; sTB = 's31'
    sWq, sWcur, sHb, sHcur, sW1k = 's88', 's89', 's90', 's91', 's92'
    SEND = ['s93', 's94', 's95']; sSend8 = 's96'
    sScr, sDv, sMask, sYb, sFH = 's97', 's98', 's99', 's100', 's101'

    def xreg(s, rt):
        if s < 4: return V(VX0 + s * 8 + rt * 4, 4)
        return A((s - 4) * 8 + rt * 4, 4)
    hreg = xreg
    def acc(s, rt): return ACC + s * 32 + rt * 16
    def mksrd(srd, ptr, nbytes):
        lo = int(srd[2:srd.index(':')])
        return [salu('s_mov_b64', S(lo, 2), S(ptr, 2)), salu('s_mov_b32', f's{lo+2}', nbytes)]
    def smov64(d, s): return Inst(f"s_mov_b64 {d}, {s}", 'salu', rd=[s], wr=[d])

    def build(three):
        tagp = 'T' if three else 'D'
        slow = []
        nst = [0]
        def stamp(i):
            if not stamps: return []
            return [raw('s_memtime s[86:87]', 'smem', wr=['s[86:87]']), raw('s_waitcnt lgkmcnt(0)', 'drain_lg'),
                    Inst(f"v_writelane_b32 v{vST}, s86, {i}", 'valu', rd=['s86', V(vST)], wr=[V(vST)])]
        def spin_tail(sl, bk):
            return [raw(f's_cbranch_vccz {bk}', 'branch'), salu('s_sub_u32', 's3', 's3', 1), raw(f's_cbranch_scc0 {sl}', 'branch'),
                    salu('s_mov_b32', 's3', 0), raw(f's_branch {bk}', 'branch')]
        def poll(name, mkload, regs, common):
            lab = name if common else name + tagp
            def cmps(need):
                r = []
                for j, rg in enumerate(regs):
                    if j == 0:
                        i = valu('v_cmp_ne_u32', 'vcc', sNonce, V(rg))
                        if need: i.need(vm=[('poll', name)])
                        r.append(i)
                    else:
                        r.append(valu('v_cmp_ne_u32', sCC, sNonce, V(rg)))
                        r.append(Inst(f"s_or_b64 vcc, vcc, {sCC}", 'salu', rd=['vcc', sCC], wr=['vcc', 'scc']))
                return r
            pi = {'J1': 16, 'J2': 18, 'HE': 20, 'HL': 22, 'Y': 24}[name]
            chk = stamp(pi) + cmps(True) + [raw(f's_cbranch_vccnz SLOW_{lab}', 'branch'), label(f'BACK_{lab}')] + stamp(pi + 1)
            if not (common and three):
                sl = [label(f'SLOW_{lab}'), raw('s_sleep 4'), mkload(), raw('s_waitcnt vmcnt(0)', 'drain_vm')] + cmps(False)
                sl += spin_tail(f'SLOW_{lab}', f'BACK_{lab}')
                slow.extend(pad_hazards(sl))
            return mkload(), chk

        P = []; e = P.append
        e(salu('s_cmp_ge_u32', 's2', 256))
        e(raw('s_cbranch_scc1 KF_END', 'branch'))
        e(raw('s_load_dwordx16 s[4:19], s[0:1], 0', 'smem', wr=['s[4:19]']))
        e(raw('s_load_dwordx8 s[20:27], s[0:1], 64', 'smem', wr=['s[20:27]']))
        e(raw('s_load_dwordx4 s[28:31], s[0:1], 96', 'smem', wr=['s[28:31]']))
        e(valu('v_lshrrev_b32', V(vT0), 6, 'v0'))
        e(valu('v_and_b32', V(vL), 63, 'v0'))
        tx, tidx, tmt, ti, tl1, tls, tcs, trg, tw1, ta, tb, tr9 = [f's{n}' for n in range(88, 100)]
        e(salu('s_and_b32', tx, 's2', 7))
        e(salu('s_mov_b32', 's3', SPIN))
        e(valu('v_readfirstlane_b32', sWv, V(vT0)))
        e(salu('s_lshr_b32', tidx, 's2', 3))
        e(salu('s_and_b32', tmt, tx, 1))
        e(salu('s_lshl_b32', tmt, tmt, 2))
        e(salu('s_and_b32', ta, tidx, 3))
        e(salu('s_add_u32', tmt, tmt, ta))
        e(salu('s_lshr_b32', sQ, tx, 1))
        e(salu('s_lshr_b32', ti, tidx, 2))
        e(salu('s_mul_i32', ta, sQ, 18))
        e(salu('s_lshl_b32', tl1, ti, 1))
        e(salu('s_add_u32', tl1, tl1, ta))
        e(salu('s_lshr_b32', tls, ti, 2))
        e(salu('s_add_u32', tls, tls, ta))
        e(salu('s_add_u32', tls, tls, 16))
        e(salu('s_and_b32', tcs, ti, 3))
        if rot:
            e(salu('s_add_u32', sRot, ti, tidx))
            e(salu('s_and_b32', sRot, sRot, 3))
            e(salu('s_lshl_b32', sRot, sRot, 1))
        else:
            e(salu('s_mov_b32', sRot, 0))
        e(salu('s_mul_i32', tr9, sRot, 589824))
        e(salu('s_lshr_b32', trg, sWv, 1))
        e(salu('s_and_b32', tw1, sWv, 1))
        e(valu('v_lshrrev_b32', V(TMP), 3, V(vL)))
        e(salu('s_lshl_b32', 's100', tw1, 5))
        e(valu('v_add_u32', V(vT0), 's100', V(TMP)))
        e(salu('s_movk_i32', 's101', 9216))
        e(valu('v_mul_lo_u32', V(vW), V(vT0), 's101'))
        e(valu('v_bfe_u32', V(vT0), V(vL), 1, 2))
        e(valu('v_bfe_u32', V(vT1), V(vL), 4, 1))
        e(salu('s_lshl_b32', ta, trg, 1))
        e(valu('v_add_u32', V(vT1), ta, V(vT1)))
        e(valu('v_xor_b32', V(vT0), V(vT0), V(vT1)))
        e(valu('v_lshl_add_u32', V(vW), V(vT0), 5, V(vW)))
        e(valu('v_and_b32', V(TMP + 1), 1, V(vL)))
        e(valu('v_lshl_add_u32', V(vW), V(TMP + 1), 4, V(vW)))
        e(salu('s_lshl_b32', ta, tl1, 7))
        e(salu('s_add_u32', ta, ta, tr9))
        e(valu('v_add_u32', V(vW), ta, V(vW)))
        e(salu('s_lshl_b32', ta, tmt, 8))
        e(salu('s_lshl_b32', tb, sWv, 6))
        e(salu('s_add_u32', ta, ta, tb))
        e(valu('v_add_u32', V(vT0), ta, V(TMP)))
        e(salu('s_movk_i32', tb, 1152))
        e(valu('v_mul_lo_u32', V(vX0), V(vT0), tb))
        e(salu('s_lshl_b32', tb, sRot, 7))
        e(valu('v_add_u32', V(vX0), tb, V(vX0)))
        e(valu('v_lshrrev_b32', V(vT0), 4, V(vL)))
        e(valu('v_and_b32', V(vT1), 7, V(vL)))
        e(valu('v_xor_b32', V(vT0), V(vT0), V(vT1)))
        e(valu('v_xor_b32', V(vT1), 4, V(vT0)))
        e(valu('v_lshl_add_u32', V(vX1), V(vT1), 4, V(vX0)))
        e(valu('v_lshl_add_u32', V(vX0), V(vT0), 4, V(vX0)))
        e(salu('s_lshl_b32', sM0, trg, 13))
        e(salu('s_lshl_b32', ta, tw1, 12))
        e(salu('s_add_u32', sM0, sM0, ta))
        e(salu('s_lshr_b32', sM0S, sM0, 2))
        e(salu('s_lshl_b32', sM0X, sWv, 13))
        for j in range(1, 8): e(salu('s_mov_b32', XJ[j], j * 9216 - (j & 3) * 1024))
        for j in range(1, 4): e(salu('s_mov_b32', WI[j], j * 72704))
        e(salu('s_mov_b32', 's34', 2048 * 1152))
        e(salu('s_mov_b32', 's35', 0x20000))
        e(salu('s_mov_b32', 's38', 576 * 9216))
        e(salu('s_mov_b32', 's39', 0x20000))
        e(salu('s_mov_b32', 's42', WS_END if not stamps else 128 << 20))
        e(salu('s_mov_b32', 's43', 0x20000))
        e(salu('s_mov_b32', 's47', 0x20000))
        e(salu('s_mov_b32', 's51', 0x20000))
        e(salu('s_mov_b32', 'm0', sM0))
        e(raw('s_waitcnt lgkmcnt(0)', 'drain_lg'))
        e(salu('s_cmp_eq_u32', trg, 0))
        e(salu('s_cselect_b32', 's36', 's18', 's20'))
        e(salu('s_cselect_b32', 's37', 's19', 's21'))
        e(smov64('s[32:33]', 's[4:5]'))
        e(smov64('s[40:41]', 's[30:31]'))

        def slotQ1(t): return t % 4
        Q2SLOT = [6, 7, 1, 8, 9, 4, 5, 2, 3]
        def spos(t): return t if t < 4 else 32 + (t - 4)
        def step(vreg, t, stride, extra=0, vreg2=None):
            r = []
            wr = (9 - t) % 9
            if wr in (0, 2, 4, 6):
                r.append([salu('s_cmp_eq_u32', sRot, wr), salu('s_mov_b32', tL, stride + extra),
                          salu('s_cselect_b32', tL, hex((-8 * stride + extra) & 0xffffffff), tL)])
                src = tL
            else:
                src = stride + extra
            r.append(valu('v_add_u32', V(vreg), src, V(vreg)))
            if vreg2 is not None: r.append(valu('v_add_u32', V(vreg2), src, V(vreg2)))
            return r
        def wdma(ph, t, first=False):
            r = []
            slot = slotQ1(t) if ph == 'Q1' else Q2SLOT[t]
            if not first:
                r += step(vW, t, 589824, 128 if (ph == 'Q2' and t == 0) else 0)
                r.append(salu('s_add_u32', 'm0', sM0, slot * 16384))
            for i in range(4): r.append(bload_lds(V(vW), sW, WI[i], off=i * 1024, tag=('w', ph, t)))
            return r
        def xdma(t):
            r = []
            if t > 0: r += step(vX0, t, 128, 0, vX1)
            for j in range(8):
                if j % 4 == 0: r.append(salu('s_add_u32', 'm0', sM0X, 65536 + (t % 2) * 32768 + (j >> 2) * 4096))
                ins = bload_lds(V(vX0 + (j & 1)), sX, XJ[j], off=(j & 3) * 1024, tag=('xd', t, j >> 2))
                if j == 0 and t >= 2: ins.need(lg=[('xr', t - 2)])
                r.append(ins)
            return r
        def xread(t):
            r = []
            for rt in range(2):
                for s in range(4):
                    ins = dsread('ds_read_b128', xreg(4 * t + s, rt), V(XR + s), off=(t % 2) * 32768 + rt * 4096, tag=('xr', t))
                    if s == 0: ins.need(vm=[('xd', t, rt)])
                    r.append(ins)
            return r
        def sdma(t):
            r = []
            if t > 0: r += step(vS, t, 589824)
            r.append(salu('s_add_u32', 'm0', sM0S, spos(t) * 4096))
            r.append(bload_lds(V(vS), sW, '0', tag=('s', t)))
            return r
        def flat(lst):
            o = []
            for i in lst:
                if isinstance(i, list): o += i
                else: o.append(i)
            return o
        P += stamp(0)
        P += flat(wdma('Q1', 0, first=True))
        P += flat(xdma(0))
        e(valu('v_lshrrev_b32', V(vT0), 1, V(vL)))
        e(salu('s_lshl_b32', ta, trg, 2))
        e(valu('v_xor_b32', V(vT0), ta, V(vT0)))
        e(valu('v_add_u32', V(vT0), 's100', V(vT0)))
        e(valu('v_mul_lo_u32', V(vS), V(vT0), 's101'))
        e(valu('v_lshl_add_u32', V(vS), V(TMP + 1), 4, V(vS)))
        e(salu('s_lshl_b32', ta, tls, 7))
        e(salu('s_lshl_b32', tb, tcs, 5))
        e(salu('s_add_u32', ta, ta, tb))
        e(salu('s_add_u32', ta, ta, tr9))
        e(valu('v_add_u32', V(vS), ta, V(vS)))
        P += flat(wdma('Q1', 1))
        P += flat(xdma(1))
        e(salu('s_or_b32', ta, 's2', sWv))
        e(salu('s_cmp_lg_u32', ta, 0))
        e(raw('s_cbranch_scc1 KF_NONONCE', 'branch'))
        e(raw('s_memrealtime s[86:87]', 'smem', wr=['s[86:87]']))
        e(valu('v_mov_b32', V(vT0), 0))
        e(raw('s_waitcnt lgkmcnt(0)', 'drain_lg'))
        e(salu('s_or_b32', 's86', 's86', 1))
        e(valu('v_mov_b32', V(vT1), 's86'))
        e(smov64('exec', '1'))
        e(raw(f'global_store_dword v{vT0}, v{vT1}, s[{pDBG}:{pDBG+1}] sc1', 'other'))
        e(smov64('exec', '-1'))
        e(label('KF_NONONCE'))
        t_regl, t_r, t_base, t_sw = TMP + 2, TMP + 3, TMP + 4, TMP + 5
        T6, T7 = TMP + 6, TMP + 7
        vC1 = TMP + 1
        e(valu('v_bfe_u32', V(t_regl), V(vL), 1, 1))
        e(valu('v_bfe_u32', V(t_r), V(vL), 2, 2))
        e(valu('v_lshrrev_b32', V(T7), 5, V(vL)))
        e(valu('v_lshl_add_u32', V(vT0), V(T7), 3, V(t_r)))
        e(valu('v_bfe_u32', V(vT1), V(vL), 4, 1))
        e(valu('v_lshlrev_b32', V(vT1), 4, V(vT1)))
        e(valu('v_lshl_add_u32', V(vT1), V(vC1), 3, V(vT1)))
        e(valu('v_lshl_add_u32', V(t_base), V(vT0), 7, V(vT1)))
        e(valu('v_lshl_add_u32', V(t_base), V(t_regl), 13, V(t_base)))
        e(valu('v_lshrrev_b32', V(t_sw), 1, V(t_r)))
        e(valu('v_lshl_add_u32', V(t_sw), V(t_regl), 1, V(t_sw)))
        for cc in range(4):
            e(valu('v_xor_b32', V(T6), cc, V(t_sw)))
            e(valu('v_lshl_add_u32', V(ADR + cc), V(T6), 5, V(t_base)))
            e(valu('v_add_u32', V(ADR + 4 + cc), 65536, V(ADR + cc)))
            e(valu('v_add_u32', V(ADR + 8 + cc), 131072, V(ADR + cc)))
        e(valu('v_lshlrev_b32', V(t_base), 2, V(t_regl)))
        e(valu('v_lshl_add_u32', V(t_sw), V(t_regl), 11, V(vT1)))
        e(valu('v_xor_b32', V(T6), V(vT0), V(t_base)))
        e(valu('v_lshl_add_u32', V(AS0), V(T6), 5, V(t_sw)))
        e(valu('v_xor_b32', V(T6), 4, V(T6)))
        e(valu('v_lshl_add_u32', V(AS0 + 1), V(T6), 5, V(t_sw)))
        e(valu('v_add_u32', V(AS0 + 2), 131072, V(AS0)))
        e(valu('v_add_u32', V(AS0 + 3), 131072, V(AS0 + 1)))
        e(valu('v_lshlrev_b32', V(vH), 4, V(vL)))
        e(valu('v_and_b32', V(t_base), 31, V(vL)))
        e(valu('v_lshlrev_b32', V(t_base), 7, V(t_base)))
        e(salu('s_add_u32', ta, sM0X, 65536))
        e(valu('v_add_u32', V(t_base), ta, V(t_base)))
        e(valu('v_bfe_u32', V(t_sw), V(vL), 1, 3))
        e(valu('v_xor_b32', V(t_sw), V(t_sw), V(T7)))
        for s in range(4):
            e(valu('v_xor_b32', V(T6), 2 * s, V(t_sw)))
            e(valu('v_lshl_add_u32', V(XR + s), V(T6), 4, V(t_base)))
        e(salu('s_lshl_b32', ta, tmt, 3))
        e(salu('s_lshl_b32', tb, sWv, 1))
        e(salu('s_add_u32', ta, ta, tb))
        e(salu('s_mul_i32', ta, ta, 288))
        e(salu('s_mul_i32', tb, sQ, 72))
        e(salu('s_add_u32', ta, ta, tb))
        e(salu('s_mul_i32', tb, ti, 6))
        e(salu('s_add_u32', f's{HS}', ta, tb))
        e(salu('s_add_u32', f's{HS+2}', f's{HS}', 4))
        e(salu('s_lshl_b32', tb, ti, 1))
        e(salu('s_add_u32', tb, tb, 48))
        e(salu('s_add_u32', f's{HS+4}', ta, tb))
        e(salu('s_add_u32', tb, ti, 64))
        e(salu('s_add_u32', f's{HS+6}', ta, tb))
        for k in range(0, 8, 2):
            e(salu('s_lshl_b32', f's{HS+k}', f's{HS+k}', 10))
            e(salu('s_add_u32', f's{HS+k+1}', f's{HS+k}', 288 * 1024))
        e(salu('s_lshl_b32', ta, tmt, 2))
        e(salu('s_add_u32', ta, ta, sQ))
        e(salu('s_lshl_b32', ta, ta, 2))
        e(salu('s_add_u32', ta, ta, sWv))
        e(salu('s_lshl_b32', ta, ta, 7))
        e(salu('s_lshl_b32', tb, ti, 2))
        e(salu('s_add_u32', ta, ta, tb))
        e(salu('s_add_u32', sFH, ta, WS_FHE))
        e(salu('s_mov_b32', sNL, '0xbfb8aa3b'))
        e(salu('s_mov_b32', sMask, '0xffff0000'))

        frags = []
        for s in range(36):
            for cc in range(4): frags.append(('Q1', s, cc, cc))
        QSET = [4, 0, 1, 2]
        for cc in range(4):
            for s in range(36): frags.append(('Q2', s, cc, QSET[cc]))
        for s in range(36): frags.append(('S', s, 0, 3))
        NF = len(frags)
        def fread(f):
            ph, s, cc, st = frags[f]
            b = WF + 4 * (f % NB)
            r = []
            for t in range(2):
                if ph == 'S':
                    sp = spos(s >> 2)
                    a = V(AS0 + t + (2 if sp >= 32 else 0)); off = (sp & 31) * 4096 + (16 * (s & 3)) * 32
                else:
                    slot = slotQ1(s >> 2) if ph == 'Q1' else Q2SLOT[s >> 2]
                    a = V(ADR + 4 * (slot >> 2) + cc); off = (slot & 3) * 16384 + (16 * (s & 3) + 4 * t) * 128
                r.append(dsread('ds_read_b64_tr_b16', V(b + 2 * t, 2), a, off=off, tag=('f', f)))
            return r
        mf = []
        for f, (ph, s, cc, st) in enumerate(frags):
            b = WF + 4 * (f % NB)
            for rt in range(2):
                a = V(acc(st, rt), 16)
                m = mfma32(a, V(b, 4), xreg(s, rt), a if s != 0 else '0')
                if rt == 0: m.need(lg=[('f', f)])
                if ph == 'Q1' and cc == 0 and rt == 0 and (s & 3) == 0: m.need(lg=[('xr', s >> 2)])
                mf.append(m)
        def epi(st, soff_base, off, k):
            r = []
            for rt in range(2):
                a = acc(st, rt)
                for half in range(2):
                    g = [a + 8 * half + i for i in range(4)]
                    u = [a + 8 * half + 4 + i for i in range(4)]
                    T = [TMP + 4 * half + i for i in range(4)]
                    for i in range(4): r.append(valu('v_mul_f32', V(T[i]), sNL, V(g[i])))
                    for i in range(4): r.append(valu('v_exp_f32', V(T[i]), V(T[i])))
                    for i in range(4): r.append(valu('v_mul_f32', V(g[i]), V(g[i]), V(u[i])))
                    for i in range(4): r.append(valu('v_add_f32', V(T[i]), '1.0', V(T[i])))
                    for i in range(4): r.append(valu('v_rcp_f32', V(T[i]), V(T[i])))
                    for i in range(4): r.append(valu('v_mul_f32', V(g[i]), V(g[i]), V(T[i])))
                    for i in range(2): r.append(valu('v_cvt_pk_bf16_f32', V(a + 4 + 2 * half + i), V(g[2 * i]), V(g[2 * i + 1])))
                r.append(bstore(V(a + 4, 4), V(vH), sWS, f's{soff_base + rt}', off=off, tag=('h', k), flags=fHS))
            return r
        P.append(barrier().need(vm=[('w', 'Q1', 0)]))
        for f in range(D): P += fread(f)
        P += xread(0)

        sF = Stream('frag', 0); sL = Stream('load', 2); sE = Stream('epi', 3); sJ = Stream('job', 4)
        bar_gap = {}
        def first_frag_of(ph, stage):
            for f, fr in enumerate(frags):
                if fr[0] == ph and fr[1] == 4 * stage and fr[2] == 0: return f
        bars = {}
        for t in range(1, 9): bars[first_frag_of('Q1', t)] = [('Q1', t), [('w', 'Q1', t)], [('xr', t)]]
        bars[first_frag_of('Q1', 8)][2].append('kvr')
        Q2G = {0: (0, 1), 2: (2, 3, 4), 5: (5, 6, 7), 8: (8,)}
        for t, g in Q2G.items(): bars[first_frag_of('Q2', t)] = [('Q2', t), [('w', 'Q2', k) for k in g], []]
        bars[144 + 36 + JBF] = [('J', 0), ['jst'], []]
        bars[144 + 3 * 36 + 4 * 6] = [('C3', 0), [], []]
        SGROUP = {0: (0, 1, 2, 3), 4: (4, 5, 6, 7, 8)}
        for t, g in SGROUP.items(): bars[first_frag_of('S', t)] = [('S', t), [('s', k) for k in g], []]
        XRG = 12
        pend = {}
        for t in range(1, 9):
            for j, ins in enumerate(xread(t)): pend[32 * (t - 1) + XRG + j] = ins
        for f in range(D, NF):
            g0 = 2 * (f - D)
            if f in bars:
                key, tags, ltags = bars[f]
                sF.add(barrier().need(vm=tags, lg=ltags), g0 - 1, g0 - 1)
                bar_gap[key] = g0 - 1
            r = fread(f)
            for k in range(2):
                sF.add(r[k], g0 + k, g0 + k)
                if g0 + k in pend: sF.add(pend.pop(g0 + k), g0 + k, g0 + k)
        assert not pend

        J0 = 160
        vKR, vKS, vO4 = 249, 250, 251
        ja, jb, jc = tJ
        vW2R, vW2 = 252, [253, 254]
        sD = ['s88', 's89']; sJM2 = 's[90:91]'; sStg = 's92'; jd = 's93'
        w2a = []; a_ = w2a.append
        a_(salu('s_mul_i32', sStg, sWv, 9216))
        a_(salu('s_add_u32', sStg, sStg, 131072))
        a_(valu('v_lshrrev_b32', V(vT1), 3, V(vL)))
        a_(valu('v_mul_u32_u24', V(vT1), 1152, V(vT1)))
        a_(valu('v_and_b32', V(vT0), 7, V(vL)))
        a_(valu('v_lshl_add_u32', V(vT1), V(vT0), 4, V(vT1)))
        w2b = []; a_ = w2b.append
        a_(valu('v_lshrrev_b32', V(vW2R), 5, V(vL)))
        a_(valu('v_lshlrev_b32', V(vW2R), 4, V(vW2R)))
        a_(valu('v_bfe_u32', V(vT0), V(vL), 4, 1))
        a_(valu('v_lshl_add_u32', V(vW2R), V(vT0), 2, V(vW2R)))
        a_(valu('v_bfe_u32', V(vT0), V(vL), 2, 2))
        a_(valu('v_add_u32', V(vW2R), V(vW2R), V(vT0)))
        a_(valu('v_lshlrev_b32', V(vW2R), 7, V(vW2R)))
        a_(valu('v_and_b32', V(vT0), 3, V(vL)))
        a_(valu('v_lshl_add_u32', V(vW2R), V(vT0), 3, V(vW2R)))
        a_(valu('v_add_u32', V(vW2R), sStg, V(vW2R)))
        def w2_addr(rnd):
            r = []; b_ = r.append
            d = sD[rnd]
            if rnd == 0:
                b_(salu('s_lshl_b32', ja, 's2', 2))
                b_(salu('s_add_u32', ja, ja, sWv))
            else:
                b_(salu('s_mul_i32', ja, 's2', 3))
                b_(salu('s_add_u32', ja, ja, sWv))
                b_([salu('s_cmp_lt_u32', ja, 272), salu('s_cselect_b32', 's90', -1, 0)])
                b_([salu('s_cmp_lt_u32', sWv, 3), salu('s_cselect_b32', 's90', 's90', 0)])
                b_(salu('s_mov_b32', 's91', 's90'))
                b_(salu('s_add_u32', ja, ja, 1024))
            b_(salu('s_mul_i32', jb, ja, 7282))
            b_(salu('s_lshr_b32', jb, jb, 16))
            b_(salu('s_mul_i32', jc, jb, 9))
            b_(salu('s_sub_u32', ja, ja, jc))
            b_(salu('s_mul_i32', jc, jb, 32 * 1152))
            b_(salu('s_lshl_b32', d, ja, 7))
            b_(salu('s_add_u32', jc, jc, d))
            b_(valu('v_add_u32', V(vW2[rnd]), jc, V(vT1)))
            b_(salu('s_mul_i32', jc, jb, 57))
            b_(salu('s_lshr_b32', jc, jc, 11))
            b_(salu('s_mul_i32', jc, jc, 36))
            b_(salu('s_sub_u32', jb, jb, jc))
            b_(salu('s_lshr_b32', d, jb, 2))
            b_(salu('s_and_b32', jd, jb, 3))
            b_([salu('s_cmp_eq_u32', jd, 3), salu('s_cselect_b32', 's86', 1, 3), salu('s_cselect_b32', jd, 24, jd), salu('s_mul_i32', d, d, 's86')])
            b_(salu('s_add_u32', d, d, jd))
            b_([salu('s_cmp_lt_u32', jb, 32), salu('s_cselect_b32', d, d, jb)])
            b_(salu('s_add_u32', d, d, jc))
            b_(salu('s_mul_i32', d, d, 9))
            b_(salu('s_add_u32', d, d, ja))
            b_(salu('s_lshl_b32', d, d, 12))
            b_(salu('s_add_u32', d, d, WS_W2T))
            return r
        def masked(ins, mask=sJM):
            return [smov64('exec', mask)] + (ins if isinstance(ins, list) else [ins]) + [smov64('exec', '-1')]
        w2d = mksrd(sU, pW2, 4608 * 1152)
        for rnd in range(2):
            w2d.append(salu('s_add_u32', 'm0', sStg, 4096 * rnd))
            for j in range(4):
                ins = bload_lds(V(vW2[rnd]), sU, XJ[j], off=j * 1024, tag='w2d')
                w2d.append(masked(ins, sJM2) if rnd else ins)
        w2o = []
        def w2reg(rnd, jj): return J0 + 16 * (1 - rnd) + 4 * jj
        for rnd in range(2):
            for jj in range(4):
                for t in range(2): w2o.append(dsread('ds_read_b64_tr_b16', V(w2reg(rnd, jj) + 2 * t, 2), V(vW2R), off=rnd * 4096 + t * 1024 + jj * 32, tag=('w2r', rnd)))
        w2o[0].need(vm=['w2d'])
        for rnd in range(2):
            for jj in range(4):
                ins = bstore(V(w2reg(rnd, jj), 4), V(vH), sWS, sD[rnd], off=jj * 1024, tag='jst', flags=fWS).need(lg=[('w2r', rnd)])
                w2o.append(masked(ins, sJM2) if rnd else ins)
        sJ.spread(w2a + w2_addr(0) + w2_addr(1), 2, 26, 30)
        pre = []; a_ = pre.append
        a_(salu('s_lshl_b32', ja, 's2', 2))
        a_(salu('s_add_u32', ja, ja, sWv))
        a_(valu('v_and_b32', V(TMP + 5), 31, V(vL)))
        a_(valu('v_mul_u32_u24', V(TMP + 5), 12, V(TMP + 5)))
        a_(valu('v_lshrrev_b32', V(vO4), 5, V(vL)))
        a_(valu('v_mul_u32_u24', V(TMP + 4), 1152, V(vO4)))
        a_(valu('v_add_u32', V(TMP + 4), V(TMP + 4), V(TMP + 5)))
        a_(salu('s_mul_i32', jb, ja, 2304))
        a_(valu('v_lshlrev_b32', V(vO4), 2, V(vO4)))
        a_(salu('s_lshl_b32', jc, ja, 3))
        a_(valu('v_add_u32', V(vO4), jc, V(vO4)))
        pre += mksrd(sT, pGW, 1152)
        def bl3(d, voff, srd, soff, off, tag):
            return Inst(f"buffer_load_dwordx3 {V(d, 3)}, {voff}, {srd}, {soff} offen" + (f" offset:{off}" if off else ""), 'vmem', rd=[voff, srd, soff], wr=[V(d, 3)], tag=tag)
        for j in range(3):
            a_(bl3(J0 + 8 * j, V(TMP + 4), sX, jb, 384 * j, 'gx'))
            a_(bl3(J0 + 8 * j + 4, V(TMP + 5), sT, '0', 384 * j, 'gx'))
        a_(valu('v_mov_b32', V(TMP + 4), 0))
        def nonce_load():
            return Inst(f'global_load_dword v{TMP+5}, v{TMP+4}, s[{pDBG}:{pDBG+1}] sc1', 'vmem', rd=[V(TMP + 4)], wr=[V(TMP + 5)], tag='nonce')
        a_(salu('s_lshl_b32', ja, 's2', 1))
        a_(salu('s_add_u32', ja, ja, sWv))
        a_(salu('s_add_u32', jb, 's2', 512))
        a_([salu('s_cmp_lt_u32', sWv, 2), salu('s_cselect_b32', ja, ja, jb)])
        a_(salu('s_lshl_b32', jb, sWv, 6))
        a_([salu('s_cmp_lt_u32', ja, 576), salu('s_cselect_b32', jc, -1, 0)])
        a_([salu('s_cmp_lt_u32', sWv, 3), salu('s_cselect_b32', 's78', jc, 0), salu('s_cselect_b32', jb, sWv, 0)])
        a_(salu('s_mov_b32', 's79', 's78'))
        a_(salu('s_mul_i32', jb, jb, 9216))
        a_(salu('s_add_u32', 's80', jb, 131072))
        a_(salu('s_mul_i32', jb, ja, 7282))
        a_(salu('s_lshr_b32', jb, jb, 16))
        a_(salu('s_mul_i32', jc, jb, 9))
        a_(salu('s_sub_u32', jc, ja, jc))
        a_(valu('v_lshrrev_b32', V(TMP), 3, V(vL)))
        a_(valu('v_mul_u32_u24', V(TMP), 1152, V(TMP)))
        a_(valu('v_and_b32', V(TMP + 1), 7, V(vL)))
        a_(valu('v_lshl_add_u32', V(TMP), V(TMP + 1), 4, V(TMP)))
        a_(salu('s_mul_i32', ja, jb, 32 * 1152))
        a_(salu('s_lshl_b32', 's81', jc, 7))
        a_(salu('s_add_u32', ja, ja, 's81'))
        a_(valu('v_add_u32', V(TMP), ja, V(TMP)))
        a_(valu('v_subrev_u32', V(TMP + 1), 4608, V(TMP)))
        a_(valu('v_add_u32', V(TMP + 2), 4608, V(TMP)))
        a_(valu('v_and_b32', V(TMP + 6), 15, V(vL)))
        a_(valu('v_lshlrev_b32', V(TMP + 3), 3, V(TMP + 6)))
        a_(salu('s_lshl_b32', ja, jc, 9))
        a_(valu('v_add_u32', V(TMP + 3), ja, V(TMP + 3)))
        a_(valu('v_lshrrev_b32', V(TMP + 7), 4, V(vL)))
        a_(valu('v_lshlrev_b32', V(vKS), 12, V(TMP + 6)))
        a_(valu('v_lshlrev_b32', V(TMP + 6), 4, V(TMP + 7)))
        a_(valu('v_sub_u32', V(vKS), V(vKS), V(TMP + 6)))
        a_(salu('s_lshl_b32', ja, jc, 18))
        a_(salu('s_lshl_b32', jb, jb, 6))
        a_(salu('s_sub_u32', ja, ja, jb))
        a_(salu('s_add_u32', ja, ja, WS_UR + 4080))
        a_(valu('v_add_u32', V(vKS), ja, V(vKS)))
        a_(valu('v_bfe_u32', V(TMP + 6), V(vL), 2, 2))
        a_(valu('v_lshl_add_u32', V(TMP + 6), V(TMP + 7), 3, V(TMP + 6)))
        a_(valu('v_lshlrev_b32', V(vKR), 7, V(TMP + 6)))
        a_(valu('v_and_b32', V(TMP + 6), 3, V(vL)))
        a_(valu('v_lshl_add_u32', V(vKR), V(TMP + 6), 3, V(vKR)))
        a_(valu('v_add_u32', V(vKR), 's80', V(vKR)))
        sJ.spread(pre + w2b, 28, 80, 100)
        SKW = J0 + 24
        kvd = []
        kvd += mksrd(sU, pK, 2048 * 1152)
        kvd.append(salu('s_mov_b32', 'm0', 's80'))
        kvd.append(masked(bload_lds(V(TMP + 1), sU, '0', tag='kvd').need(lg=[('w2r', 1)])))
        kvd.append(salu('s_add_u32', 'm0', 's80', 1024))
        for j in range(4): kvd.append(masked(bload_lds(V(TMP + 2), sU, XJ[j], off=j * 1024, tag='kvd')))
        kvd.append(smov64('s[48:49]', S(pV, 2)))
        kvd.append(salu('s_add_u32', 'm0', 's80', 5120))
        for j in range(4): kvd.append(masked(bload_lds(V(TMP), sU, XJ[j], off=j * 1024, tag='kvd')))
        kvd += mksrd(sU, pSK, 576 * 8)
        for it in range(4): kvd.append(bload(V(SKW + 2 * it, 2), V(TMP + 3), sU, '0', off=128 * it, width=2, tag='kvd'))
        kvd.append(nonce_load())
        gc = []; a_ = gc.append
        for j in range(3):
            for t in range(3):
                ins = valu('v_dot2_f32_bf16', V(J0 + 3 + 8 * t), V(J0 + 8 * j + t), V(J0 + 8 * j + 4 + t), 0 if j == 0 else V(J0 + 3 + 8 * t))
                if j == 0 and t == 0: ins.need(vm=['gx'])
                a_(ins)
        g0_, g1_ = J0 + 3, J0 + 7
        a_(valu('v_add_f32', V(g0_), V(g0_), V(J0 + 11)))
        a_(valu('v_add_f32', V(g0_), V(g0_), V(J0 + 19)))
        for sh in (8, 4, 2, 1):
            a_(Inst(f"v_add_f32_dpp v{g0_}, v{g0_}, v{g0_} row_ror:{sh} row_mask:0xf bank_mask:0xf", 'valu', rd=[V(g0_)], wr=[V(g0_)]))
        a_(valu('v_mov_b32', V(g1_), V(g0_)))
        a_(valu('v_permlane16_swap_b32', V(g0_), V(g1_)))
        a_(valu('v_add_f32', V(g0_), V(g0_), V(g1_)))
        a_(valu('v_cvt_pk_bf16_f32', V(g0_), V(g0_), V(g0_)))
        a_(valu('v_lshlrev_b32', V(g0_), 16, V(g0_)))
        a_(valu('v_mul_f32', V(g0_), sNL, V(g0_)))
        a_(valu('v_exp_f32', V(g0_), V(g0_)))
        a_(valu('v_add_f32', V(g0_), '1.0', V(g0_)))
        a_(valu('v_rcp_f32', V(g0_), V(g0_)))
        a_(valu('v_cvt_pk_bf16_f32', V(g0_), V(g0_), V(g0_)))
        a_(valu('v_lshlrev_b32', V(g0_), 16, V(g0_)))
        a_(salu('s_mov_b32', ja, WS_G))
        a_([salu('s_mov_b32', 'exec_lo', 1), salu('s_mov_b32', 'exec_hi', 1), bstore(V(g0_), V(vO4), sWS, ja, width=1, tag='jst', flags=SC), smov64('exec', '-1')])
        sJ.spread(gc, 84, 100)
        sJ.spread(w2o, 102, 122, 126)
        nchk = [valu('v_cmp_eq_u32', 'vcc', 0, V(TMP + 5)).need(vm=['nonce']), raw('s_cbranch_vccnz SLOW_N', 'branch'), label('BACK_N'),
                valu('v_readfirstlane_b32', sNonce, V(TMP + 5))]
        if not three:
            slow.extend(pad_hazards([label('SLOW_N'), raw('s_sleep 4'), nonce_load(), raw('s_waitcnt vmcnt(0)', 'drain_vm'),
                                     valu('v_cmp_eq_u32', 'vcc', 0, V(TMP + 5))] + spin_tail('SLOW_N', 'BACK_N')))
        O = [J0 + 20, J0 + 21, J0 + 22, J0 + 23, vO4]
        AC = TMP
        def kv_reads(it):
            b = J0 + 10 * (it & 1)
            r = [dsread('ds_read_b64_tr_b16', V(b + 2 * k, 2), V(vKR), off=512 * k + 32 * it, tag='kvr') for k in range(3)]
            r += [dsread('ds_read_b64_tr_b16', V(b + 6 + 2 * k, 2), V(vKR), off=5120 + 512 * k + 32 * it, tag='kvr') for k in range(2)]
            for x in r: x.tag = 'kvr'
            return r
        kc = []; a_ = kc.append
        a_(nchk)
        r0 = kv_reads(0); r0[0].need(vm=['kvd']); kc += r0
        for it in range(4):
            b = J0 + 10 * (it & 1)
            Dk = [b + k for k in range(6)]; Vd = [b + 6 + k for k in range(4)]
            w10, w32 = SKW + 2 * it, SKW + 2 * it + 1
            a_(valu('v_alignbit_b32', V(w10), V(w10), V(w10), 16))
            a_(valu('v_alignbit_b32', V(w32), V(w32), V(w32), 16))
            for m in range(5):
                ins = valu('v_alignbit_b32', V(O[m]), V(Dk[m + 1]), V(Dk[m]), 16)
                if m == 0: ins.need(lg=['kvr'])
                a_(ins)
            if it < 3: kc += kv_reads(it + 1)
            for t in range(8):
                u = t >> 1
                a_(valu('v_dot2_f32_bf16', V(AC + t), V(O[u + 1] if t % 2 == 0 else Dk[u + 2]), V(w10), 0))
            for t in range(8):
                u = t >> 1
                a_(valu('v_dot2_f32_bf16', V(AC + t), V(O[u] if t % 2 == 0 else Dk[u + 1]), V(w32), V(AC + t)))
            for hlf in range(2):
                for t in range(4 * hlf, 4 * hlf + 4):
                    if t & 1: a_(valu('v_and_b32', V(Dk[t & 3]), sMask, V(Vd[t >> 1])))
                    else: a_(valu('v_lshlrev_b32', V(Dk[t & 3]), 16, V(Vd[t >> 1])))
                for t in range(4 * hlf, 4 * hlf + 4):
                    a_(valu('v_mul_f32', V(AC + t), V(AC + t), V(Dk[t & 3])))
            for k in range(4): a_(valu('v_cvt_pk_bf16_f32', V(O[k]), V(AC + 7 - 2 * k), V(AC + 6 - 2 * k)))
            a_(salu('s_mov_b32', ja, it * 65536))
            a_(masked(bstore(V(O[0], 4), V(vKS), sWS, ja, tag='jst', flags=SC)))
        g7 = bar_gap[('Q1', 8)]
        idx_last_read = max(i for i, x in enumerate(kc) if not isinstance(x, list) and x.kind == 'ds')
        sJ.spread(kc[:idx_last_read + 1], 186, g7 - 6, g7 - 2)
        sJ.spread(kc[idx_last_read + 1:], g7 - 5, g7 + 24, 284)
        def flagstore(soff_ins, soff, tagneed=None, off=0, vz=None, vd=None, w0=False):
            r = list(soff_ins)
            r.append(valu('v_mov_b32', V(vd), sNonce))
            i = Inst(f"buffer_store_dword v{vd}, off, {sWS}, {soff}" + (f" offset:{off}" if off else "") + " sc1", 'vstore', rd=[V(vd), sWS, soff], tag='flag')
            if tagneed: r[-1].need(vm=tagneed)
            if w0: r += [salu('s_cmp_eq_u32', sWv, 0), Inst("s_cselect_b64 exec, 1, 0", 'salu', rd=['scc'], wr=['exec'])]
            else: r.append(smov64('exec', '1'))
            r.append(i)
            r.append(smov64('exec', '-1'))
            return r
        fj1 = flagstore([salu('s_lshl_b32', ja, 's2', 7), salu('s_add_u32', ja, ja, WS_FJ1)], ja, vd=vKR, w0=True)

        for u in range(0, 7):
            lo = 0 if u == 0 else bar_gap[('Q1', u)] + 1
            lst = wdma('Q1', u + 2) + xdma(u + 2)
            if u in (1, 4):
                sL.spread(lst, lo, lo + 14)
                sL.spread(w2d if u == 1 else kvd, lo + 14, lo + 31)
                assert lo + 14 > (30 if u == 1 else 126)
            else: sL.spread(lst, lo, lo + (22 if u == 0 else 31))
        q2_after = [('Q1', 7), ('Q1', 7), ('Q1', 7), ('Q1', 8), ('Q1', 8), ('Q1', 8), ('Q1', 8), ('Q1', 8), ('Q2', 0)]
        cur = 0
        for t in range(9):
            lo2 = max(cur, bar_gap[q2_after[t]] + 1)
            sL.spread(wdma('Q2', t), lo2, lo2 + QSP, lo2 + QSP + 1)
            cur = lo2 + QSP
        FB = [236, 252]
        sa = []; a_ = sa.append
        a_(salu('s_and_b32', ja, 's2', 1))
        a_(salu('s_lshl_b32', ja, ja, 3))
        a_(salu('s_bfe_u32', jb, 's2', hex(3 | (3 << 16))))
        a_(salu('s_add_u32', ja, ja, jb))
        a_(salu('s_lshr_b32', jb, 's2', 6))
        a_(salu('s_lshl_b32', ja, ja, 2))
        a_(salu('s_add_u32', ja, ja, jb))
        for u in range(1, 4):
            a_(salu('s_add_u32', jb, sQ, u))
            a_(salu('s_and_b32', jb, jb, 3))
            a_(salu('s_lshl_b32', jc, ja, 2))
            a_(salu('s_add_u32', jb, jb, jc))
            a_(salu('s_lshl_b32', jb, jb, 2))
            a_(salu('s_add_u32', jb, jb, sWv))
            a_(salu('s_mul_i32', jb, jb, 6144))
            a_(salu('s_add_u32', SEND[u - 1], jb, WS_R + (u - 1) * 2048))
        a_(salu('s_lshl_b32', jb, ja, 2))
        a_(salu('s_add_u32', jb, jb, sWv))
        a_(salu('s_lshl_b32', jb, jb, 12))
        a_(salu('s_lshl_b32', jc, sQ, 10))
        a_(salu('s_add_u32', jb, jb, jc))
        a_(salu('s_add_u32', sSend8, jb, WS_R8))
        def send1(slot, reg, tag):
            if slot == 8: return bstore(reg, V(vH), sWS, sSend8, tag=tag, flags=SC)
            return bstore(reg, V(vH), sWS, SEND[(slot >> 1) - 1], off=(slot & 1) * 1024, tag=tag, flags=SC)
        for k in range(4): a_(valu('v_mov_b32', V(FB[1] + k), -1))
        sa += [send1(sl, V(FB[1], 4), 'jst') for sl in range(2, 9)]
        a_(salu('s_lshl_b32', ja, 's2', 2))
        a_(salu('s_add_u32', ja, ja, sWv))
        a_(salu('s_lshl_b32', jb, ja, 11))
        a_(salu('s_add_u32', jb, jb, WS_Y2))
        for k in range(2): a_(bstore(V(FB[1], 4), V(vH), sWS, jb, off=1024 * k, tag='jst', flags=SC))
        a_(salu('s_lshl_b32', jb, ja, 10))
        a_(salu('s_add_u32', jb, jb, WS_Y2 + 512 * 4096))
        a_([salu('s_cmp_lt_u32', 's2', 64), Inst("s_cselect_b64 exec, -1, 0", 'salu', rd=['scc'], wr=['exec']),
            bstore(V(FB[1], 4), V(vH), sWS, jb, tag='jst', flags=SC), smov64('exec', '-1')])
        gJ = bar_gap[('J', 0)]
        sJ.spread(sa, 286, gJ - 50, gJ - 44)
        sJ.add(fj1, gJ + 1, gJ + 3)
        lst = []
        for t in range(4): lst += sdma(t)
        assert cur > bar_gap[('Q2', 2)]
        sL.spread(lst, cur + 4, cur + 24)
        gC3 = bar_gap[('C3', 0)]
        assert gC3 >= 2 * (144 + 108 + 19) + 1
        lst = []
        for t in range(4, 9): lst += sdma(t)
        sL.spread(lst, gC3 + 1, gC3 + 16)
        g_S = 288; g_Q2 = [288 + 72 * c for c in range(5)]
        EP = [(0, HS, 0, g_Q2[1] - 2), (1, HS, 1024, g_Q2[2] - 2), (2, HS, 2048, g_Q2[3] - 2), (3, HS, 3072, g_Q2[4] - 2),
              (4, HS + 2, 0, 515), (0, HS + 2, 1024, 600), (1, HS + 4, 0, 630), (2, HS + 4, 1024, 668)]
        for k, (st, so, off, dl) in enumerate(EP):
            sE.spread(epi(st, so, off, k), g_S + 3 + (k * 356) // 8, g_S + 3 + ((k + 1) * 356) // 8, dl)

        C0 = 648
        NCU = 6 if three else 4
        G2 = C0 + 36 * NCU
        CACC = 160; CACC2 = 128; ET = 192
        GACC = 32; WF2 = 104; RECV = 128
        vA = [236, 237, 238, 239]; vB = 240; vE = 241; vY = 249; vHl = 250; vR1 = 251; vR2 = 252; vRW = 253; vRR = 254; vP = 255
        def bufA(b, k1): return V(32 + 4 * k1, 4) if b == 0 else A(192 + 4 * k1, 4)
        def bufB(b, dl): return V(64 + 4 * dl, 4) if b == 0 else A(224 + 4 * dl, 4)
        def breg(b, base, n): return V(base + 32, n) if b == 0 else A(base + 192, n)
        SCR0 = 98304; SCRW = 12928; SCR3 = 16384
        cs = []; a_ = cs.append
        a_(salu('s_lshl_b32', WI[1], sWv, 13))
        a_(salu('s_add_u32', WI[1], WI[1], WS_FJ1))
        a_(valu('v_lshlrev_b32', V(CACC + 17), 7, V(vL)))
        l1, c1 = poll('J1', lambda: bload(V(CACC + 16), V(CACC + 17), sWS, WI[1], width=1, tag=('poll', 'J1'), flags=SC), [CACC + 16], True)
        a_(l1)
        kS0 = next(i for i, it in enumerate(sF.items) if it.at == bar_gap[('S', 0)] and not isinstance(it.ins, list) and it.ins.kind == 'barrier')
        sF.items[kS0].ins = c1 + [sF.items[kS0].ins]
        a_(salu('s_lshr_b32', ja, sWv, 1))
        a_(salu('s_mul_i32', sScr, ja, SCRW))
        a_(salu('s_add_u32', sScr, sScr, SCR0))
        a_(salu('s_lshl_b32', jb, 's2', 1))
        a_(salu('s_add_u32', jb, jb, ja))
        a_(salu('s_and_b32', jc, sWv, 1))
        a_(salu('s_lshl_b32', 's78', jb, 12))
        a_(salu('s_lshl_b32', 's79', jc, 11))
        a_(salu('s_add_u32', 's78', 's78', 's79'))
        a_(salu('s_add_u32', sYb, 's78', WS_Y2))
        a_(salu('s_lshl_b32', ja, 's2', 2))
        a_(raw(f's_load_dword {sDv}, s[{pD}:{pD+1}], {ja}', 'smem', rd=[ja], wr=[sDv]))
        a_(salu('s_lshl_b32', 's80', jc, 8))
        a_(salu('s_add_u32', 's80', 's80', sScr))
        t0, t1, t2, t3 = CACC + 20, CACC + 21, CACC + 22, CACC + 23
        a_(valu('v_lshrrev_b32', V(t0), 4, V(vL)))
        a_(valu('v_and_b32', V(t1), 15, V(vL)))
        a_(valu('v_lshlrev_b32', V(vHl), 9, V(t0)))
        a_(valu('v_lshl_add_u32', V(vHl), V(t1), 4, V(vHl)))
        a_(valu('v_lshl_add_u32', V(t2), V(t0), 3, V(t1)))
        a_(valu('v_add_u32', V(t2), 1, V(t2)))
        a_(valu('v_and_b32', V(t3), 1, V(t2)))
        a_(valu('v_lshrrev_b32', V(t2), 1, V(t2)))
        a_(valu('v_mul_u32_u24', V(t3), 4160, V(t3)))
        a_(valu('v_lshl_add_u32', V(t3), V(t2), 2, V(t3)))
        a_(valu('v_add_u32', V(vA[0]), 's80', V(t3)))
        for b in range(1, 4): a_(valu('v_add_u32', V(vA[b]), 1024 * b, V(vA[0])))
        a_(valu('v_lshlrev_b32', V(t2), 5, V(t1)))
        a_(valu('v_lshlrev_b32', V(t3), 4, V(t0)))
        a_(valu('v_sub_u32', V(t3), V(t3), V(t2)))
        a_(salu('s_add_u32', ja, 's80', 8320 + 480))
        a_(valu('v_add_u32', V(vB), ja, V(t3)))
        a_(valu('v_lshl_add_u32', V(vY), V(t0), 3, V(t2)))
        a_(salu('s_add_u32', ja, sScr, 8320 + 504))
        a_(salu('s_sub_u32', ja, ja, 's79'))
        a_(valu('v_sub_u32', V(vE), ja, V(vY)))
        a_(valu('v_add_u32', V(vR1), 65536, V(vH)))
        a_(valu('v_add_u32', V(vR2), 131072, V(vH)))
        a_(salu('s_lshl_b32', ja, sWv, 12))
        a_(valu('v_add_u32', V(vRW), ja, V(vH)))
        a_(valu('v_xor_b32', V(vRR), 4096, V(vRW)))
        a_(valu('v_and_b32', V(vP), 7, V(vL)))
        a_(valu('v_lshlrev_b32', V(vP), 2, V(vP)))
        sJ.spread(cs, 517, gC3 + 12, gC3 + 15)
        def conv_loads(nk, sOff, sBase, sPart, R0, R1, chk):
            r = []
            r += mksrd(sU, pSSM, 576 * 4096)
            for i in range(nk):
                r.append(bload(V(R0 + 4 * i, 4), V(vH), sU, sOff, off=i * 1024, tag='cr'))
                r.append(bload(V(R1 + 4 * i, 4), V(vH), sU, sOff, off=i * 1024 + 4, tag='cr'))
            r.append(salu('s_add_u32', tL, sBase, sPart))
            r.append(salu('s_add_u32', 'm0', tL, 32))
            for i in range(nk): r.append(bload_lds(V(vH), sU, sOff, off=i * 1024, tag='cin'))
            if chk: r.append(chk)
            r.append(salu('s_add_u32', 'm0', tL, 8320))
            r.append(salu('s_add_u32', tL, sOff, WS_UR))
            for i in range(nk): r.append(bload_lds(V(vH), sWS, tL, off=i * 1024, tag='cin', flags=SC))
            return r
        def conv_prep(nk, sBase, sPart, R0, R1, T):
            r = []; b_ = r.append
            b_(valu('v_mov_b32', V(T), 0))
            b_(valu('v_mov_b32', V(T + 1), 0))
            b_(valu('v_lshrrev_b32', V(T + 2), 1, V(vH)))
            b_(salu('s_add_u32', ja, sBase, 8320 + 4096))
            b_(valu('v_add_u32', V(T + 2), ja, V(T + 2)))
            b_(dswrite('ds_write_b64', V(T + 2), V(T, 2), tag='cw'))
            b_([salu('s_cmp_eq_u32', sPart, 0), salu('s_cselect_b32', ja, 0, 4128)])
            b_(salu('s_add_u32', ja, ja, sBase))
            b_(valu('v_add_u32', V(T + 2), ja, V(vP)))
            b_(dswrite('ds_write_b32', V(T + 2), V(T), tag='cw'))
            b_(salu('s_add_u32', ja, sBase, sPart))
            b_(salu('s_add_u32', ja, ja, 4160 + 32))
            b_(valu('v_add_u32', V(T + 3), ja, V(vH)))
            for i in range(4 * nk):
                ins = valu('v_alignbit_b32', V(R1 + i), V(R1 + i), V(R0 + i), 16)
                if i == 0: ins.need(vm=['cr'])
                b_(ins)
            b_(valu('v_readfirstlane_b32', jb, V(R0)))
            for i in range(nk): b_(dswrite('ds_write_b128', V(T + 3), V(R1 + 4 * i, 4), off=i * 1024, tag='cw'))
            b_(salu('s_lshl_b32', jb, jb, 16))
            b_(valu('v_mov_b32', V(T + 1), jb))
            b_([valu('v_cmp_eq_u32', 'vcc', 28, V(vP)), valu('v_cndmask_b32', V(T + 1), V(T), V(T + 1), 'vcc')])
            b_(dswrite('ds_write_b32', V(T + 2), V(T + 1), off=4160, tag='cw'))
            return r
        cl_ = conv_loads(2, 's78', sScr, 's79', CACC, CACC + 8, None)
        sL.spread(cl_[:-4], gC3 + 17, gC3 + 30, gC3 + 34)
        gU = max(gC3 + 31, bar_gap[('S', 0)] + 1)
        sL.spread(cl_[-4:], gU, gU + 6, gU + 8)
        gCB = 634
        sJ.spread(conv_prep(2, sScr, 's79', CACC, CACC + 8, CACC + 24), gCB - 34, gCB - 4, gCB - 2)
        fhe = flagstore([], sFH, tagneed=[('h', 5)], vd=CACC + 28)
        ts = []; a_ = ts.append
        a_(salu('s_and_b32', ja, 's2', 1))
        a_(salu('s_lshl_b32', ja, ja, 3))
        a_(salu('s_bfe_u32', jb, 's2', hex(3 | (3 << 16))))
        a_(salu('s_add_u32', ja, ja, jb))
        a_(salu('s_lshr_b32', jb, 's2', 6))
        a_(salu('s_add_u32', jc, ja, jb))
        a_(salu('s_and_b32', jc, jc, 3))
        a_(salu('s_mul_i32', sM0, jc, 3))
        a_(salu('s_add_u32', sM0, sM0, 1))
        a_(salu('s_lshr_b32', GSEQ[0], sM0, 1))
        for n in range(1, 6):
            a_(salu('s_add_u32', GSEQ[n], GSEQ[n - 1], 1))
            a_([salu('s_cmp_eq_u32', GSEQ[n], 6), salu('s_cselect_b32', GSEQ[n], 0, GSEQ[n])])
        a_([salu('s_cmp_eq_u32', jc, 3), salu('s_cselect_b32', jc, 0, jc)])
        a_(salu('s_add_u32', GSEQ[6], jc, 6))
        for n in range(7, 9):
            a_(salu('s_add_u32', GSEQ[n], GSEQ[n - 1], 1))
            a_([salu('s_cmp_eq_u32', GSEQ[n], 9), salu('s_cselect_b32', GSEQ[n], 6, GSEQ[n])])
        a_(salu('s_mul_i32', jc, sQ, 1296))
        a_(salu('s_mul_i32', jb, jb, 9))
        a_(salu('s_add_u32', jc, jc, jb))
        a_(salu('s_lshl_b32', sWq, jc, 10))
        a_(salu('s_lshl_b32', jb, ja, 2))
        a_(salu('s_add_u32', jb, jb, sWv))
        a_(salu('s_mul_i32', jb, jb, 288))
        a_(salu('s_mul_i32', jc, sQ, 72))
        a_(salu('s_add_u32', jb, jb, jc))
        a_(salu('s_lshl_b32', sHb, jb, 10))
        GW = TT + [sTB, sWcur]; sW4k = sHcur
        for n in range(9):
            a_(salu('s_mul_i32', GW[n], GSEQ[n], 147456))
            a_(salu('s_add_u32', GW[n], GW[n], sWq))
            a_(salu('s_lshl_b32', GSEQ[n], GSEQ[n], 13))
            a_(salu('s_add_u32', GSEQ[n], GSEQ[n], sHb))
        a_(salu('s_lshr_b32', jb, ja, 1))
        a_(salu('s_lshl_b32', jb, jb, 2))
        a_(salu('s_add_u32', jb, jb, sQ))
        a_(salu('s_lshl_b32', jb, jb, 2))
        a_(salu('s_and_b32', jc, ja, 1))
        a_(salu('s_lshl_b32', jc, jc, 1))
        a_(salu('s_add_u32', jb, jb, jc))
        a_(salu('s_lshr_b32', jc, sWv, 1))
        a_(salu('s_add_u32', jb, jb, jc))
        a_(salu('s_lshl_b32', jb, jb, 7))
        a_(salu('s_add_u32', sM0X, jb, WS_FHE))
        a_(salu('s_lshl_b32', sW1k, sWv, 10))
        a_(salu('s_lshl_b32', sW4k, sWv, 12))
        vU = [ADR + 1 + j for j in range(5)]; vHl2 = ADR + 6
        SOFF = [0, 1024, 0, 1024, 2048, 3072, 0, 1024, 2048]
        ts2 = []; a_ = ts2.append
        a_(salu('s_mul_i32', ja, sWv, 36864))
        a_(salu('s_add_u32', ja, ja, WS_W2T))
        for j in range(4):
            a_(salu('s_add_u32', jb, sQ, j))
            a_(salu('s_and_b32', jb, jb, 3))
            a_(salu('s_lshl_b32', jb, jb, 11))
            a_(salu('s_add_u32', jb, jb, ja))
            if SOFF[2 * j]: a_(salu('s_sub_u32', jb, jb, SOFF[2 * j]))
            a_(valu('v_add_u32', V(vU[j]), jb, V(vH)))
        a_(salu('s_add_u32', jb, ja, 8192 - SOFF[8]))
        a_(valu('v_add_u32', V(vU[4]), jb, V(vH)))
        a_(valu('v_add_u32', V(vHl2), 4096, V(vHl)))
        items_after = [it for it in sJ.items if it.at >= gCB - 34]
        sJ.items = [it for it in sJ.items if it.at < gCB - 34]
        sJ.spread(ts, gC3 + 16, 584, 586)
        sJ.spread(ts2, 585, gCB - 37, gCB - 35)
        sJ.items += items_after
        sM = Stream('misc', 5)
        sM.add(fhe, 612, 624)
        dv = [raw('s_waitcnt lgkmcnt(0)', 'drain_lg'), salu('s_lshl_b32', ja, sDv, 16), salu('s_and_b32', sDv, sDv, sMask),
              salu('s_cmp_lt_u32', sWv, 2), salu('s_cselect_b32', sDv, ja, sDv)]
        cb = dv + [barrier().need(vm=['cin'], lg=['cw'])]
        k = next(i for i, it in enumerate(sF.items) if it.at >= gCB)
        sF.items.insert(k, Item(cb, gCB, gCB))
        def creads(un):
            b = un & 1
            k0 = un if un < 4 else un - 4
            def ar(k1):
                o = (k1 & 1) * 128 + 16 * k0
                return [dsread('ds_read2_b32', breg(b, 4 * k1 + 2 * t, 2), V(vA[k1 >> 1]), offtext=f"offset0:{o+2*t} offset1:{o+2*t+1}", tag=('c', un)) for t in range(2)]
            def br(dl):
                return [dsread('ds_read_b128', bufB(b, dl), V(vB), off=512 * (7 - dl) + 64 * k0, tag=('c', un))]
            r = ar(0)
            for dl in range(8): r += br(dl)
            for k1 in range(1, 8): r += ar(k1)
            return r
        sC = Stream('conv', 1)
        sC.spread(creads(0), gCB + 1, 646, 646)
        mf.append(None); mf.pop()
        for un in range(NCU):
            b = un & 1
            ca = CACC if un < 4 else CACC2
            first = True
            for k1 in range(8):
                for c in range(k1, 8):
                    a = V(ca + 4 * c, 4)
                    m = mfma16(a, bufA(b, k1), bufB(b, c - k1), '0' if (un in (0, 4) and k1 == 0) else a)
                    if first: m.need(lg=[('c', un)]); first = False
                    mf.append(m)
        sE.spread(epi(3, HS + 6, 0, 8), C0 + 2, C0 + 100, C0 + 138)
        fhl = flagstore([], sFH, tagneed=[('h', 8)], vd=vW, off=64)
        gPS = C0 + 4
        ps = barrier()
        if three:
            R0, R1, T3 = WF, WF + 4, WF + 8
            c3 = [salu('s_add_u32', 's78', 's2', 512), salu('s_lshl_b32', 's78', 's78', 12), salu('s_add_u32', 's78', 's78', sW1k),
                  salu('s_mov_b32', 's79', SCR3)]
            sL.spread(c3 + conv_loads(1, 's78', 's79', sW1k, R0, R1, None), C0 + 1, C0 + 16, C0 + 20)
            sJ.spread(conv_prep(1, 's79', sW1k, R0, R1, T3), C0 + 70, C0 + 100, C0 + 104)
        for un in range(1, NCU):
            g = C0 + 36 * (un - 1)
            lst = creads(un)
            if un == 1: sC.add(ps, gPS, gPS)
            if un == 4:
                dl_ = [salu('s_lshl_b32', 's86', sWv, 7), salu('s_add_u32', 's86', 's86', SCR3), salu('s_sub_u32', 's86', 's86', 's80')]
                dl_ += [valu('v_add_u32', V(x), 's86', V(x)) for x in vA + [vB]]
                lst = [dl_, barrier().need(vm=['cin'], lg=['cw'])] + lst
            sC.spread(lst, g + (gPS - C0 + 1 if un == 1 else 1), g + 31, g + 33)
        def swaps(lab, cond, pairs):
            return [Inst('v_nop', 'valu', rd=[V(x) for p_ in pairs for x in p_]), cond, raw(f's_cbranch_scc0 {lab}{tagp}', 'branch')] + [Inst(f"v_swap_b32 v{x}, v{y}", 'valu', rd=[V(x), V(y)], wr=[V(x), V(y)]) for x, y in pairs] + [label(f'{lab}{tagp}')]
        def cfin(ca, nblk, nsrc, rdaddr, rdoff, tagr):
            r = []
            RC = ET; KV = ET + 16; T = ET + 24
            for t in range(nblk): r.append(dsread('ds_read_b64', V(KV + 2 * t, 2), V(vE), off=512 * (7 - t), tag=('e', tagr)))
            per = 4 // nblk if nsrc > 1 else 1
            seq = [(t, u) for u in range(nsrc) for t in range(nblk)]
            for base in range(0, len(seq), 4):
                grp = seq[base:base + 4]
                for z, (t, u) in enumerate(grp): r.append(dsread('ds_read_b128', V(RC + 4 * z, 4), V(rdaddr), off=rdoff(t, u), tag=('rr', tagr, base)))
                for z, (t, u) in enumerate(grp):
                    for k in range(4):
                        ins = valu('v_add_f32', V(ca + 4 * t + k), V(ca + 4 * t + k), V(RC + 4 * z + k))
                        if z == 0 and k == 0: ins.need(lg=[('rr', tagr, base)])
                        r.append(ins)
            for t in range(nblk):
                lo, hi = KV + 2 * t, KV + 2 * t + 1
                r.append(valu('v_and_b32', V(T), sMask, V(hi)))
                r.append(valu('v_lshlrev_b32', V(T + 1), 16, V(hi)))
                r.append(valu('v_and_b32', V(T + 2), sMask, V(lo)))
                r.append(valu('v_lshlrev_b32', V(T + 3), 16, V(lo)))
                for k in range(4): r.append(valu('v_fmac_f32', V(ca + 4 * t + k), sDv, V(T + k)))
                r.append(valu('v_cvt_pk_bf16_f32', V(lo), V(ca + 4 * t), V(ca + 4 * t + 1)))
                r.append(valu('v_cvt_pk_bf16_f32', V(hi), V(ca + 4 * t + 2), V(ca + 4 * t + 3)))
                r.append(bstore(V(lo, 2), V(vY), sWS, sYb, off=512 * t, width=2, tag='yst', flags=SC))
            return r
        E1 = C0 + 144
        e1 = [swaps('SW1', salu('s_bitcmp1_b32', sWv, 0), [(CACC + k, CACC + 16 + k) for k in range(16)])]
        e1 += [dswrite('ds_write_b128', V(vRW), V(CACC + 16 + 4 * t, 4), off=1024 * t, tag='rw1') for t in range(4)]
        sM.add(fhl, C0 + FHLG, C0 + FHLG + 4)
        sE.spread(e1, E1 + 3, E1 + 12, E1 + 14)
        xbars = []
        if SEGV == 1:
            segs = [[(gn, [2, 3, 4, 5]), (gn, [6, 7, 8])] for gn in range(6)]
            segs += [[(gn, sl) for gn in (6, 7, 8)] for sl in ([2, 3], [4, 5], [6, 7, 8])]
        elif SEGV == 0:
            segs = [[(gn, [2, 3, 4, 5]), (gn, [6, 7, 8])] for gn in range(9)]
        elif SEGV == 2:
            segs = [[(gn, [2, 3, 4, 5]), (gn, [6, 7, 8])] for gn in range(3)]
            segs += [[(gn, [2, 3, 4, 5]) for gn in (3, 4)], [(5, [2, 3, 4, 5]), (6, [2, 3]), (7, [2, 3])], [(8, [2, 3]), (6, [4, 5]), (7, [4, 5]), (8, [4, 5])]]
            segs += [[(gn, [6, 7, 8]) for gn in gg] for gg in ((3, 4), (5, 6), (7, 8))]
        segs += [[(gn, [0, 1]) for gn in gg] for gg in ((0, 1, 2), (3, 4, 5), (6, 7, 8))]
        blocks = [b for sg in segs for b in sg]
        fr2 = []; bf = []; bneed_vm = []; blk_seg = []; blk_last = []
        for si, sg in enumerate(segs):
            bf.append(len(fr2)); bneed_vm.append([])
            for (gn, sl) in sg:
                bi = len(blk_seg); blk_seg.append(si); bneed_vm[-1].append(('u', bi))
                for kw in range(4):
                    for c, s_ in enumerate(sl): fr2.append((4 * gn + kw, s_, bi, kw, c))
                blk_last.append(len(fr2) - 1)
        NF2 = 324
        assert len(fr2) == NF2
        def gacc(slot, mh): return V(GACC + 8 * slot + 4 * mh, 4)
        hneed = {}; sfirst = set(); slast = {}
        for f, (k, s_, bi, kw, c) in enumerate(fr2):
            for mh in range(2):
                a = gacc(s_, mh)
                m = mfma16(a, V(WF2 + 4 * (f % NB2), 4), hreg(k, mh), a if s_ in sfirst else '0')
                if mh == 0:
                    if W2 == 0: m.need(lg=[('g', f)])
                    elif f % 2 == 0: m.need(lg=[('g', min(f + 1, NF2 - 1))])
                    if k not in hneed: m.need(vm=[('hl', k)]); hneed[k] = G2 + 2 * f
                mf.append(m)
            sfirst.add(s_); slast[s_] = G2 + 2 * f + 1
        GEND = G2 + 648
        assert len(mf) == GEND
        bgap = [G2 + 2 * (f - D2) - 1 for f in bf]
        def bar_after(g):
            for i, x in enumerate(bgap):
                if x >= g: return i
            return None
        bneed_lg = [[] for f in bf]
        gR1 = E1 + 16
        fin1 = cfin(CACC, 4, 1, vRR, lambda t, u: 1024 * t, 1)
        page_free = {}
        gE0 = bar_gap[('S', 4)] + 2
        for pg in range(8, 24): page_free[pg] = gE0
        for pg in range(32, 40): page_free[pg] = gPS + 2
        if not three:
            for pg in range(4, 8): page_free[pg] = C0
            xbars.append((gR1, barrier().need(lg=['rw1'])))
            kd = max(i for i, x in enumerate(fin1) if x.kind == 'ds') + 1
            sE.spread(fin1[:kd], gR1 + 1, gR1 + 12, gR1 + 16)
            sE.spread(fin1[kd:], gR1 + 16, gR1 + 80, gR1 + 100)
            i1 = bar_after(gR1 + 20); bneed_lg[i1].append(('e', 1))
            for pg in range(24, 32): page_free[pg] = bgap[i1] + 1
        else:
            sC.items.insert(next(i for i, it in enumerate(sC.items) if it.at >= gR1), Item(barrier().need(lg=['rw1']), gR1, gR1))
            sE.spread(fin1, gR1 + 1, gR1 + 50, gR1 + 52)
            E2 = C0 + 216
            e2 = [swaps('SW2', salu('s_bitcmp1_b32', sWv, 1), [(CACC2 + k, CACC2 + 16 + k) for k in range(16)]),
                  swaps('SW3', salu('s_bitcmp1_b32', sWv, 0), [(CACC2 + k, CACC2 + 8 + k) for k in range(8)] + [(CACC2 + 16 + k, CACC2 + 24 + k) for k in range(8)])]
            e2 += [salu('s_add_u32', ja, 's2', 512), salu('s_lshr_b32', ja, ja, 1), salu('s_lshl_b32', ja, ja, 2),
                   raw(f's_load_dword {sDv}, s[{pD}:{pD+1}], {ja}', 'smem', rd=[ja], wr=[sDv]),
                   salu('s_add_u32', sYb, 's78', WS_Y2),
                   salu('s_sub_u32', ja, SCR3 + 8320 + 504, sW1k), valu('v_sub_u32', V(vE), ja, V(vY)),
                   salu('s_mul_i32', ja, sWv, 6144), salu('s_add_u32', ja, ja, SCR0), valu('v_add_u32', V(vRR), ja, V(vH))]
            bneed_lg[0].append(('e', 1))
            for u in range(1, 4):
                e2 += [salu('s_xor_b32', ja, sWv, u), salu('s_mul_i32', ja, ja, 6144), salu('s_add_u32', ja, ja, SCR0 + (u - 1) * 2048), valu('v_add_u32', V(vRW), ja, V(vH))]
                e2 += [dswrite('ds_write_b128', V(vRW), V(CACC2 + 8 * u + 4 * t, 4), off=1024 * t, tag='rw2') for t in range(2)]
            sE.spread(e2, E2 + 3, E2 + 30, E2 + 34)
            gR2 = E2 + 36
            dv2 = [raw('s_waitcnt lgkmcnt(0)', 'drain_lg'), salu('s_lshl_b32', ja, sDv, 16), salu('s_and_b32', sDv, sDv, sMask),
                   salu('s_bitcmp0_b32', 's2', 0), salu('s_cselect_b32', sDv, ja, sDv)]
            xbars.append((gR2, dv2 + [barrier().need(lg=['rw2'])]))
            fin2 = cfin(CACC2, 2, 3, vRR, lambda t, u: 2048 * u + 1024 * t, 2)
            kd = max(i for i, x in enumerate(fin2) if x.kind == 'ds') + 1
            sE.spread(fin2[:kd], gR2 + 1, gR2 + 30, gR2 + 34)
            sE.spread(fin2[kd:], gR2 + 34, gR2 + 70, gR2 + 90)
            i1 = bar_after(gR2 + 38); bneed_lg[i1] += [('e', 2), ('rr', 2, 4)]
            for pg in list(range(24, 32)) + [4, 5, 6, 7]: page_free[pg] = bgap[i1] + 1
        bcol = {}; bearly = {}
        pf = dict(page_free)
        for bi, (gn, sl) in enumerate(blocks):
            n = len(sl)
            best = min(((max(pf[p + j] for j in range(n)), p) for p in pf if (p & 3) + n <= 4 and (n != 2 or p % 2 == 0)))
            bearly[bi], bcol[bi] = best
            i = bar_after(G2 + 2 * blk_last[bi] + 1)
            for j in range(n): pf[bcol[bi] + j] = 10**9 if i is None else bgap[i] + 1
        def g2read(f):
            k, s_, bi, kw, c = fr2[f]
            addr = (bcol[bi] >> 2) * 16384 + kw * 4096 + ((bcol[bi] & 3) + c) * 1024
            return dsread('ds_read_b128', V(WF2 + 4 * (f % NB2), 4), V([vH, vR1, vR2][addr >> 16]), off=addr & 65535, tag=('g', f))
        sG = Stream('g2frag', 0)
        xb = sorted(xbars, key=lambda x: x[0])
        for f in range(NF2):
            g0 = G2 + 2 * (f - D2)
            while xb and xb[0][0] <= g0 - 1:
                sG.add(xb[0][1], xb[0][0], xb[0][0]); xb.pop(0)
            if f in bf:
                i = bf.index(f)
                sG.add(stamp(26 + i) + [barrier().need(vm=bneed_vm[i], lg=bneed_lg[i])], g0 - 1, g0 - 1)
            sG.add(g2read(f), g0, g0)
        assert not xb
        def udma(bi, c):
            gn, sl = blocks[bi]
            r = []
            if c == 0: r.append(salu('s_add_u32', 'm0', sW4k, (bcol[bi] >> 2) * 16384 + (bcol[bi] & 3) * 1024 - SOFF[sl[0]]))
            assert SOFF[sl[c]] == SOFF[sl[0]] + 1024 * c
            r.append(bload_lds(V(vU[sl[c] >> 1]), sWS, GW[gn], off=SOFF[sl[c]], tag=('u', bi), flags=fUL))
            return r
        def hld(k):
            return [bload(hreg(k, mh), V(vHl2 if k & 2 else vHl), sWS, GSEQ[k >> 2], off=(k & 1) * 2048 + mh * 256, tag=('hl', k), flags=fHL) for mh in range(2)]
        def ld_fh(off, name):
            def mk(): return bload(V(ADR), V(vP), sWS, sM0X, off=64 * off, width=1, tag=('poll', name), flags=SC)
            return mk
        lhe, che = poll('HE', ld_fh(0, 'HE'), [ADR], False)
        lhl, chl = poll('HL', ld_fh(1, 'HL'), [ADR], False)
        gHE = C0 + GHE
        gHL = G2 + GHL
        def plan_loads(fl):
            uq = [(bgap[blk_seg[bi]], bearly[bi], 'u', (bi, c)) for bi, (gn, sl) in enumerate(blocks) for c in range(len(sl))]
            hq = []
            for k in range(36):
                ea = gHE if k < 24 else gHL
                if k >= 28: ea = max(ea, G2 + 1)
                hq.append((hneed[k], ea, 'h', k))
            late = [it for it in sL.items if it.at >= C0]
            sL.items = [it for it in sL.items if it.at < C0]
            g = gE0
            while uq[0][1] <= gE0 and (g < C0 - 8 or uq[0][3][1] != 0):
                for ins in udma(*uq.pop(0)[3]): sL.add(ins, g, int(g) + 2)
                g += EPACE
            assert g < C0
            sL.items += late
            g = C0 + (22 if three else 1)
            did = set()
            slack = (10**9, None)
            while uq or hq or 'fl' not in did:
                if 'lhe' not in did and g >= gHE - 40: sL.add(lhe, g, int(g) + LDL); did.add('lhe'); g += 1
                if 'lhl' not in did and g >= gHL - 40 and 'che' in did:
                    sL.add(lhl, g, int(g) + LDL); did.add('lhl'); g += 1
                if 'fl' not in did and g >= G2 + FLG and (not uq or uq[0][3][1] == 0):
                    for j, x in enumerate(fl): sL.add(x, g + j, int(g) + j + LDL)
                    g += len(fl); did.add('fl')
                cand = [q_ for q_ in (uq, hq) if q_ and q_[0][1] <= g]
                if not cand:
                    g = g + 1; continue
                q_ = min(cand, key=lambda z: z[0][0])
                need, ea, kind, ix = q_.pop(0)
                if kind == 'h' and ix == 0: sL.add(che, g); did.add('che')
                if kind == 'h' and ix == 24: sL.add(chl, g)
                for ins in (udma(*ix) if kind == 'u' else hld(ix)):
                    sL.add(ins, g, min(need - 24, int(g) + LDL))
                    if ins.kind in ('vmem', 'vmem_lds'):
                        slack = min(slack, (need - g, (kind, ix)))
                        g += PACE
            if verbose: print(tagp, "load stream ends at G2+%d, min slack %s" % (g - G2, slack))
            return g
        GA = G2 + 504
        QR = ET; YR = ET + 10; GR = ET + 20; FT = CACC
        fs = []; a_ = fs.append
        vQ, vG, vY2, vYR = vA[0], vA[1], vA[2], vA[3]
        sQ0, sQ1, sQ8, sG0, sRc, sRc8 = f's{HS}', f's{HS+1}', f's{HS+2}', f's{HS+3}', f's{HS+4}', f's{HS+5}'
        sY0, sY8 = f's{HS+6}', f's{HS+7}'
        a_(valu('v_and_b32', V(vG), 15, V(vL)))
        a_(valu('v_mul_u32_u24', V(vQ), 1152, V(vG)))
        a_(valu('v_lshrrev_b32', V(vY2), 4, V(vL)))
        a_(valu('v_lshl_add_u32', V(vQ), V(vY2), 3, V(vQ)))
        a_(valu('v_lshlrev_b32', V(vG), 2, V(vG)))
        a_(valu('v_lshrrev_b32', V(vY2), 2, V(vL)))
        a_(valu('v_lshlrev_b32', V(vYR), 6, V(vY2)))
        a_(valu('v_lshlrev_b32', V(vY2), 12, V(vY2)))
        a_(valu('v_and_b32', V(vB), 3, V(vL)))
        a_(valu('v_lshl_add_u32', V(vY2), V(vB), 4, V(vY2)))
        a_(valu('v_lshl_add_u32', V(vYR), V(vB), 3, V(vYR)))
        a_(salu('s_lshl_b32', ja, sWv, 12))
        a_(valu('v_add_u32', V(vYR), ja, V(vYR)))
        a_(salu('s_and_b32', ja, 's2', 1))
        a_(salu('s_lshl_b32', ja, ja, 3))
        a_(salu('s_bfe_u32', jb, 's2', hex(3 | (3 << 16))))
        a_(salu('s_add_u32', ja, ja, jb))
        a_(salu('s_lshr_b32', jb, 's2', 6))
        a_(salu('s_lshl_b32', jc, ja, 2))
        a_(salu('s_add_u32', 's78', jc, jb))
        a_(salu('s_add_u32', ja, jc, sWv))
        a_(salu('s_lshl_b32', jc, 's78', 2))
        a_(salu('s_add_u32', 's79', jc, sQ))
        a_(salu('s_lshl_b32', 's79', 's79', 2))
        a_(salu('s_add_u32', 's79', 's79', sWv))
        a_(salu('s_mul_i32', 's79', 's79', 6144))
        a_(salu('s_add_u32', sRc, 's79', WS_R))
        a_(salu('s_add_u32', WI[1], sRc, 4096))
        a_(salu('s_add_u32', jc, jc, sWv))
        a_(salu('s_lshl_b32', jc, jc, 12))
        a_(salu('s_and_b32', 's78', sQ, 1))
        a_(salu('s_lshl_b32', 's79', 's78', 3))
        a_(salu('s_add_u32', jc, jc, 's79'))
        a_(salu('s_add_u32', sRc8, jc, WS_R8))
        a_(salu('s_mul_i32', jb, jb, 9))
        a_(salu('s_lshl_b32', jc, sQ, 1))
        a_(salu('s_add_u32', jc, jc, jb))
        a_(salu('s_add_u32', jb, jb, 8))
        a_(salu('s_mul_i32', 's79', ja, 32 * 1152))
        a_(salu('s_lshl_b32', sQ0, jc, 5))
        a_(salu('s_add_u32', sQ0, sQ0, 's79'))
        a_(salu('s_add_u32', sQ1, sQ0, 18432))
        a_(salu('s_lshl_b32', sQ8, jb, 5))
        a_(salu('s_add_u32', sQ8, sQ8, 's79'))
        a_(salu('s_mul_i32', 's79', 's78', 18432))
        a_(salu('s_add_u32', sQ8, sQ8, 's79'))
        a_(salu('s_lshl_b32', sG0, ja, 7))
        a_(salu('s_add_u32', sG0, sG0, WS_G))
        a_(salu('s_lshl_b32', ja, ja, 6))
        a_(salu('s_add_u32', ja, ja, WS_Y2))
        a_(salu('s_lshl_b32', sY0, jc, 16))
        a_(salu('s_add_u32', sY0, sY0, ja))
        a_(salu('s_lshl_b32', sY8, jb, 16))
        a_(salu('s_add_u32', sY8, sY8, ja))
        a_(salu('s_lshl_b32', 's79', 's78', 5))
        a_(salu('s_add_u32', sY8, sY8, 's79'))
        a_(salu('s_lshl_b32', 's79', 's78', 6))
        a_(salu('s_add_u32', 's79', 's79', sG0))
        fs += mksrd(sT, pOUT, 2048 * 1152)
        sJ.spread(fs, G2 + 330, G2 + 400, G2 + 410)
        fl = []; a_ = fl.append
        for tl in range(4):
            s, mh = tl >> 1, tl & 1
            a_(bload(V(QR + 2 * tl, 2), V(vQ), sX, sQ1 if mh else sQ0, off=32 * s, width=2, tag='fq'))
        a_(bload(V(QR + 8, 2), V(vQ), sX, sQ8, width=2, tag='fq'))
        for mh in range(2): a_(bload(V(GR + mh), V(vG), sWS, sG0, off=64 * mh, width=1, tag='fq', flags=SC))
        a_(bload(V(GR + 2), V(vG), sWS, 's79', width=1, tag='fq', flags=SC))
        def ydma(tmp):
            return [salu('s_lshl_b32', 'm0', sWv, 12), bload_lds(V(vY2), sWS, sY0, tag='fy', flags=SC),
                    salu('s_add_u32', tmp, sY0, 65536 - 1024), bload_lds(V(vY2), sWS, tmp, off=1024, tag='fy', flags=SC),
                    salu('s_sub_u32', tmp, sY8, 2048), bload_lds(V(vY2), sWS, tmp, off=2048, tag='fy', flags=SC)]
        fl += ydma(tL)
        def recv_loads(tag):
            r = []
            for t in range(6): r.append(bload(V(RECV + 4 * t, 4), V(vH), sWS, WI[1] if t >= 4 else sRc, off=1024 * (t & 3), tag=tag, flags=SC))
            for u in range(4): r.append(bload(V(RECV + 24 + 2 * u, 2), V(vH), sWS, sRc8, off=1024 * u, width=2, tag=tag, flags=SC))
            return r
        gLend = plan_loads(fl)
        sS = Stream('send', 1)
        gsl = 0
        for sl in sorted(range(2, 9), key=lambda x: slast[x]):
            b = GACC + 8 * sl
            lst = [valu('v_cvt_pk_bf16_f32', V(b + j), V(b + 2 * j), V(b + 2 * j + 1)) for j in range(4)] + [send1(sl, V(b, 4), 'snd')]
            gsl = max(gsl, slast[sl] + 2)
            sS.spread(lst, gsl, gsl + 5, gsl + 8)
            gsl += 5
        gPA = max(gsl + 6, int(gLend) + 2)
        rl = recv_loads('rc')
        sL.spread(rl[:4], max(gPA, GEND - RCV - 30), GEND - RCV - 20)
        sL.spread(rl[4:], max(gPA, GEND - RCV), GEND - RCV + 12)
        def yreads():
            yr = []
            for tl in range(4):
                s, mh = tl >> 1, tl & 1
                yr.append(dsread('ds_read_b64_tr_b16', V(YR + 2 * tl, 2), V(vYR), off=1024 * s + 32 * mh, tag='yr'))
            yr.append(dsread('ds_read_b64_tr_b16', V(YR + 8, 2), V(vYR), off=2048, tag='yr'))
            return yr
        YT = ET + 24
        def yfold():
            r = [valu('v_pk_max_u16', V(YT), V(YR), V(YR + 1)), valu('v_pk_max_u16', V(YT + 1), V(YR + 2), V(YR + 3))]
            for k in range(4, 10): r.append(valu('v_pk_max_u16', V(YT + (k & 1)), V(YT + (k & 1)), V(YR + k)))
            r.append(valu('v_pk_max_u16', V(YT), V(YT), V(YT + 1)))
            r.append(valu('v_lshlrev_b32', V(YT + 1), 16, V(YT)))
            r.append(valu('v_max_u32', V(YT), V(YT), V(YT + 1)))
            return r
        ycmp = lambda: valu('v_cmp_le_u32', 'vcc', sMask, V(YT))
        yr = yreads()
        yr[0].need(vm=['fy'])
        yf = yfold(); yf[0].need(lg=['yr'])
        yr += yf
        yr.append(stamp(24) + [ycmp(), raw(f's_cbranch_vccnz SLOW_Y{tagp}', 'branch'), label(f'BACK_Y{tagp}')] + stamp(25))
        slow.extend(pad_hazards([label(f'SLOW_Y{tagp}'), raw('s_sleep 4')] + ydma(jb) + [raw('s_waitcnt vmcnt(0)', 'drain_vm')] + yreads() +
                                [raw('s_waitcnt lgkmcnt(0)', 'drain_lg')] + yfold() + [ycmp()] + spin_tail(f'SLOW_Y{tagp}', f'BACK_Y{tagp}')))
        AF = GACC + 16
        pa = list(yr)
        for tl in range(5):
            gi = GR + (tl & 1 if tl < 4 else 2)
            for r_ in range(4):
                sq = V(QR + 2 * tl + (r_ >> 1)); sy = V(YR + 2 * tl + (r_ >> 1))
                d1 = V(AF + 4 * tl + r_); d2 = V(AF + 20 + r_)
                if r_ & 1: i1 = valu('v_and_b32', d1, sMask, sq); i2 = valu('v_and_b32', d2, sMask, sy)
                else: i1 = valu('v_lshlrev_b32', d1, 16, sq); i2 = valu('v_lshlrev_b32', d2, 16, sy)
                if tl == 0 and r_ == 0: i1.need(vm=['fq']); i2.need(lg=['yr'])
                pa += [i1, i2]
            for r_ in range(4): pa.append(valu('v_mul_f32', V(AF + 4 * tl + r_), V(AF + 4 * tl + r_), V(AF + 20 + r_)))
            for r_ in range(4): pa.append(valu('v_mul_f32', V(AF + 4 * tl + r_), V(AF + 4 * tl + r_), V(gi)))
        for k in range(3): pa.append(valu('v_sub_f32', V(GR + k), '1.0', V(GR + k)))
        sE.spread(pa, gPA, GEND - 4)

        log = []
        body = schedule(mf, [sF, sG, sC, sS, sL, sE, sJ, sM], log)
        if verbose:
            print(tagp, "overflow cycles total", sum(x[1] for x in log), "by region:", {k: sum(x[1] for x in log if lo <= x[0] < hi) for k, (lo, hi) in
                  {'Q1': (0, 288), 'Q2': (288, 576), 'S': (576, 648), 'conv': (648, G2), 'A': (G2, GA), 'B': (GA, GEND)}.items()})
        nb = []; n = 0
        marks = {0: 1, 288: 2, 576: 3, G2: 5, GA: 6}
        for j in range(1, 6): marks[G2 + 84 * j] = 9 + j
        for ins in body:
            if ins.kind == 'mfma':
                if n == C0:
                    nb += stamp(4)
                    nb.append(salu('s_cmp_lt_u32', 's2', 64))
                    nb.append(raw('s_cbranch_scc1 KF_THREE', 'branch'))
                    nb.append(comment('SPLIT'))
                elif n in marks: nb += stamp(marks[n])
                n += 1
            nb.append(ins)
        body = nb
        body += stamp(7)
        MX = AF + 24
        def sent(need):
            r = []
            i0 = valu('v_max3_u32', V(MX), V(RECV), V(RECV + 1), V(RECV + 2))
            if need: i0.need(vm=['rc'])
            r.append(i0)
            r.append(valu('v_max3_u32', V(MX + 1), V(RECV + 3), V(RECV + 4), V(RECV + 5)))
            for k in range(6, 32, 4):
                r.append(valu('v_max3_u32', V(MX), V(MX), V(RECV + k), V(RECV + k + 1)))
                if k + 3 < 32: r.append(valu('v_max3_u32', V(MX + 1), V(MX + 1), V(RECV + k + 2), V(RECV + k + 3)))
            r.append(valu('v_max_u32', V(MX), V(MX), V(MX + 1)))
            r.append(valu('v_cmp_eq_u32', 'vcc', -1, V(MX)))
            return r
        body += sent(True)
        body += [raw(f's_cbranch_vccnz SLOW_R{tagp}', 'branch'), label(f'BACK_R{tagp}')]
        slow.extend(pad_hazards([label(f'SLOW_R{tagp}'), raw('s_sleep 2')] + recv_loads('rc') + [raw('s_waitcnt vmcnt(0)', 'drain_vm')] + sent(False) +
                                spin_tail(f'SLOW_R{tagp}', f'BACK_R{tagp}')))
        body += stamp(8)
        UT = RECV + 32
        def unpk(d, src, r_):
            return valu('v_and_b32', V(d), sMask, V(src + (r_ >> 1))) if r_ & 1 else valu('v_lshlrev_b32', V(d), 16, V(src + (r_ >> 1)))
        for tl in [0, 1, 2, 3, 4]:
            s_, mh = tl >> 1, tl & 1
            if tl < 4:
                accb = GACC + 8 * s_ + 4 * mh
                src = [RECV + 8 * u + 4 * s_ + 2 * mh for u in range(3)]
            else:
                accb = UT + 12
                for r_ in range(4): body.append(unpk(accb + r_, RECV + 24, r_))
                src = [RECV + 24 + 2 * u for u in range(1, 4)]
            gi = GR + (mh if tl < 4 else 2)
            for u in range(3):
                for r_ in range(4): body.append(unpk(UT + 4 * u + r_, src[u], r_))
            for r_ in range(4): body.append(valu('v_add_f32', V(UT + r_), V(UT + r_), V(UT + 4 + r_)))
            for r_ in range(4): body.append(valu('v_add_f32', V(accb + r_), V(accb + r_), V(UT + 8 + r_)))
            for r_ in range(4): body.append(valu('v_add_f32', V(accb + r_), V(accb + r_), V(UT + r_)))
            for r_ in range(4): body.append(valu('v_fmac_f32', V(AF + 4 * tl + r_), V(accb + r_), V(gi)))
            body.append(valu('v_cvt_pk_bf16_f32', V(AF + 4 * tl), V(AF + 4 * tl), V(AF + 4 * tl + 1)))
            body.append(valu('v_cvt_pk_bf16_f32', V(AF + 4 * tl + 1), V(AF + 4 * tl + 2), V(AF + 4 * tl + 3)))
            if tl < 4: body.append(bstore(V(AF + 4 * tl, 2), V(vQ), sT, sQ1 if mh else sQ0, off=32 * s_, width=2))
            else: body.append(bstore(V(AF + 4 * tl, 2), V(vQ), sT, sQ8, width=2))
        if stamps:
            body.append(raw('s_waitcnt vmcnt(0)', 'drain_vm'))
            body += stamp(9)
            body += [salu('s_lshl_b32', ja, 's2', 2), salu('s_add_u32', ja, ja, sWv), salu('s_lshl_b32', ja, ja, 8), salu('s_add_u32', ja, ja, 64 << 20),
                     valu('v_lshlrev_b32', V(vT0), 2, V(vL)), bstore(V(vST), V(vT0), sWS, ja, width=1)]
        body.append(raw('s_endpgm', 'end'))
        allins = pad_hazards(insert_waits(P + body))
        return allins, slow

    two, slow2 = build(False)
    thr, slow3 = build(True)
    def split(l):
        k = next(i for i, x in enumerate(l) if x.kind == 'comment' and 'SPLIT' in x.text)
        return l[:k + 1], l[k + 1:]
    p2, s2_ = split(two); p3, s3_ = split(thr)
    assert [x.text for x in p2] == [x.text for x in p3], "prefix mismatch"
    out = p2 + s2_ + [label('KF_THREE'), nop(7)] + s3_ + slow2 + slow3 + [label('KF_END'), raw('s_endpgm', 'end')]
    return out

if __name__ == '__main__':
    ins = gen_f(verbose=True)
    print(len(ins))
```

```python
WS_H = 0
WS_H_BYTES = 64 * 288 * 1024
WS_W2T = WS_H + WS_H_BYTES
WS_W2T_BYTES = 5184 * 1024
WS_UR = WS_W2T + WS_W2T_BYTES
WS_UR_BYTES = 576 * 4096
WS_Y2 = WS_UR + WS_UR_BYTES
WS_Y2_BYTES = 576 * 4096
WS_G = WS_Y2 + WS_Y2_BYTES
WS_G_BYTES = 8192
WS_R = WS_G + WS_G_BYTES
WS_R_BYTES = 64 * 4 * 4 * 6144
WS_R8 = WS_R + WS_R_BYTES
WS_R8_BYTES = 64 * 4 * 4096
WS_FJ1 = WS_R8 + WS_R8_BYTES
WS_FHE = WS_FJ1 + 32768
WS_END = WS_FHE + 16384
```

```python
from asmlib import *
class Item:
    __slots__ = ('ins', 'at', 'dl')
    def __init__(self, ins, at, dl): self.ins = ins; self.at = at; self.dl = dl

def icost1(ins):
    k = ins.kind
    if k == 'trans': return 8
    if k in ('comment', 'label'): return 0
    if k == 'nop': return 4 * ins.cost
    return 4
def icost(ins):
    if isinstance(ins, list): return sum(icost1(i) for i in ins)
    return icost1(ins)

class Stream:
    def __init__(self, name, prio=0): self.name = name; self.prio = prio; self.items = []; self.pos = 0
    def add(self, ins, at, dl=10**9): self.items.append(Item(ins, int(at), dl))
    def head(self): return self.items[self.pos] if self.pos < len(self.items) else None
    def spread(self, lst, lo, hi, dl=10**9):
        tot = sum(max(icost(i), 1) for i in lst); acc = 0
        for ins in lst:
            self.add(ins, lo + (acc * (hi - lo)) // tot, dl)
            acc += max(icost(ins), 1)
    def fix(self):
        d = 10**9
        for it in reversed(self.items):
            d = min(d, it.dl); it.dl = d

def schedule(mfmas, streams, log=None):
    for s in streams: s.fix()
    out = []
    over = 0
    for n, m in enumerate(mfmas):
        out.append(m)
        budget = 24 if m.passes == 8 else 8
        rem = budget
        while True:
            c = [s for s in streams if s.head() is not None and s.head().at <= n]
            if not c: break
            c.sort(key=lambda s: (s.head().dl, s.prio))
            pick = None
            for s in c:
                it = s.head(); k = icost(it.ins)
                if k <= rem or it.dl <= n or rem == budget or (k > budget - 4 and rem >= budget - 4):
                    pick = s; break
            if pick is None: break
            it = pick.head(); k = icost(it.ins)
            if isinstance(it.ins, list): out += it.ins
            else: out.append(it.ins)
            it.at = n
            rem -= k; pick.pos += 1
        if rem < 0:
            over += -rem
            if log is not None: log.append((n, -rem))
    for s in sorted(streams, key=lambda s: s.prio):
        while s.head() is not None:
            it = s.head()
            if isinstance(it.ins, list): out += it.ins
            else: out.append(it.ins)
            it.at = len(mfmas)
            s.pos += 1
    return out
```

```python
import sys, argparse
from asmlib import *
import gen_k1, gen_k0, gen_k2, gen_k3, gen_f

HEADER = open('gated_mix__ssm_conv_h3__glu_gated_swiglu__prompt.s.ref').read().split('; Override launch')[0]

def add_rt(ins, kidx):
    endl = [i for i in ins if i.kind == 'label' and i.text.endswith('_END:')][0].text[:-1]
    out = [raw('s_memrealtime s[96:97]'), raw('v_lshrrev_b32 v1, 6, v0'), raw('s_nop 0'), raw('v_readfirstlane_b32 s100, v1'), raw('s_waitcnt lgkmcnt(0)')]
    n = len(ins)
    for j, i in enumerate(ins):
        if i.kind == 'end' and j != n - 1: out.append(raw(f's_branch {endl}'))
        elif i.kind == 'end':
            out += [raw(t) for t in f"""s_waitcnt vmcnt(0) lgkmcnt(0)
s_memrealtime s[98:99]
s_load_dwordx2 s[4:5], s[0:1], 104
s_lshl_b32 s6, s2, 4
s_add_u32 s6, s6, s100
s_lshl_b32 s6, s6, 4
s_add_u32 s6, s6, {(80 << 20) + kidx * 65536 * 2}
s_waitcnt lgkmcnt(0)
s_mov_b64 exec, 1
v_mov_b32 v0, s6
v_mov_b32 v4, s96
v_mov_b32 v5, s97
v_mov_b32 v6, s98
v_mov_b32 v7, s99
global_store_dwordx4 v0, v[4:7], s[4:5]
s_endpgm""".split("\n")]
        else: out.append(i)
    return out

def kernel_text(name, ins):
    return f""".globl {name}
.p2align 8
.type {name},@function
{name}:
{render(ins)}
"""
def desc(name, nvgpr, accum, nsgpr=102):
    return f""".p2align 6
.amdhsa_kernel {name}
  .amdhsa_next_free_vgpr {nvgpr}
  .amdhsa_next_free_sgpr {nsgpr}
  .amdhsa_accum_offset {accum}
  .amdhsa_group_segment_fixed_size 0
  .amdhsa_kernarg_size 112
  .amdhsa_user_sgpr_count 2
  .amdhsa_user_sgpr_kernarg_segment_ptr 1
  .amdhsa_system_sgpr_workgroup_id_x 1
.end_amdhsa_kernel
"""
def build(kernels):
    s = HEADER
    for k in kernels:
        s += f"; @launch kernel={k[0]} grid=({k[2]},1,1) block=({k[3]},1,1) lds={k[4]}\n"
    s += '.amdgcn_target "amdgcn-amd-amdhsa--gfx950"\n.text\n'
    for k in kernels: s += kernel_text(k[0], k[1])
    s += '.section .rodata,"a"\n'
    for k in kernels: s += desc(k[0], k[5], k[6])
    return s

if __name__ == '__main__':
    ap = argparse.ArgumentParser()
    ap.add_argument('-o', default='test.s')
    ap.add_argument('--only', default='')
    ap.add_argument('--hflags', default='')
    ap.add_argument('--stamps', action='store_true')
    ap.add_argument('--norot', action='store_true')
    ap.add_argument('--pst', action='store_true')
    ap.add_argument('--rt', action='store_true')
    ap.add_argument('--fused', action='store_true')
    ap.add_argument('--opt', default='')
    a = ap.parse_args()
    ks = []
    only = a.only.split(',') if a.only else ['k0','k1','k2','k3']
    if 'k0' in only: ks.append(('k0_kernel', gen_k0.gen_k0(), 256, 256, 16384, 160, 160))
    if 'k1' in only: ks.append(('k1_kernel', gen_k1.gen_k1(hflags=a.hflags, stamps=a.stamps, rot=not a.norot, pst=a.pst), 256, 256, 163840, 512, 256))
    if 'k2' in only: ks.append(('k2_kernel', gen_k2.gen_k2(stamps=a.stamps), 256, 256, 163840, 512, 256))
    if 'k3' in only: ks.append(('k3_kernel', gen_k3.gen_k3(), 256, 576, 9216, 64, 64))
    if a.fused:
        kw = eval('dict(' + a.opt + ')')
        ks = [('kf_kernel', gen_f.gen_f(stamps=a.stamps, verbose=True, **kw), 256, 256, 163840, 512, 256)]
    if a.rt: ks = [(k[0], add_rt(k[1], i)) + k[2:] for i, k in enumerate(ks)]
    open(a.o, 'w').write(build(ks))
```

```python
from asmlib import *
from sched2 import *
from layout_f import *

SC = "sc1"

def gen_f(stamps=False, rot=True, QSP=8, D=4, NB=5, D2=4, NB2=6, PACE=4.0, NBF=16, SPIN=20000, verbose=False, fHS=SC, fWS=SC, fHL=SC, fUL=SC, FHLG=210, JBF=22, GHE=60, GHL=150, LDL=6, SEGV=1, W2=1, EPACE=3, FLG=430, RCV=50, TOUCH=0, CPF=5):
    VX0 = 0; ACC = 32; WF = 192; TMP = 212; ADR = 220; AS0 = 232; XR = 236
    vX0 = 240; vX1 = 241; vW = 242; vS = 243; vH = 244; vT0 = 245; vT1 = 246; vST = 247; vL = 248
    pK, pV, pSK, pSSM, pD, pW2, pGW, pOUT, pDBG = 6, 8, 10, 12, 14, 22, 24, 26, 28
    sX, sW, sWS, sT, sU = S(32, 4), S(36, 4), S(40, 4), S(44, 4), S(48, 4)
    sWv, sQ, sRot, sM0, sM0S, sM0X = 's52', 's53', 's54', 's55', 's56', 's57'
    WI = ['0', 's58', 's59', 's60']
    XJ = ['0'] + [f's{60+j}' for j in range(1, 8)]
    HS = 68
    sNL, sNonce = 's76', 's77'
    sJM, sJM2 = 's[78:79]', 's[80:81]'
    tL = 's82'
    tJ = ['s83', 's84', 's85']
    sCC = 's[86:87]'
    GSEQ = ['s61', 's62', 's63', 's64', 's65', 's66', 's67', 's4', 's5']
    TT = ['s16', 's17', 's18', 's19', 's20', 's21', 's30']; sTB = 's31'
    sWq, sWcur, sHb, sHcur, sW1k = 's88', 's89', 's90', 's91', 's92'
    SEND = ['s93', 's94', 's95']; sSend8 = 's96'
    sScr, sDv, sMask, sYb, sFH = 's97', 's98', 's99', 's100', 's101'

    def xreg(s, rt):
        if s < 4: return V(VX0 + s * 8 + rt * 4, 4)
        return A((s - 4) * 8 + rt * 4, 4)
    hreg = xreg
    def acc(s, rt): return ACC + s * 32 + rt * 16
    def mksrd(srd, ptr, nbytes):
        lo = int(srd[2:srd.index(':')])
        return [salu('s_mov_b64', S(lo, 2), S(ptr, 2)), salu('s_mov_b32', f's{lo+2}', nbytes)]
    def smov64(d, s): return Inst(f"s_mov_b64 {d}, {s}", 'salu', rd=[s], wr=[d])

    def build(three):
        tagp = 'T' if three else 'D'
        slow = []
        nst = [0]
        def stamp(i):
            if not stamps: return []
            r = [raw('s_memtime s[86:87]', 'smem', wr=['s[86:87]']), raw('s_waitcnt lgkmcnt(0)', 'drain_lg'),
                 Inst(f"v_writelane_b32 v{vST}, s86, {i}", 'valu', rd=['s86', V(vST)], wr=[V(vST)])]
            if i < 10:
                r += [raw('s_memrealtime s[86:87]', 'smem', wr=['s[86:87]']), raw('s_waitcnt lgkmcnt(0)', 'drain_lg'),
                      Inst(f"v_writelane_b32 v{vST}, s86, {48 + i}", 'valu', rd=['s86', V(vST)], wr=[V(vST)])]
            return r
        def spin_tail(sl, bk):
            return [raw(f's_cbranch_vccz {bk}', 'branch'), salu('s_sub_u32', 's3', 's3', 1), raw(f's_cbranch_scc0 {sl}', 'branch'),
                    salu('s_mov_b32', 's3', 0), raw(f's_branch {bk}', 'branch')]
        def poll(name, mkload, regs, common):
            lab = name if common else name + tagp
            def cmps(need):
                r = []
                for j, rg in enumerate(regs):
                    if j == 0:
                        i = valu('v_cmp_ne_u32', 'vcc', sNonce, V(rg))
                        if need: i.need(vm=[('poll', name)])
                        r.append(i)
                    else:
                        r.append(valu('v_cmp_ne_u32', sCC, sNonce, V(rg)))
                        r.append(Inst(f"s_or_b64 vcc, vcc, {sCC}", 'salu', rd=['vcc', sCC], wr=['vcc', 'scc']))
                return r
            pi = {'J1': 16, 'J2': 18, 'HE': 20, 'HL': 22, 'Y': 24}[name]
            chk = stamp(pi) + cmps(True) + [raw(f's_cbranch_vccnz SLOW_{lab}', 'branch'), label(f'BACK_{lab}')] + stamp(pi + 1)
            if not (common and three):
                sl = [label(f'SLOW_{lab}'), raw('s_sleep 4'), mkload(), raw('s_waitcnt vmcnt(0)', 'drain_vm')] + cmps(False)
                sl += spin_tail(f'SLOW_{lab}', f'BACK_{lab}')
                slow.extend(pad_hazards(sl))
            return mkload(), chk

        P = []; e = P.append
        e(salu('s_cmp_ge_u32', 's2', 256))
        e(raw('s_cbranch_scc1 KF_END', 'branch'))
        e(raw('s_load_dwordx16 s[4:19], s[0:1], 0', 'smem', wr=['s[4:19]']))
        e(raw('s_load_dwordx8 s[20:27], s[0:1], 64', 'smem', wr=['s[20:27]']))
        e(raw('s_load_dwordx4 s[28:31], s[0:1], 96', 'smem', wr=['s[28:31]']))
        e(valu('v_lshrrev_b32', V(vT0), 6, 'v0'))
        e(valu('v_and_b32', V(vL), 63, 'v0'))
        if CPF:
            e(raw('s_getpc_b64 s[44:45]', 'salu', wr=['s[44:45]']))
            e(label('KF_PC'))
            e(salu('s_mov_b32', 's46', 'KF_END-KF_PC'))
            e(salu('s_mov_b32', 's47', 0x20000))
            e(salu('s_lshr_b32', 's88', 's2', 3))
            e(valu('v_lshl_add_u32', V(vT1), 's88', 2, V(vT0)))
            e(valu('v_lshl_add_u32', V(vT1), V(vL), 7, V(vT1)))
            e(valu('v_lshlrev_b32', V(vT1), 7, V(vT1)))
            e(smov64('exec', str((1 << CPF) - 1)))
            e(bload(V(vST if not stamps else 254), V(vT1), sT, '0', width=1, tag='touch'))
            e(smov64('exec', '-1'))
        tx, tidx, tmt, ti, tl1, tls, tcs, trg, tw1, ta, tb, tr9 = [f's{n}' for n in range(88, 100)]
        e(salu('s_and_b32', tx, 's2', 7))
        e(salu('s_mov_b32', 's3', SPIN))
        e(valu('v_readfirstlane_b32', sWv, V(vT0)))
        e(salu('s_lshr_b32', tidx, 's2', 3))
        e(salu('s_and_b32', tmt, tx, 1))
        e(salu('s_lshl_b32', tmt, tmt, 2))
        e(salu('s_and_b32', ta, tidx, 3))
        e(salu('s_add_u32', tmt, tmt, ta))
        e(salu('s_lshr_b32', sQ, tx, 1))
        e(salu('s_lshr_b32', ti, tidx, 2))
        e(salu('s_mul_i32', ta, sQ, 18))
        e(salu('s_lshl_b32', tl1, ti, 1))
        e(salu('s_add_u32', tl1, tl1, ta))
        e(salu('s_lshr_b32', tls, ti, 2))
        e(salu('s_add_u32', tls, tls, ta))
        e(salu('s_add_u32', tls, tls, 16))
        e(salu('s_and_b32', tcs, ti, 3))
        if rot:
            e(salu('s_add_u32', sRot, ti, tidx))
            e(salu('s_and_b32', sRot, sRot, 3))
            e(salu('s_lshl_b32', sRot, sRot, 1))
        else:
            e(salu('s_mov_b32', sRot, 0))
        e(salu('s_mul_i32', tr9, sRot, 589824))
        e(salu('s_lshr_b32', trg, sWv, 1))
        e(salu('s_and_b32', tw1, sWv, 1))
        e(valu('v_lshrrev_b32', V(TMP), 3, V(vL)))
        e(salu('s_lshl_b32', 's100', tw1, 5))
        e(valu('v_add_u32', V(vT0), 's100', V(TMP)))
        e(salu('s_movk_i32', 's101', 9216))
        e(valu('v_mul_lo_u32', V(vW), V(vT0), 's101'))
        e(valu('v_bfe_u32', V(vT0), V(vL), 1, 2))
        e(valu('v_bfe_u32', V(vT1), V(vL), 4, 1))
        e(salu('s_lshl_b32', ta, trg, 1))
        e(valu('v_add_u32', V(vT1), ta, V(vT1)))
        e(valu('v_xor_b32', V(vT0), V(vT0), V(vT1)))
        e(valu('v_lshl_add_u32', V(vW), V(vT0), 5, V(vW)))
        e(valu('v_and_b32', V(TMP + 1), 1, V(vL)))
        e(valu('v_lshl_add_u32', V(vW), V(TMP + 1), 4, V(vW)))
        e(salu('s_lshl_b32', ta, tl1, 7))
        e(salu('s_add_u32', ta, ta, tr9))
        e(valu('v_add_u32', V(vW), ta, V(vW)))
        e(salu('s_lshl_b32', ta, tmt, 8))
        e(salu('s_lshl_b32', tb, sWv, 6))
        e(salu('s_add_u32', ta, ta, tb))
        e(valu('v_add_u32', V(vT0), ta, V(TMP)))
        e(salu('s_movk_i32', tb, 1152))
        e(valu('v_mul_lo_u32', V(vX0), V(vT0), tb))
        e(salu('s_lshl_b32', tb, sRot, 7))
        e(valu('v_add_u32', V(vX0), tb, V(vX0)))
        e(valu('v_lshrrev_b32', V(vT0), 4, V(vL)))
        e(valu('v_and_b32', V(vT1), 7, V(vL)))
        e(valu('v_xor_b32', V(vT0), V(vT0), V(vT1)))
        e(valu('v_xor_b32', V(vT1), 4, V(vT0)))
        e(valu('v_lshl_add_u32', V(vX1), V(vT1), 4, V(vX0)))
        e(valu('v_lshl_add_u32', V(vX0), V(vT0), 4, V(vX0)))
        e(salu('s_lshl_b32', sM0, trg, 13))
        e(salu('s_lshl_b32', ta, tw1, 12))
        e(salu('s_add_u32', sM0, sM0, ta))
        e(salu('s_lshr_b32', sM0S, sM0, 2))
        e(salu('s_lshl_b32', sM0X, sWv, 13))
        for j in range(1, 8): e(salu('s_mov_b32', XJ[j], j * 9216 - (j & 3) * 1024))
        for j in range(1, 4): e(salu('s_mov_b32', WI[j], j * 72704))
        e(salu('s_mov_b32', 's34', 2048 * 1152))
        e(salu('s_mov_b32', 's35', 0x20000))
        e(salu('s_mov_b32', 's38', 576 * 9216))
        e(salu('s_mov_b32', 's39', 0x20000))
        e(salu('s_mov_b32', 's42', WS_END if not stamps else 128 << 20))
        e(salu('s_mov_b32', 's43', 0x20000))
        e(salu('s_mov_b32', 's47', 0x20000))
        e(salu('s_mov_b32', 's51', 0x20000))
        e(salu('s_mov_b32', 'm0', sM0))
        e(raw('s_waitcnt lgkmcnt(0)', 'drain_lg'))
        e(salu('s_cmp_eq_u32', trg, 0))
        e(salu('s_cselect_b32', 's36', 's18', 's20'))
        e(salu('s_cselect_b32', 's37', 's19', 's21'))
        e(smov64('s[32:33]', 's[4:5]'))
        e(smov64('s[40:41]', 's[30:31]'))

        def slotQ1(t): return t % 4
        Q2SLOT = [8, 9, 6, 7, 1, 4, 5, 2, 3]
        def spos(t): return t if t < 4 else 32 + (t - 4)
        def step(vreg, t, stride, extra=0, vreg2=None):
            r = []
            wr = (9 - t) % 9
            if wr in (0, 2, 4, 6):
                r.append([salu('s_cmp_eq_u32', sRot, wr), salu('s_mov_b32', tL, stride + extra),
                          salu('s_cselect_b32', tL, hex((-8 * stride + extra) & 0xffffffff), tL)])
                src = tL
            else:
                src = stride + extra
            r.append(valu('v_add_u32', V(vreg), src, V(vreg)))
            if vreg2 is not None: r.append(valu('v_add_u32', V(vreg2), src, V(vreg2)))
            return r
        def wdma(ph, t, first=False):
            r = []
            slot = slotQ1(t) if ph == 'Q1' else Q2SLOT[t]
            if not first:
                r += step(vW, t, 589824, 128 if (ph == 'Q2' and t == 0) else 0)
                r.append(salu('s_add_u32', 'm0', sM0, slot * 16384))
            for i in range(4): r.append(bload_lds(V(vW), sW, WI[i], off=i * 1024, tag=('w', ph, t)))
            return r
        def xdma(t):
            r = []
            if t > 0: r += step(vX0, t, 128, 0, vX1)
            for j in range(8):
                if j % 4 == 0: r.append(salu('s_add_u32', 'm0', sM0X, 65536 + (t % 2) * 32768 + (j >> 2) * 4096))
                ins = bload_lds(V(vX0 + (j & 1)), sX, XJ[j], off=(j & 3) * 1024, tag=('xd', t, j >> 2))
                if j == 0 and t >= 2: ins.need(lg=[('xr', t - 2)])
                r.append(ins)
            return r
        def xread(t):
            r = []
            for rt in range(2):
                for s in range(4):
                    ins = dsread('ds_read_b128', xreg(4 * t + s, rt), V(XR + s), off=(t % 2) * 32768 + rt * 4096, tag=('xr', t))
                    if s == 0: ins.need(vm=[('xd', t, rt)])
                    r.append(ins)
            return r
        def sdma(t):
            r = []
            if t > 0: r += step(vS, t, 589824)
            r.append(salu('s_add_u32', 'm0', sM0S, spos(t) * 4096))
            r.append(bload_lds(V(vS), sW, '0', tag=('s', t)))
            return r
        def flat(lst):
            o = []
            for i in lst:
                if isinstance(i, list): o += i
                else: o.append(i)
            return o
        P += stamp(0)
        P += flat(wdma('Q1', 0, first=True))
        P += flat(xdma(0))
        e(valu('v_lshrrev_b32', V(vT0), 1, V(vL)))
        e(salu('s_lshl_b32', ta, trg, 2))
        e(valu('v_xor_b32', V(vT0), ta, V(vT0)))
        e(valu('v_add_u32', V(vT0), 's100', V(vT0)))
        e(valu('v_mul_lo_u32', V(vS), V(vT0), 's101'))
        e(valu('v_lshl_add_u32', V(vS), V(TMP + 1), 4, V(vS)))
        e(salu('s_lshl_b32', ta, tls, 7))
        e(salu('s_lshl_b32', tb, tcs, 5))
        e(salu('s_add_u32', ta, ta, tb))
        e(salu('s_add_u32', ta, ta, tr9))
        e(valu('v_add_u32', V(vS), ta, V(vS)))
        P += flat(wdma('Q1', 1))
        P += flat(xdma(1))
        vTQ = 255
        vDum = vST if not stamps else 254
        if TOUCH:
            A0, A1 = ACC, ACC + 1
            e(salu('s_lshl_b32', ta, tmt, 8))
            e(salu('s_lshl_b32', tb, sWv, 6))
            e(salu('s_add_u32', ta, ta, tb))
            e(valu('v_add_u32', V(A0), ta, V(vL)))
            e(valu('v_mul_u32_u24', V(A0), 1152, V(A0)))
            e(salu('s_lshl_b32', ta, sRot, 7))
            e(bload(V(vDum), V(A0), sX, ta, off=256, width=1, tag='touch'))
            e(valu('v_and_b32', V(A0), 31, V(vL)))
            e(valu('v_add_u32', V(A0), 's100', V(A0)))
            e(valu('v_mul_u32_u24', V(A0), 9216, V(A0)))
            e(valu('v_lshrrev_b32', V(A1), 5, V(vL)))
            e(salu('s_lshl_b32', ta, tl1, 7))
            e(salu('s_add_u32', ta, ta, tr9))
            e(valu('v_add_u32', V(A0), ta, V(A0)))
            e(valu('v_mul_u32_u24', V(vTQ), 589824, V(A1)))
            e(valu('v_add_u32', V(vTQ), V(vTQ), V(A0)))
            e(valu('v_lshl_add_u32', V(A0), V(A1), 7, V(A0)))
            e(salu('s_mov_b32', ta, 2 * 589824))
            e(bload(V(vDum), V(A0), sW, ta, width=1, tag='touch'))
        e(salu('s_or_b32', ta, 's2', sWv))
        e(salu('s_cmp_lg_u32', ta, 0))
        e(raw('s_cbranch_scc1 KF_NONONCE', 'branch'))
        e(raw('s_memrealtime s[86:87]', 'smem', wr=['s[86:87]']))
        e(valu('v_mov_b32', V(vT0), 0))
        e(raw('s_waitcnt lgkmcnt(0)', 'drain_lg'))
        e(salu('s_or_b32', 's86', 's86', 1))
        e(valu('v_mov_b32', V(vT1), 's86'))
        e(smov64('exec', '1'))
        e(raw(f'global_store_dword v{vT0}, v{vT1}, s[{pDBG}:{pDBG+1}] sc1', 'other'))
        e(smov64('exec', '-1'))
        e(label('KF_NONONCE'))
        t_regl, t_r, t_base, t_sw = TMP + 2, TMP + 3, TMP + 4, TMP + 5
        T6, T7 = TMP + 6, TMP + 7
        vC1 = TMP + 1
        e(valu('v_bfe_u32', V(t_regl), V(vL), 1, 1))
        e(valu('v_bfe_u32', V(t_r), V(vL), 2, 2))
        e(valu('v_lshrrev_b32', V(T7), 5, V(vL)))
        e(valu('v_lshl_add_u32', V(vT0), V(T7), 3, V(t_r)))
        e(valu('v_bfe_u32', V(vT1), V(vL), 4, 1))
        e(valu('v_lshlrev_b32', V(vT1), 4, V(vT1)))
        e(valu('v_lshl_add_u32', V(vT1), V(vC1), 3, V(vT1)))
        e(valu('v_lshl_add_u32', V(t_base), V(vT0), 7, V(vT1)))
        e(valu('v_lshl_add_u32', V(t_base), V(t_regl), 13, V(t_base)))
        e(valu('v_lshrrev_b32', V(t_sw), 1, V(t_r)))
        e(valu('v_lshl_add_u32', V(t_sw), V(t_regl), 1, V(t_sw)))
        for cc in range(4):
            e(valu('v_xor_b32', V(T6), cc, V(t_sw)))
            e(valu('v_lshl_add_u32', V(ADR + cc), V(T6), 5, V(t_base)))
            e(valu('v_add_u32', V(ADR + 4 + cc), 65536, V(ADR + cc)))
            e(valu('v_add_u32', V(ADR + 8 + cc), 131072, V(ADR + cc)))
        e(valu('v_lshlrev_b32', V(t_base), 2, V(t_regl)))
        e(valu('v_lshl_add_u32', V(t_sw), V(t_regl), 11, V(vT1)))
        e(valu('v_xor_b32', V(T6), V(vT0), V(t_base)))
        e(valu('v_lshl_add_u32', V(AS0), V(T6), 5, V(t_sw)))
        e(valu('v_xor_b32', V(T6), 4, V(T6)))
        e(valu('v_lshl_add_u32', V(AS0 + 1), V(T6), 5, V(t_sw)))
        e(valu('v_add_u32', V(AS0 + 2), 131072, V(AS0)))
        e(valu('v_add_u32', V(AS0 + 3), 131072, V(AS0 + 1)))
        e(valu('v_lshlrev_b32', V(vH), 4, V(vL)))
        e(valu('v_and_b32', V(t_base), 31, V(vL)))
        e(valu('v_lshlrev_b32', V(t_base), 7, V(t_base)))
        e(salu('s_add_u32', ta, sM0X, 65536))
        e(valu('v_add_u32', V(t_base), ta, V(t_base)))
        e(valu('v_bfe_u32', V(t_sw), V(vL), 1, 3))
        e(valu('v_xor_b32', V(t_sw), V(t_sw), V(T7)))
        for s in range(4):
            e(valu('v_xor_b32', V(T6), 2 * s, V(t_sw)))
            e(valu('v_lshl_add_u32', V(XR + s), V(T6), 4, V(t_base)))
        e(salu('s_lshl_b32', ta, tmt, 3))
        e(salu('s_lshl_b32', tb, sWv, 1))
        e(salu('s_add_u32', ta, ta, tb))
        e(salu('s_mul_i32', ta, ta, 288))
        e(salu('s_mul_i32', tb, sQ, 72))
        e(salu('s_add_u32', ta, ta, tb))
        e(salu('s_mul_i32', tb, ti, 6))
        e(salu('s_add_u32', f's{HS}', ta, tb))
        e(salu('s_add_u32', f's{HS+2}', f's{HS}', 4))
        e(salu('s_lshl_b32', tb, ti, 1))
        e(salu('s_add_u32', tb, tb, 48))
        e(salu('s_add_u32', f's{HS+4}', ta, tb))
        e(salu('s_add_u32', tb, ti, 64))
        e(salu('s_add_u32', f's{HS+6}', ta, tb))
        for k in range(0, 8, 2):
            e(salu('s_lshl_b32', f's{HS+k}', f's{HS+k}', 10))
            e(salu('s_add_u32', f's{HS+k+1}', f's{HS+k}', 288 * 1024))
        e(salu('s_lshl_b32', ta, tmt, 2))
        e(salu('s_add_u32', ta, ta, sQ))
        e(salu('s_lshl_b32', ta, ta, 2))
        e(salu('s_add_u32', ta, ta, sWv))
        e(salu('s_lshl_b32', ta, ta, 7))
        e(salu('s_lshl_b32', tb, ti, 2))
        e(salu('s_add_u32', ta, ta, tb))
        e(salu('s_add_u32', sFH, ta, WS_FHE))
        e(salu('s_mov_b32', sNL, '0xbfb8aa3b'))
        e(salu('s_mov_b32', sMask, '0xffff0000'))

        frags = []
        for s in range(36):
            for cc in range(4): frags.append(('Q1', s, cc, cc))
        QSET = [4, 0, 1, 2]
        for cc in range(4):
            for s in range(36): frags.append(('Q2', s, cc, QSET[cc]))
        for s in range(36): frags.append(('S', s, 0, 3))
        NF = len(frags)
        def fread(f):
            ph, s, cc, st = frags[f]
            b = WF + 4 * (f % NB)
            r = []
            for t in range(2):
                if ph == 'S':
                    sp = spos(s >> 2)
                    a = V(AS0 + t + (2 if sp >= 32 else 0)); off = (sp & 31) * 4096 + (16 * (s & 3)) * 32
                else:
                    slot = slotQ1(s >> 2) if ph == 'Q1' else Q2SLOT[s >> 2]
                    a = V(ADR + 4 * (slot >> 2) + cc); off = (slot & 3) * 16384 + (16 * (s & 3) + 4 * t) * 128
                r.append(dsread('ds_read_b64_tr_b16', V(b + 2 * t, 2), a, off=off, tag=('f', f)))
            return r
        mf = []
        for f, (ph, s, cc, st) in enumerate(frags):
            b = WF + 4 * (f % NB)
            for rt in range(2):
                a = V(acc(st, rt), 16)
                m = mfma32(a, V(b, 4), xreg(s, rt), a if s != 0 else '0')
                if rt == 0: m.need(lg=[('f', f)])
                if ph == 'Q1' and cc == 0 and rt == 0 and (s & 3) == 0: m.need(lg=[('xr', s >> 2)])
                mf.append(m)
        def epi(st, soff_base, off, k):
            r = []
            for rt in range(2):
                a = acc(st, rt)
                for half in range(2):
                    g = [a + 8 * half + i for i in range(4)]
                    u = [a + 8 * half + 4 + i for i in range(4)]
                    T = [TMP + 4 * half + i for i in range(4)]
                    for i in range(4): r.append(valu('v_mul_f32', V(T[i]), sNL, V(g[i])))
                    for i in range(4): r.append(valu('v_exp_f32', V(T[i]), V(T[i])))
                    for i in range(4): r.append(valu('v_mul_f32', V(g[i]), V(g[i]), V(u[i])))
                    for i in range(4): r.append(valu('v_add_f32', V(T[i]), '1.0', V(T[i])))
                    for i in range(4): r.append(valu('v_rcp_f32', V(T[i]), V(T[i])))
                    for i in range(4): r.append(valu('v_mul_f32', V(g[i]), V(g[i]), V(T[i])))
                    for i in range(2): r.append(valu('v_cvt_pk_bf16_f32', V(a + 4 + 2 * half + i), V(g[2 * i]), V(g[2 * i + 1])))
                r.append(bstore(V(a + 4, 4), V(vH), sWS, f's{soff_base + rt}', off=off, tag=('h', k), flags=fHS))
            return r

        sF = Stream('frag', 0); sL = Stream('load', 2); sE = Stream('epi', 3); sJ = Stream('job', 4)
        bar_gap = {}
        def first_frag_of(ph, stage):
            for f, fr in enumerate(frags):
                if fr[0] == ph and fr[1] == 4 * stage and fr[2] == 0: return f
        bars = {}
        for t in range(1, 9): bars[first_frag_of('Q1', t)] = [('Q1', t), [('w', 'Q1', t)], [('xr', t)]]
        bars[first_frag_of('Q1', 6)][2].append('kvr')
        Q2G = {0: (0, 1), 2: (2, 3, 4), 5: (5, 6, 7), 8: (8,)}
        for t, g in Q2G.items(): bars[first_frag_of('Q2', t)] = [('Q2', t), [('w', 'Q2', k) for k in g], []]
        bars[144 + 36 + JBF] = [('J', 0), ['jst'], []]
        bars[144 + 3 * 36 + 4 * 5] = [('C3', 0), [], []]
        SGROUP = {0: (0, 1, 2, 3), 4: (4, 5, 6, 7, 8)}
        for t, g in SGROUP.items(): bars[first_frag_of('S', t)] = [('S', t), [('s', k) for k in g], []]
        XRG = 12
        pend = {}
        for t in range(1, 9):
            for j, ins in enumerate(xread(t)): pend[32 * (t - 1) + XRG + j] = ins
        for f in range(D, NF):
            g0 = 2 * (f - D)
            if f in bars:
                key, tags, ltags = bars[f]
                sF.add(barrier().need(vm=tags, lg=ltags), g0 - 1, g0 - 1)
                bar_gap[key] = g0 - 1
            r = fread(f)
            for k in range(2):
                sF.add(r[k], g0 + k, g0 + k)
                if g0 + k in pend: sF.add(pend.pop(g0 + k), g0 + k, g0 + k)
        assert not pend

        J0 = 160
        vKR, vKS, vO4 = 249, 250, 251
        ja, jb, jc = tJ
        vW2R, vW2 = 252, [253, vT1]
        sD = ['s88', 's89']; sJM2 = 's[90:91]'; sStg = 's92'; jd = 's93'
        w2a = []; a_ = w2a.append
        a_(salu('s_mul_i32', sStg, sWv, 9216))
        a_(salu('s_add_u32', sStg, sStg, 131072))
        a_(valu('v_lshrrev_b32', V(vT1), 3, V(vL)))
        a_(valu('v_mul_u32_u24', V(vT1), 1152, V(vT1)))
        a_(valu('v_and_b32', V(vT0), 7, V(vL)))
        a_(valu('v_lshl_add_u32', V(vT1), V(vT0), 4, V(vT1)))
        w2b = []; a_ = w2b.append
        a_(valu('v_lshrrev_b32', V(vW2R), 5, V(vL)))
        a_(valu('v_lshlrev_b32', V(vW2R), 4, V(vW2R)))
        a_(valu('v_bfe_u32', V(vT0), V(vL), 4, 1))
        a_(valu('v_lshl_add_u32', V(vW2R), V(vT0), 2, V(vW2R)))
        a_(valu('v_bfe_u32', V(vT0), V(vL), 2, 2))
        a_(valu('v_add_u32', V(vW2R), V(vW2R), V(vT0)))
        a_(valu('v_lshlrev_b32', V(vW2R), 7, V(vW2R)))
        a_(valu('v_and_b32', V(vT0), 3, V(vL)))
        a_(valu('v_lshl_add_u32', V(vW2R), V(vT0), 3, V(vW2R)))
        a_(valu('v_add_u32', V(vW2R), sStg, V(vW2R)))
        def w2_addr(rnd):
            r = []; b_ = r.append
            d = sD[rnd]
            if rnd == 0:
                b_(salu('s_lshl_b32', ja, 's2', 2))
                b_(salu('s_add_u32', ja, ja, sWv))
            else:
                b_(salu('s_mul_i32', ja, 's2', 3))
                b_(salu('s_add_u32', ja, ja, sWv))
                b_([salu('s_cmp_lt_u32', ja, 272), salu('s_cselect_b32', 's90', -1, 0)])
                b_([salu('s_cmp_lt_u32', sWv, 3), salu('s_cselect_b32', 's90', 's90', 0)])
                b_(salu('s_mov_b32', 's91', 's90'))
                b_(salu('s_add_u32', ja, ja, 1024))
            b_(salu('s_mul_i32', jb, ja, 7282))
            b_(salu('s_lshr_b32', jb, jb, 16))
            b_(salu('s_mul_i32', jc, jb, 9))
            b_(salu('s_sub_u32', ja, ja, jc))
            b_(salu('s_mul_i32', jc, jb, 32 * 1152))
            b_(salu('s_lshl_b32', d, ja, 7))
            b_(salu('s_add_u32', jc, jc, d))
            b_(valu('v_add_u32', V(vW2[rnd]), jc, V(vT1)))
            b_(salu('s_mul_i32', jc, jb, 57))
            b_(salu('s_lshr_b32', jc, jc, 11))
            b_(salu('s_mul_i32', jc, jc, 36))
            b_(salu('s_sub_u32', jb, jb, jc))
            b_(salu('s_lshr_b32', d, jb, 2))
            b_(salu('s_and_b32', jd, jb, 3))
            b_([salu('s_cmp_eq_u32', jd, 3), salu('s_cselect_b32', 's86', 1, 3), salu('s_cselect_b32', jd, 24, jd), salu('s_mul_i32', d, d, 's86')])
            b_(salu('s_add_u32', d, d, jd))
            b_([salu('s_cmp_lt_u32', jb, 32), salu('s_cselect_b32', d, d, jb)])
            b_(salu('s_add_u32', d, d, jc))
            b_(salu('s_mul_i32', d, d, 9))
            b_(salu('s_add_u32', d, d, ja))
            b_(salu('s_lshl_b32', d, d, 12))
            b_(salu('s_add_u32', d, d, WS_W2T))
            return r
        def masked(ins, mask=sJM):
            return [smov64('exec', mask)] + (ins if isinstance(ins, list) else [ins]) + [smov64('exec', '-1')]
        w2d = mksrd(sU, pW2, 4608 * 1152)
        for rnd in range(2):
            w2d.append(salu('s_add_u32', 'm0', sStg, 4096 * rnd))
            for j in range(4):
                ins = bload_lds(V(vW2[rnd]), sU, XJ[j], off=j * 1024, tag='w2d')
                w2d.append(masked(ins, sJM2) if rnd else ins)
        w2o = []
        def w2reg(rnd, jj): return J0 + 16 * (1 - rnd) + 4 * jj
        for rnd in range(2):
            for jj in range(4):
                for t in range(2): w2o.append(dsread('ds_read_b64_tr_b16', V(w2reg(rnd, jj) + 2 * t, 2), V(vW2R), off=rnd * 4096 + t * 1024 + jj * 32, tag=('w2r', rnd)))
        w2o[0].need(vm=['w2d'])
        for rnd in range(2):
            for jj in range(4):
                ins = bstore(V(w2reg(rnd, jj), 4), V(vH), sWS, sD[rnd], off=jj * 1024, tag='jst', flags=fWS).need(lg=[('w2r', rnd)])
                w2o.append(masked(ins, sJM2) if rnd else ins)
        P += flat(w2a + w2_addr(0) + w2_addr(1))
        pre = []; a_ = pre.append
        a_(salu('s_lshl_b32', ja, 's2', 2))
        a_(salu('s_add_u32', ja, ja, sWv))
        a_(valu('v_and_b32', V(TMP + 5), 31, V(vL)))
        a_(valu('v_mul_u32_u24', V(TMP + 5), 12, V(TMP + 5)))
        a_(valu('v_lshrrev_b32', V(vO4), 5, V(vL)))
        a_(valu('v_mul_u32_u24', V(TMP + 4), 1152, V(vO4)))
        a_(valu('v_add_u32', V(TMP + 4), V(TMP + 4), V(TMP + 5)))
        a_(salu('s_mul_i32', jb, ja, 2304))
        a_(valu('v_add_u32', V(TMP + 4), jb, V(TMP + 4)))
        a_(valu('v_lshlrev_b32', V(vO4), 2, V(vO4)))
        a_(salu('s_lshl_b32', jc, ja, 3))
        a_(valu('v_add_u32', V(vO4), jc, V(vO4)))
        pre += mksrd(sT, pGW, 1152)
        def bl3(d, voff, srd, soff, off, tag):
            return Inst(f"buffer_load_dwordx3 {V(d, 3)}, {voff}, {srd}, {soff} offen" + (f" offset:{off}" if off else ""), 'vmem', rd=[voff, srd, soff], wr=[V(d, 3)], tag=tag)
        gld = []
        for j in range(3):
            gld.append(bl3(J0 + 8 * j, V(TMP + 4), sX, '0', 384 * j, 'gx'))
            gld.append(bl3(J0 + 8 * j + 4, V(TMP + 5), sT, '0', 384 * j, 'gx'))
        gld.append(valu('v_mov_b32', V(TMP + 4), 0))
        def nonce_load():
            return Inst(f'global_load_dword v{TMP+5}, v{TMP+4}, s[{pDBG}:{pDBG+1}] sc1', 'vmem', rd=[V(TMP + 4)], wr=[V(TMP + 5)], tag='nonce')
        a_(salu('s_lshl_b32', ja, 's2', 1))
        a_(salu('s_add_u32', ja, ja, sWv))
        a_(salu('s_add_u32', jb, 's2', 512))
        a_([salu('s_cmp_lt_u32', sWv, 2), salu('s_cselect_b32', ja, ja, jb)])
        a_(salu('s_lshl_b32', jb, sWv, 6))
        a_([salu('s_cmp_lt_u32', ja, 576), salu('s_cselect_b32', jc, -1, 0)])
        a_([salu('s_cmp_lt_u32', sWv, 3), salu('s_cselect_b32', 's78', jc, 0), salu('s_cselect_b32', jb, sWv, 0)])
        a_(salu('s_mov_b32', 's79', 's78'))
        a_(salu('s_mul_i32', jb, jb, 9216))
        a_(salu('s_add_u32', 's80', jb, 131072))
        a_(salu('s_mul_i32', jb, ja, 7282))
        a_(salu('s_lshr_b32', jb, jb, 16))
        a_(salu('s_mul_i32', jc, jb, 9))
        a_(salu('s_sub_u32', jc, ja, jc))
        a_(valu('v_lshrrev_b32', V(TMP), 3, V(vL)))
        a_(valu('v_mul_u32_u24', V(TMP), 1152, V(TMP)))
        a_(valu('v_and_b32', V(TMP + 1), 7, V(vL)))
        a_(valu('v_lshl_add_u32', V(TMP), V(TMP + 1), 4, V(TMP)))
        a_(salu('s_mul_i32', ja, jb, 32 * 1152))
        a_(salu('s_lshl_b32', 's81', jc, 7))
        a_(salu('s_add_u32', ja, ja, 's81'))
        a_(valu('v_add_u32', V(TMP), ja, V(TMP)))
        a_(valu('v_subrev_u32', V(TMP + 1), 4608, V(TMP)))
        a_(valu('v_add_u32', V(TMP + 2), 4608, V(TMP)))
        a_(valu('v_and_b32', V(TMP + 6), 15, V(vL)))
        a_(valu('v_lshlrev_b32', V(TMP + 3), 3, V(TMP + 6)))
        a_(salu('s_lshl_b32', ja, jc, 9))
        a_(valu('v_add_u32', V(TMP + 3), ja, V(TMP + 3)))
        a_(valu('v_lshrrev_b32', V(TMP + 7), 4, V(vL)))
        a_(valu('v_lshlrev_b32', V(vKS), 12, V(TMP + 6)))
        a_(valu('v_lshlrev_b32', V(TMP + 6), 4, V(TMP + 7)))
        a_(valu('v_sub_u32', V(vKS), V(vKS), V(TMP + 6)))
        a_(salu('s_lshl_b32', ja, jc, 18))
        a_(salu('s_lshl_b32', jb, jb, 6))
        a_(salu('s_sub_u32', ja, ja, jb))
        a_(salu('s_add_u32', ja, ja, WS_UR + 4080))
        a_(valu('v_add_u32', V(vKS), ja, V(vKS)))
        a_(valu('v_bfe_u32', V(TMP + 6), V(vL), 2, 2))
        a_(valu('v_lshl_add_u32', V(TMP + 6), V(TMP + 7), 3, V(TMP + 6)))
        a_(valu('v_lshlrev_b32', V(vKR), 7, V(TMP + 6)))
        a_(valu('v_and_b32', V(TMP + 6), 3, V(vL)))
        a_(valu('v_lshl_add_u32', V(vKR), V(TMP + 6), 3, V(vKR)))
        a_(valu('v_add_u32', V(vKR), 's80', V(vKR)))
        P += flat(w2b + pre)
        P.append(barrier().need(vm=[('w', 'Q1', 0)]))
        for f in range(D): P += fread(f)
        P += xread(0)
        SKW = J0 + 24
        kvd = []
        kvd += mksrd(sU, pK, 2048 * 1152)
        kvd.append(salu('s_mov_b32', 'm0', 's80'))
        kvd.append(masked(bload_lds(V(TMP + 1), sU, '0', tag='kvd').need(lg=[('w2r', 1)])))
        kvd.append(salu('s_add_u32', 'm0', 's80', 1024))
        for j in range(4): kvd.append(masked(bload_lds(V(TMP + 2), sU, XJ[j], off=j * 1024, tag='kvd')))
        kvd.append(smov64('s[48:49]', S(pV, 2)))
        kvd.append(salu('s_add_u32', 'm0', 's80', 5120))
        for j in range(4): kvd.append(masked(bload_lds(V(TMP), sU, XJ[j], off=j * 1024, tag='kvd')))
        kvd += mksrd(sU, pSK, 576 * 8)
        for it in range(4): kvd.append(bload(V(SKW + 2 * it, 2), V(TMP + 3), sU, '0', off=128 * it, width=2, tag='kvd'))
        gc = []; a_ = gc.append
        for j in range(3):
            for t in range(3):
                ins = valu('v_dot2_f32_bf16', V(J0 + 3 + 8 * t), V(J0 + 8 * j + t), V(J0 + 8 * j + 4 + t), 0 if j == 0 else V(J0 + 3 + 8 * t))
                if j == 0 and t == 0: ins.need(vm=['gx'])
                a_(ins)
        g0_, g1_ = J0 + 3, J0 + 7
        a_(valu('v_add_f32', V(g0_), V(g0_), V(J0 + 11)))
        a_(valu('v_add_f32', V(g0_), V(g0_), V(J0 + 19)))
        for sh in (8, 4, 2, 1):
            a_(Inst(f"v_add_f32_dpp v{g0_}, v{g0_}, v{g0_} row_ror:{sh} row_mask:0xf bank_mask:0xf", 'valu', rd=[V(g0_)], wr=[V(g0_)]))
        a_(valu('v_mov_b32', V(g1_), V(g0_)))
        a_(valu('v_permlane16_swap_b32', V(g0_), V(g1_)))
        a_(valu('v_add_f32', V(g0_), V(g0_), V(g1_)))
        a_(valu('v_cvt_pk_bf16_f32', V(g0_), V(g0_), V(g0_)))
        a_(valu('v_lshlrev_b32', V(g0_), 16, V(g0_)))
        a_(valu('v_mul_f32', V(g0_), sNL, V(g0_)))
        a_(valu('v_exp_f32', V(g0_), V(g0_)))
        a_(valu('v_add_f32', V(g0_), '1.0', V(g0_)))
        a_(valu('v_rcp_f32', V(g0_), V(g0_)))
        a_(valu('v_cvt_pk_bf16_f32', V(g0_), V(g0_), V(g0_)))
        a_(valu('v_lshlrev_b32', V(g0_), 16, V(g0_)))
        gst = [salu('s_mov_b32', ja, WS_G), salu('s_mov_b32', 'exec_lo', 1), salu('s_mov_b32', 'exec_hi', 1), bstore(V(g0_), V(vO4), sWS, ja, width=1, tag='jst', flags=SC), smov64('exec', '-1')]
        sJ.spread(gc, 46, 58, 59)
        sJ.add(gst, 60, 60)
        sJ.spread(w2o[:16], 61, 69, 70)
        nchk = [valu('v_cmp_eq_u32', 'vcc', 0, V(TMP + 5)).need(vm=['nonce']), raw('s_cbranch_vccnz SLOW_N', 'branch'), label('BACK_N'),
                valu('v_readfirstlane_b32', sNonce, V(TMP + 5))]
        if not three:
            slow.extend(pad_hazards([label('SLOW_N'), raw('s_sleep 4'), nonce_load(), raw('s_waitcnt vmcnt(0)', 'drain_vm'),
                                     valu('v_cmp_eq_u32', 'vcc', 0, V(TMP + 5))] + spin_tail('SLOW_N', 'BACK_N')))
        O = [J0 + 20, J0 + 21, J0 + 22, J0 + 23, vO4]
        AC = TMP
        def kv_reads(it):
            b = J0 + 10 * (it & 1)
            r = [dsread('ds_read_b64_tr_b16', V(b + 2 * k, 2), V(vKR), off=512 * k + 32 * it, tag='kvr') for k in range(3)]
            r += [dsread('ds_read_b64_tr_b16', V(b + 6 + 2 * k, 2), V(vKR), off=5120 + 512 * k + 32 * it, tag='kvr') for k in range(2)]
            for x in r: x.tag = 'kvr'
            return r
        kc = []; a_ = kc.append; kst = []
        a_(nchk)
        r0 = kv_reads(0); r0[0].need(vm=['kvd']); kc += r0
        for it in range(4):
            b = J0 + 10 * (it & 1)
            Dk = [b + k for k in range(6)]; Vd = [b + 6 + k for k in range(4)]
            w10, w32 = SKW + 2 * it, SKW + 2 * it + 1
            a_(valu('v_alignbit_b32', V(w10), V(w10), V(w10), 16))
            a_(valu('v_alignbit_b32', V(w32), V(w32), V(w32), 16))
            for m in range(5):
                ins = valu('v_alignbit_b32', V(O[m]), V(Dk[m + 1]), V(Dk[m]), 16)
                if m == 0: ins.need(lg=['kvr'])
                a_(ins)
            if it < 3: kc += kv_reads(it + 1)
            for t in range(8):
                u = t >> 1
                a_(valu('v_dot2_f32_bf16', V(AC + t), V(O[u + 1] if t % 2 == 0 else Dk[u + 2]), V(w10), 0))
            for t in range(8):
                u = t >> 1
                a_(valu('v_dot2_f32_bf16', V(AC + t), V(O[u] if t % 2 == 0 else Dk[u + 1]), V(w32), V(AC + t)))
            for hlf in range(2):
                for t in range(4 * hlf, 4 * hlf + 4):
                    if t & 1: a_(valu('v_and_b32', V(Dk[t & 3]), sMask, V(Vd[t >> 1])))
                    else: a_(valu('v_lshlrev_b32', V(Dk[t & 3]), 16, V(Vd[t >> 1])))
                for t in range(4 * hlf, 4 * hlf + 4):
                    a_(valu('v_mul_f32', V(AC + t), V(AC + t), V(Dk[t & 3])))
            ob = O[0] if it == 2 else 252
            for k in range(4): a_(valu('v_cvt_pk_bf16_f32', V(ob + k), V(AC + 7 - 2 * k), V(AC + 6 - 2 * k)))
            kst.append([salu('s_mov_b32', tL, it * 65536)] + masked(bstore(V(ob, 4), V(vKS), sWS, tL, tag='jst', flags=SC)))
            lo, hi = [(120, 138), (139, 156), (157, 171), (182, 200)][it]
            if it == 1:
                sJ.spread(kc[:-4], lo, hi - 3, hi - 2); sJ.spread(kc[-4:], hi - 2, hi, hi + 1)
            else: sJ.spread(kc, lo, hi, hi + 1)
            kc = []; a_ = kc.append
        def flagstore(soff_ins, soff, tagneed=None, off=0, vz=None, vd=None, w0=False):
            r = list(soff_ins)
            r.append(valu('v_mov_b32', V(vd), sNonce))
            i = Inst(f"buffer_store_dword v{vd}, off, {sWS}, {soff}" + (f" offset:{off}" if off else "") + " sc1", 'vstore', rd=[V(vd), sWS, soff], tag='flag')
            if tagneed: r[-1].need(vm=tagneed)
            if w0: r += [salu('s_cmp_eq_u32', sWv, 0), Inst("s_cselect_b64 exec, 1, 0", 'salu', rd=['scc'], wr=['exec'])]
            else: r.append(smov64('exec', '1'))
            r.append(i)
            r.append(smov64('exec', '-1'))
            return r
        fj1 = flagstore([salu('s_lshl_b32', ja, 's2', 7), salu('s_add_u32', ja, ja, WS_FJ1)], ja, vd=vKR, w0=True)

        win = {0: gld + w2d,
               1: ([bload(V(vDum), V(vTQ), sW, '0', off=128, width=1, tag='touch')] if TOUCH else []) + [nonce_load()],
               2: w2o[16:20] + kvd, 3: w2o[20:], 4: [kst[0]], 5: [kst[1], kst[2]], 6: [kst[3]]}
        wlo = {0: 11, 1: 44, 2: 71, 3: 103, 4: 141, 5: 174, 6: 212}
        whi = {0: 21, 1: 50, 2: 85, 3: 112, 4: 143, 5: 178, 6: 214}
        q2_after = [('Q1', 6), ('Q1', 6), ('Q1', 7), ('Q1', 7), ('Q1', 7), ('Q1', 8), ('Q1', 8), ('Q1', 8), ('Q2', 0)]
        for u in range(0, 7):
            if u == 0:
                sL.spread(xdma(2), 0, 6, 7); sL.spread(wdma('Q1', 2), 7, 10, 11)
            else:
                assert bar_gap[('Q1', u)] == 32 * u - 9
                sL.spread(xdma(u + 2), 32 * u - 10, 32 * u, 32 * u + 1)
                sL.spread(wdma('Q1', u + 2), 32 * u + 1, 32 * u + 6, 32 * u + 7)
            if u == 6:
                for t in range(2): sL.spread(wdma('Q2', t), 199 + 6 * t, 205 + 6 * t, 206 + 6 * t)
            sL.spread(win[u], wlo[u], whi[u], whi[u] + 1)
        cur = 0
        for t in range(2, 9):
            lo2 = max(cur, bar_gap[q2_after[t]] + 1)
            sL.spread(wdma('Q2', t), lo2, lo2 + QSP, lo2 + QSP + 1)
            cur = lo2 + QSP
        cur = max(cur, bar_gap[('Q2', 2)] + 1)
        FB = [236, 252]
        sa = []; a_ = sa.append
        a_(salu('s_and_b32', ja, 's2', 1))
        a_(salu('s_lshl_b32', ja, ja, 3))
        a_(salu('s_bfe_u32', jb, 's2', hex(3 | (3 << 16))))
        a_(salu('s_add_u32', ja, ja, jb))
        a_(salu('s_lshr_b32', jb, 's2', 6))
        a_(salu('s_lshl_b32', ja, ja, 2))
        a_(salu('s_add_u32', ja, ja, jb))
        for u in range(1, 4):
            a_(salu('s_add_u32', jb, sQ, u))
            a_(salu('s_and_b32', jb, jb, 3))
            a_(salu('s_lshl_b32', jc, ja, 2))
            a_(salu('s_add_u32', jb, jb, jc))
            a_(salu('s_lshl_b32', jb, jb, 2))
            a_(salu('s_add_u32', jb, jb, sWv))
            a_(salu('s_mul_i32', jb, jb, 6144))
            a_(salu('s_add_u32', SEND[u - 1], jb, WS_R + (u - 1) * 2048))
        a_(salu('s_lshl_b32', jb, ja, 2))
        a_(salu('s_add_u32', jb, jb, sWv))
        a_(salu('s_lshl_b32', jb, jb, 12))
        a_(salu('s_lshl_b32', jc, sQ, 10))
        a_(salu('s_add_u32', jb, jb, jc))
        a_(salu('s_add_u32', sSend8, jb, WS_R8))
        def send1(slot, reg, tag):
            if slot == 8: return bstore(reg, V(vH), sWS, sSend8, tag=tag, flags=SC)
            return bstore(reg, V(vH), sWS, SEND[(slot >> 1) - 1], off=(slot & 1) * 1024, tag=tag, flags=SC)
        for k in range(4): a_(valu('v_mov_b32', V(FB[1] + k), -1))
        sa += [send1(sl, V(FB[1], 4), 'jst') for sl in range(2, 9)]
        a_(salu('s_lshl_b32', ja, 's2', 2))
        a_(salu('s_add_u32', ja, ja, sWv))
        a_(salu('s_lshl_b32', jb, ja, 11))
        a_(salu('s_add_u32', jb, jb, WS_Y2))
        for k in range(2): a_(bstore(V(FB[1], 4), V(vH), sWS, jb, off=1024 * k, tag='jst', flags=SC))
        a_(salu('s_lshl_b32', jb, ja, 10))
        a_(salu('s_add_u32', jb, jb, WS_Y2 + 512 * 4096))
        a_([salu('s_cmp_lt_u32', 's2', 64), Inst("s_cselect_b64 exec, -1, 0", 'salu', rd=['scc'], wr=['exec']),
            bstore(V(FB[1], 4), V(vH), sWS, jb, tag='jst', flags=SC), smov64('exec', '-1')])
        gJ = bar_gap[('J', 0)]
        sJ.spread(sa, 286, gJ - 50, gJ - 44)
        sJ.add(fj1, gJ + 1, gJ + 3)
        lst = []
        for t in range(4): lst += sdma(t)
        assert cur > bar_gap[('Q2', 2)]
        sL.spread(lst, cur + 4, cur + 24)
        gC3 = bar_gap[('C3', 0)]
        assert gC3 >= 2 * (144 + 108 + 15) + 1
        lst = []
        for t in range(4, 9): lst += sdma(t)
        sL.spread(lst, gC3 + 1, gC3 + 16)
        g_S = 288; g_Q2 = [288 + 72 * c for c in range(5)]
        EP = [(0, HS, 0, g_Q2[1] - 2), (1, HS, 1024, g_Q2[2] - 2), (2, HS, 2048, g_Q2[3] - 2), (3, HS, 3072, g_Q2[4] - 2),
              (4, HS + 2, 0, 515), (0, HS + 2, 1024, 600), (1, HS + 4, 0, 630), (2, HS + 4, 1024, 668)]
        for k, (st, so, off, dl) in enumerate(EP):
            sE.spread(epi(st, so, off, k), g_S + 3 + (k * 356) // 8, g_S + 3 + ((k + 1) * 356) // 8, dl)

        C0 = 648
        NCU = 6 if three else 4
        G2 = C0 + 36 * NCU
        CACC = 160; CACC2 = 128; ET = 192
        GACC = 32; WF2 = 104; RECV = 128
        vA = [236, 237, 238, 239]; vB = 240; vE = 241; vY = 249; vHl = 250; vR1 = 251; vR2 = 252; vRW = 253; vRR = 254; vP = 255
        def bufA(b, k1): return V(32 + 4 * k1, 4) if b == 0 else A(192 + 4 * k1, 4)
        def bufB(b, dl): return V(64 + 4 * dl, 4) if b == 0 else A(224 + 4 * dl, 4)
        def breg(b, base, n): return V(base + 32, n) if b == 0 else A(base + 192, n)
        SCR0 = 98304; SCRW = 12928; SCR3 = 16384
        cs = []; a_ = cs.append
        a_(salu('s_lshl_b32', WI[1], sWv, 13))
        a_(salu('s_add_u32', WI[1], WI[1], WS_FJ1))
        a_(valu('v_lshlrev_b32', V(CACC + 17), 7, V(vL)))
        l1, c1 = poll('J1', lambda: bload(V(CACC + 16), V(CACC + 17), sWS, WI[1], width=1, tag=('poll', 'J1'), flags=SC), [CACC + 16], True)
        a_(l1)
        kS0 = next(i for i, it in enumerate(sF.items) if it.at == bar_gap[('S', 0)] and not isinstance(it.ins, list) and it.ins.kind == 'barrier')
        sF.items[kS0].ins = c1 + [sF.items[kS0].ins]
        a_(salu('s_lshr_b32', ja, sWv, 1))
        a_(salu('s_mul_i32', sScr, ja, SCRW))
        a_(salu('s_add_u32', sScr, sScr, SCR0))
        a_(salu('s_lshl_b32', jb, 's2', 1))
        a_(salu('s_add_u32', jb, jb, ja))
        a_(salu('s_and_b32', jc, sWv, 1))
        a_(salu('s_lshl_b32', 's78', jb, 12))
        a_(salu('s_lshl_b32', 's79', jc, 11))
        a_(salu('s_add_u32', 's78', 's78', 's79'))
        a_(salu('s_add_u32', sYb, 's78', WS_Y2))
        a_(salu('s_lshl_b32', ja, 's2', 2))
        a_(raw(f's_load_dword {sDv}, s[{pD}:{pD+1}], {ja}', 'smem', rd=[ja], wr=[sDv]))
        a_(salu('s_lshl_b32', 's80', jc, 8))
        a_(salu('s_add_u32', 's80', 's80', sScr))
        t0, t1, t2, t3 = CACC + 20, CACC + 21, CACC + 22, CACC + 23
        a_(valu('v_lshrrev_b32', V(t0), 4, V(vL)))
        a_(valu('v_and_b32', V(t1), 15, V(vL)))
        a_(valu('v_lshlrev_b32', V(vHl), 9, V(t0)))
        a_(valu('v_lshl_add_u32', V(vHl), V(t1), 4, V(vHl)))
        a_(valu('v_lshl_add_u32', V(t2), V(t0), 3, V(t1)))
        a_(valu('v_add_u32', V(t2), 1, V(t2)))
        a_(valu('v_and_b32', V(t3), 1, V(t2)))
        a_(valu('v_lshrrev_b32', V(t2), 1, V(t2)))
        a_(valu('v_mul_u32_u24', V(t3), 4160, V(t3)))
        a_(valu('v_lshl_add_u32', V(t3), V(t2), 2, V(t3)))
        a_(valu('v_add_u32', V(vA[0]), 's80', V(t3)))
        for b in range(1, 4): a_(valu('v_add_u32', V(vA[b]), 1024 * b, V(vA[0])))
        a_(valu('v_lshlrev_b32', V(t2), 5, V(t1)))
        a_(valu('v_lshlrev_b32', V(t3), 4, V(t0)))
        a_(valu('v_sub_u32', V(t3), V(t3), V(t2)))
        a_(salu('s_add_u32', ja, 's80', 8320 + 480))
        a_(valu('v_add_u32', V(vB), ja, V(t3)))
        a_(valu('v_lshl_add_u32', V(vY), V(t0), 3, V(t2)))
        a_(salu('s_add_u32', ja, sScr, 8320 + 504))
        a_(salu('s_sub_u32', ja, ja, 's79'))
        a_(valu('v_sub_u32', V(vE), ja, V(vY)))
        a_(valu('v_add_u32', V(vR1), 65536, V(vH)))
        a_(valu('v_add_u32', V(vR2), 131072, V(vH)))
        a_(salu('s_lshl_b32', ja, sWv, 12))
        a_(valu('v_add_u32', V(vRW), ja, V(vH)))
        a_(valu('v_xor_b32', V(vRR), 4096, V(vRW)))
        a_(valu('v_and_b32', V(vP), 7, V(vL)))
        a_(valu('v_lshlrev_b32', V(vP), 2, V(vP)))
        sJ.spread(cs, 517, gC3 + 12, gC3 + 15)
        def conv_loads(nk, sOff, sBase, sPart, R0, R1, chk):
            r = []
            r += mksrd(sU, pSSM, 576 * 4096)
            for i in range(nk):
                r.append(bload(V(R0 + 4 * i, 4), V(vH), sU, sOff, off=i * 1024, tag='cr'))
                r.append(bload(V(R1 + 4 * i, 4), V(vH), sU, sOff, off=i * 1024 + 4, tag='cr'))
            r.append(salu('s_add_u32', tL, sBase, sPart))
            r.append(salu('s_add_u32', 'm0', tL, 32))
            for i in range(nk): r.append(bload_lds(V(vH), sU, sOff, off=i * 1024, tag='cin'))
            if chk: r.append(chk)
            r.append(salu('s_add_u32', 'm0', tL, 8320))
            r.append(salu('s_add_u32', tL, sOff, WS_UR))
            for i in range(nk): r.append(bload_lds(V(vH), sWS, tL, off=i * 1024, tag='cin', flags=SC))
            return r
        def conv_prep(nk, sBase, sPart, R0, R1, T):
            r = []; b_ = r.append
            b_(valu('v_mov_b32', V(T), 0))
            b_(valu('v_mov_b32', V(T + 1), 0))
            b_(valu('v_lshrrev_b32', V(T + 2), 1, V(vH)))
            b_(salu('s_add_u32', ja, sBase, 8320 + 4096))
            b_(valu('v_add_u32', V(T + 2), ja, V(T + 2)))
            b_(dswrite('ds_write_b64', V(T + 2), V(T, 2), tag='cw'))
            b_([salu('s_cmp_eq_u32', sPart, 0), salu('s_cselect_b32', ja, 0, 4128)])
            b_(salu('s_add_u32', ja, ja, sBase))
            b_(valu('v_add_u32', V(T + 2), ja, V(vP)))
            b_(dswrite('ds_write_b32', V(T + 2), V(T), tag='cw'))
            b_(salu('s_add_u32', ja, sBase, sPart))
            b_(salu('s_add_u32', ja, ja, 4160 + 32))
            b_(valu('v_add_u32', V(T + 3), ja, V(vH)))
            for i in range(4 * nk):
                ins = valu('v_alignbit_b32', V(R1 + i), V(R1 + i), V(R0 + i), 16)
                if i == 0: ins.need(vm=['cr'])
                b_(ins)
            b_(valu('v_readfirstlane_b32', jb, V(R0)))
            for i in range(nk): b_(dswrite('ds_write_b128', V(T + 3), V(R1 + 4 * i, 4), off=i * 1024, tag='cw'))
            b_(salu('s_lshl_b32', jb, jb, 16))
            b_(valu('v_mov_b32', V(T + 1), jb))
            b_([valu('v_cmp_eq_u32', 'vcc', 28, V(vP)), valu('v_cndmask_b32', V(T + 1), V(T), V(T + 1), 'vcc')])
            b_(dswrite('ds_write_b32', V(T + 2), V(T + 1), off=4160, tag='cw'))
            return r
        cl_ = conv_loads(2, 's78', sScr, 's79', CACC, CACC + 8, None)
        sL.spread(cl_[:-4], gC3 + 17, gC3 + 30, gC3 + 34)
        gU = max(gC3 + 31, bar_gap[('S', 0)] + 1)
        sL.spread(cl_[-4:], gU, gU + 6, gU + 8)
        gCB = 634
        sJ.spread(conv_prep(2, sScr, 's79', CACC, CACC + 8, CACC + 24), gCB - 34, gCB - 4, gCB - 2)
        fhe = flagstore([], sFH, tagneed=[('h', 5)], vd=CACC + 28)
        ts = []; a_ = ts.append
        a_(salu('s_and_b32', ja, 's2', 1))
        a_(salu('s_lshl_b32', ja, ja, 3))
        a_(salu('s_bfe_u32', jb, 's2', hex(3 | (3 << 16))))
        a_(salu('s_add_u32', ja, ja, jb))
        a_(salu('s_lshr_b32', jb, 's2', 6))
        a_(salu('s_add_u32', jc, ja, jb))
        a_(salu('s_and_b32', jc, jc, 3))
        a_(salu('s_mul_i32', sM0, jc, 3))
        a_(salu('s_add_u32', sM0, sM0, 1))
        a_(salu('s_lshr_b32', GSEQ[0], sM0, 1))
        for n in range(1, 6):
            a_(salu('s_add_u32', GSEQ[n], GSEQ[n - 1], 1))
            a_([salu('s_cmp_eq_u32', GSEQ[n], 6), salu('s_cselect_b32', GSEQ[n], 0, GSEQ[n])])
        a_([salu('s_cmp_eq_u32', jc, 3), salu('s_cselect_b32', jc, 0, jc)])
        a_(salu('s_add_u32', GSEQ[6], jc, 6))
        for n in range(7, 9):
            a_(salu('s_add_u32', GSEQ[n], GSEQ[n - 1], 1))
            a_([salu('s_cmp_eq_u32', GSEQ[n], 9), salu('s_cselect_b32', GSEQ[n], 6, GSEQ[n])])
        a_(salu('s_mul_i32', jc, sQ, 1296))
        a_(salu('s_mul_i32', jb, jb, 9))
        a_(salu('s_add_u32', jc, jc, jb))
        a_(salu('s_lshl_b32', sWq, jc, 10))
        a_(salu('s_lshl_b32', jb, ja, 2))
        a_(salu('s_add_u32', jb, jb, sWv))
        a_(salu('s_mul_i32', jb, jb, 288))
        a_(salu('s_mul_i32', jc, sQ, 72))
        a_(salu('s_add_u32', jb, jb, jc))
        a_(salu('s_lshl_b32', sHb, jb, 10))
        GW = TT + [sTB, sWcur]; sW4k = sHcur
        for n in range(9):
            a_(salu('s_mul_i32', GW[n], GSEQ[n], 147456))
            a_(salu('s_add_u32', GW[n], GW[n], sWq))
            a_(salu('s_lshl_b32', GSEQ[n], GSEQ[n], 13))
            a_(salu('s_add_u32', GSEQ[n], GSEQ[n], sHb))
        a_(salu('s_lshr_b32', jb, ja, 1))
        a_(salu('s_lshl_b32', jb, jb, 2))
        a_(salu('s_add_u32', jb, jb, sQ))
        a_(salu('s_lshl_b32', jb, jb, 2))
        a_(salu('s_and_b32', jc, ja, 1))
        a_(salu('s_lshl_b32', jc, jc, 1))
        a_(salu('s_add_u32', jb, jb, jc))
        a_(salu('s_lshr_b32', jc, sWv, 1))
        a_(salu('s_add_u32', jb, jb, jc))
        a_(salu('s_lshl_b32', jb, jb, 7))
        a_(salu('s_add_u32', sM0X, jb, WS_FHE))
        a_(salu('s_lshl_b32', sW1k, sWv, 10))
        a_(salu('s_lshl_b32', sW4k, sWv, 12))
        vU = [ADR + 1 + j for j in range(5)]; vHl2 = ADR + 6
        SOFF = [0, 1024, 0, 1024, 2048, 3072, 0, 1024, 2048]
        ts2 = []; a_ = ts2.append
        a_(salu('s_mul_i32', ja, sWv, 36864))
        a_(salu('s_add_u32', ja, ja, WS_W2T))
        for j in range(4):
            a_(salu('s_add_u32', jb, sQ, j))
            a_(salu('s_and_b32', jb, jb, 3))
            a_(salu('s_lshl_b32', jb, jb, 11))
            a_(salu('s_add_u32', jb, jb, ja))
            if SOFF[2 * j]: a_(salu('s_sub_u32', jb, jb, SOFF[2 * j]))
            a_(valu('v_add_u32', V(vU[j]), jb, V(vH)))
        a_(salu('s_add_u32', jb, ja, 8192 - SOFF[8]))
        a_(valu('v_add_u32', V(vU[4]), jb, V(vH)))
        a_(valu('v_add_u32', V(vHl2), 4096, V(vHl)))
        items_after = [it for it in sJ.items if it.at >= gCB - 34]
        sJ.items = [it for it in sJ.items if it.at < gCB - 34]
        sJ.spread(ts, gC3 + 16, 584, 586)
        sJ.spread(ts2, 585, gCB - 37, gCB - 35)
        sJ.items += items_after
        sM = Stream('misc', 5)
        sM.add(fhe, 612, 624)
        dv = [raw('s_waitcnt lgkmcnt(0)', 'drain_lg'), salu('s_lshl_b32', ja, sDv, 16), salu('s_and_b32', sDv, sDv, sMask),
              salu('s_cmp_lt_u32', sWv, 2), salu('s_cselect_b32', sDv, ja, sDv)]
        cb = dv + [barrier().need(vm=['cin'], lg=['cw'])]
        k = next(i for i, it in enumerate(sF.items) if it.at >= gCB)
        sF.items.insert(k, Item(cb, gCB, gCB))
        def creads(un):
            b = un & 1
            k0 = un if un < 4 else un - 4
            def ar(k1):
                o = (k1 & 1) * 128 + 16 * k0
                return [dsread('ds_read2_b32', breg(b, 4 * k1 + 2 * t, 2), V(vA[k1 >> 1]), offtext=f"offset0:{o+2*t} offset1:{o+2*t+1}", tag=('c', un)) for t in range(2)]
            def br(dl):
                return [dsread('ds_read_b128', bufB(b, dl), V(vB), off=512 * (7 - dl) + 64 * k0, tag=('c', un))]
            r = ar(0)
            for dl in range(8): r += br(dl)
            for k1 in range(1, 8): r += ar(k1)
            return r
        sC = Stream('conv', 1)
        sC.spread(creads(0), gCB + 1, 646, 646)
        mf.append(None); mf.pop()
        for un in range(NCU):
            b = un & 1
            ca = CACC if un < 4 else CACC2
            first = True
            for k1 in range(8):
                for c in range(k1, 8):
                    a = V(ca + 4 * c, 4)
                    m = mfma16(a, bufA(b, k1), bufB(b, c - k1), '0' if (un in (0, 4) and k1 == 0) else a)
                    if first: m.need(lg=[('c', un)]); first = False
                    mf.append(m)
        sE.spread(epi(3, HS + 6, 0, 8), C0 + 2, C0 + 100, C0 + 138)
        fhl = flagstore([], sFH, tagneed=[('h', 8)], vd=vW, off=64)
        gPS = C0 + 4
        ps = barrier()
        if three:
            R0, R1, T3 = WF, WF + 4, WF + 8
            c3 = [salu('s_add_u32', 's78', 's2', 512), salu('s_lshl_b32', 's78', 's78', 12), salu('s_add_u32', 's78', 's78', sW1k),
                  salu('s_mov_b32', 's79', SCR3)]
            sL.spread(c3 + conv_loads(1, 's78', 's79', sW1k, R0, R1, None), C0 + 1, C0 + 16, C0 + 20)
            sJ.spread(conv_prep(1, 's79', sW1k, R0, R1, T3), C0 + 70, C0 + 100, C0 + 104)
        for un in range(1, NCU):
            g = C0 + 36 * (un - 1)
            lst = creads(un)
            if un == 1: sC.add(ps, gPS, gPS)
            if un == 4:
                dl_ = [salu('s_lshl_b32', 's86', sWv, 7), salu('s_add_u32', 's86', 's86', SCR3), salu('s_sub_u32', 's86', 's86', 's80')]
                dl_ += [valu('v_add_u32', V(x), 's86', V(x)) for x in vA + [vB]]
                lst = [dl_, barrier().need(vm=['cin'], lg=['cw'])] + lst
            sC.spread(lst, g + (gPS - C0 + 1 if un == 1 else 1), g + 31, g + 33)
        def swaps(lab, cond, pairs):
            return [Inst('v_nop', 'valu', rd=[V(x) for p_ in pairs for x in p_]), cond, raw(f's_cbranch_scc0 {lab}{tagp}', 'branch')] + [Inst(f"v_swap_b32 v{x}, v{y}", 'valu', rd=[V(x), V(y)], wr=[V(x), V(y)]) for x, y in pairs] + [label(f'{lab}{tagp}')]
        def cfin(ca, nblk, nsrc, rdaddr, rdoff, tagr):
            r = []
            RC = ET; KV = ET + 16; T = ET + 24
            for t in range(nblk): r.append(dsread('ds_read_b64', V(KV + 2 * t, 2), V(vE), off=512 * (7 - t), tag=('e', tagr)))
            per = 4 // nblk if nsrc > 1 else 1
            seq = [(t, u) for u in range(nsrc) for t in range(nblk)]
            for base in range(0, len(seq), 4):
                grp = seq[base:base + 4]
                for z, (t, u) in enumerate(grp): r.append(dsread('ds_read_b128', V(RC + 4 * z, 4), V(rdaddr), off=rdoff(t, u), tag=('rr', tagr, base)))
                for z, (t, u) in enumerate(grp):
                    for k in range(4):
                        ins = valu('v_add_f32', V(ca + 4 * t + k), V(ca + 4 * t + k), V(RC + 4 * z + k))
                        if z == 0 and k == 0: ins.need(lg=[('rr', tagr, base)])
                        r.append(ins)
            for t in range(nblk):
                lo, hi = KV + 2 * t, KV + 2 * t + 1
                r.append(valu('v_and_b32', V(T), sMask, V(hi)))
                r.append(valu('v_lshlrev_b32', V(T + 1), 16, V(hi)))
                r.append(valu('v_and_b32', V(T + 2), sMask, V(lo)))
                r.append(valu('v_lshlrev_b32', V(T + 3), 16, V(lo)))
                for k in range(4): r.append(valu('v_fmac_f32', V(ca + 4 * t + k), sDv, V(T + k)))
                r.append(valu('v_cvt_pk_bf16_f32', V(lo), V(ca + 4 * t), V(ca + 4 * t + 1)))
                r.append(valu('v_cvt_pk_bf16_f32', V(hi), V(ca + 4 * t + 2), V(ca + 4 * t + 3)))
                r.append(bstore(V(lo, 2), V(vY), sWS, sYb, off=512 * t, width=2, tag='yst', flags=SC))
            return r
        E1 = C0 + 144
        e1 = [swaps('SW1', salu('s_bitcmp1_b32', sWv, 0), [(CACC + k, CACC + 16 + k) for k in range(16)])]
        e1 += [dswrite('ds_write_b128', V(vRW), V(CACC + 16 + 4 * t, 4), off=1024 * t, tag='rw1') for t in range(4)]
        sM.add(fhl, C0 + FHLG, C0 + FHLG + 4)
        sE.spread(e1, E1 + 3, E1 + 12, E1 + 14)
        xbars = []
        if SEGV == 1:
            segs = [[(gn, [2, 3, 4, 5]), (gn, [6, 7, 8])] for gn in range(6)]
            segs += [[(gn, sl) for gn in (6, 7, 8)] for sl in ([2, 3], [4, 5], [6, 7, 8])]
        elif SEGV == 0:
            segs = [[(gn, [2, 3, 4, 5]), (gn, [6, 7, 8])] for gn in range(9)]
        elif SEGV == 2:
            segs = [[(gn, [2, 3, 4, 5]), (gn, [6, 7, 8])] for gn in range(3)]
            segs += [[(gn, [2, 3, 4, 5]) for gn in (3, 4)], [(5, [2, 3, 4, 5]), (6, [2, 3]), (7, [2, 3])], [(8, [2, 3]), (6, [4, 5]), (7, [4, 5]), (8, [4, 5])]]
            segs += [[(gn, [6, 7, 8]) for gn in gg] for gg in ((3, 4), (5, 6), (7, 8))]
        segs += [[(gn, [0, 1]) for gn in gg] for gg in ((0, 1, 2), (3, 4, 5), (6, 7, 8))]
        blocks = [b for sg in segs for b in sg]
        fr2 = []; bf = []; bneed_vm = []; blk_seg = []; blk_last = []
        for si, sg in enumerate(segs):
            bf.append(len(fr2)); bneed_vm.append([])
            for (gn, sl) in sg:
                bi = len(blk_seg); blk_seg.append(si); bneed_vm[-1].append(('u', bi))
                for kw in range(4):
                    for c, s_ in enumerate(sl): fr2.append((4 * gn + kw, s_, bi, kw, c))
                blk_last.append(len(fr2) - 1)
        NF2 = 324
        assert len(fr2) == NF2
        def gacc(slot, mh): return V(GACC + 8 * slot + 4 * mh, 4)
        hneed = {}; sfirst = set(); slast = {}
        for f, (k, s_, bi, kw, c) in enumerate(fr2):
            for mh in range(2):
                a = gacc(s_, mh)
                m = mfma16(a, V(WF2 + 4 * (f % NB2), 4), hreg(k, mh), a if s_ in sfirst else '0')
                if mh == 0:
                    if W2 == 0: m.need(lg=[('g', f)])
                    elif f % 2 == 0: m.need(lg=[('g', min(f + 1, NF2 - 1))])
                    if k not in hneed: m.need(vm=[('hl', k)]); hneed[k] = G2 + 2 * f
                mf.append(m)
            sfirst.add(s_); slast[s_] = G2 + 2 * f + 1
        GEND = G2 + 648
        assert len(mf) == GEND
        bgap = [G2 + 2 * (f - D2) - 1 for f in bf]
        def bar_after(g):
            for i, x in enumerate(bgap):
                if x >= g: return i
            return None
        bneed_lg = [[] for f in bf]
        gR1 = E1 + 16
        fin1 = cfin(CACC, 4, 1, vRR, lambda t, u: 1024 * t, 1)
        page_free = {}
        gE0 = bar_gap[('S', 4)] + 2
        for pg in range(8, 24): page_free[pg] = gE0
        for pg in range(32, 40): page_free[pg] = gPS + 2
        if not three:
            for pg in range(4, 8): page_free[pg] = C0
            xbars.append((gR1, barrier().need(lg=['rw1'])))
            kd = max(i for i, x in enumerate(fin1) if x.kind == 'ds') + 1
            sE.spread(fin1[:kd], gR1 + 1, gR1 + 12, gR1 + 16)
            sE.spread(fin1[kd:], gR1 + 16, gR1 + 80, gR1 + 100)
            i1 = bar_after(gR1 + 20); bneed_lg[i1].append(('e', 1))
            for pg in range(24, 32): page_free[pg] = bgap[i1] + 1
        else:
            sC.items.insert(next(i for i, it in enumerate(sC.items) if it.at >= gR1), Item(barrier().need(lg=['rw1']), gR1, gR1))
            sE.spread(fin1, gR1 + 1, gR1 + 50, gR1 + 52)
            E2 = C0 + 216
            e2 = [swaps('SW2', salu('s_bitcmp1_b32', sWv, 1), [(CACC2 + k, CACC2 + 16 + k) for k in range(16)]),
                  swaps('SW3', salu('s_bitcmp1_b32', sWv, 0), [(CACC2 + k, CACC2 + 8 + k) for k in range(8)] + [(CACC2 + 16 + k, CACC2 + 24 + k) for k in range(8)])]
            e2 += [salu('s_add_u32', ja, 's2', 512), salu('s_lshr_b32', ja, ja, 1), salu('s_lshl_b32', ja, ja, 2),
                   raw(f's_load_dword {sDv}, s[{pD}:{pD+1}], {ja}', 'smem', rd=[ja], wr=[sDv]),
                   salu('s_add_u32', sYb, 's78', WS_Y2),
                   salu('s_sub_u32', ja, SCR3 + 8320 + 504, sW1k), valu('v_sub_u32', V(vE), ja, V(vY)),
                   salu('s_mul_i32', ja, sWv, 6144), salu('s_add_u32', ja, ja, SCR0), valu('v_add_u32', V(vRR), ja, V(vH))]
            bneed_lg[0].append(('e', 1))
            for u in range(1, 4):
                e2 += [salu('s_xor_b32', ja, sWv, u), salu('s_mul_i32', ja, ja, 6144), salu('s_add_u32', ja, ja, SCR0 + (u - 1) * 2048), valu('v_add_u32', V(vRW), ja, V(vH))]
                e2 += [dswrite('ds_write_b128', V(vRW), V(CACC2 + 8 * u + 4 * t, 4), off=1024 * t, tag='rw2') for t in range(2)]
            sE.spread(e2, E2 + 3, E2 + 30, E2 + 34)
            gR2 = E2 + 36
            dv2 = [raw('s_waitcnt lgkmcnt(0)', 'drain_lg'), salu('s_lshl_b32', ja, sDv, 16), salu('s_and_b32', sDv, sDv, sMask),
                   salu('s_bitcmp0_b32', 's2', 0), salu('s_cselect_b32', sDv, ja, sDv)]
            xbars.append((gR2, dv2 + [barrier().need(lg=['rw2'])]))
            fin2 = cfin(CACC2, 2, 3, vRR, lambda t, u: 2048 * u + 1024 * t, 2)
            kd = max(i for i, x in enumerate(fin2) if x.kind == 'ds') + 1
            sE.spread(fin2[:kd], gR2 + 1, gR2 + 30, gR2 + 34)
            sE.spread(fin2[kd:], gR2 + 34, gR2 + 70, gR2 + 90)
            i1 = bar_after(gR2 + 38); bneed_lg[i1] += [('e', 2), ('rr', 2, 4)]
            for pg in list(range(24, 32)) + [4, 5, 6, 7]: page_free[pg] = bgap[i1] + 1
        bcol = {}; bearly = {}
        pf = dict(page_free)
        for bi, (gn, sl) in enumerate(blocks):
            n = len(sl)
            best = min(((max(pf[p + j] for j in range(n)), p) for p in pf if (p & 3) + n <= 4 and (n != 2 or p % 2 == 0)))
            bearly[bi], bcol[bi] = best
            i = bar_after(G2 + 2 * blk_last[bi] + 1)
            for j in range(n): pf[bcol[bi] + j] = 10**9 if i is None else bgap[i] + 1
        def g2read(f):
            k, s_, bi, kw, c = fr2[f]
            addr = (bcol[bi] >> 2) * 16384 + kw * 4096 + ((bcol[bi] & 3) + c) * 1024
            return dsread('ds_read_b128', V(WF2 + 4 * (f % NB2), 4), V([vH, vR1, vR2][addr >> 16]), off=addr & 65535, tag=('g', f))
        sG = Stream('g2frag', 0)
        xb = sorted(xbars, key=lambda x: x[0])
        for f in range(NF2):
            g0 = G2 + 2 * (f - D2)
            while xb and xb[0][0] <= g0 - 1:
                sG.add(xb[0][1], xb[0][0], xb[0][0]); xb.pop(0)
            if f in bf:
                i = bf.index(f)
                sG.add(stamp(26 + i) + [barrier().need(vm=bneed_vm[i], lg=bneed_lg[i])], g0 - 1, g0 - 1)
            sG.add(g2read(f), g0, g0)
        assert not xb
        def udma(bi, c):
            gn, sl = blocks[bi]
            r = []
            if c == 0: r.append(salu('s_add_u32', 'm0', sW4k, (bcol[bi] >> 2) * 16384 + (bcol[bi] & 3) * 1024 - SOFF[sl[0]]))
            assert SOFF[sl[c]] == SOFF[sl[0]] + 1024 * c
            r.append(bload_lds(V(vU[sl[c] >> 1]), sWS, GW[gn], off=SOFF[sl[c]], tag=('u', bi), flags=fUL))
            return r
        def hld(k):
            return [bload(hreg(k, mh), V(vHl2 if k & 2 else vHl), sWS, GSEQ[k >> 2], off=(k & 1) * 2048 + mh * 256, tag=('hl', k), flags=fHL) for mh in range(2)]
        def ld_fh(off, name):
            def mk(): return bload(V(ADR), V(vP), sWS, sM0X, off=64 * off, width=1, tag=('poll', name), flags=SC)
            return mk
        lhe, che = poll('HE', ld_fh(0, 'HE'), [ADR], False)
        lhl, chl = poll('HL', ld_fh(1, 'HL'), [ADR], False)
        gHE = C0 + GHE
        gHL = G2 + GHL
        def plan_loads(fl):
            uq = [(bgap[blk_seg[bi]], bearly[bi], 'u', (bi, c)) for bi, (gn, sl) in enumerate(blocks) for c in range(len(sl))]
            hq = []
            for k in range(36):
                ea = gHE if k < 24 else gHL
                if k >= 28: ea = max(ea, G2 + 1)
                hq.append((hneed[k], ea, 'h', k))
            late = [it for it in sL.items if it.at >= C0]
            sL.items = [it for it in sL.items if it.at < C0]
            g = gE0
            while uq[0][1] <= gE0 and (g < C0 - 8 or uq[0][3][1] != 0):
                for ins in udma(*uq.pop(0)[3]): sL.add(ins, g, int(g) + 2)
                g += EPACE
            assert g < C0
            sL.items += late
            g = C0 + (22 if three else 1)
            did = set()
            slack = (10**9, None)
            while uq or hq or 'fl' not in did:
                if 'lhe' not in did and g >= gHE - 40: sL.add(lhe, g, int(g) + LDL); did.add('lhe'); g += 1
                if 'lhl' not in did and g >= gHL - 40 and 'che' in did:
                    sL.add(lhl, g, int(g) + LDL); did.add('lhl'); g += 1
                if 'fl' not in did and g >= G2 + FLG and (not uq or uq[0][3][1] == 0):
                    for j, x in enumerate(fl): sL.add(x, g + j, int(g) + j + LDL)
                    g += len(fl); did.add('fl')
                cand = [q_ for q_ in (uq, hq) if q_ and q_[0][1] <= g]
                if not cand:
                    g = g + 1; continue
                q_ = min(cand, key=lambda z: z[0][0])
                need, ea, kind, ix = q_.pop(0)
                if kind == 'h' and ix == 0: sL.add(che, g); did.add('che')
                if kind == 'h' and ix == 24: sL.add(chl, g)
                for ins in (udma(*ix) if kind == 'u' else hld(ix)):
                    sL.add(ins, g, min(need - 24, int(g) + LDL))
                    if ins.kind in ('vmem', 'vmem_lds'):
                        slack = min(slack, (need - g, (kind, ix)))
                        g += PACE
            if verbose: print(tagp, "load stream ends at G2+%d, min slack %s" % (g - G2, slack))
            return g
        GA = G2 + 504
        QR = ET; YR = ET + 10; GR = ET + 20; FT = CACC
        fs = []; a_ = fs.append
        vQ, vG, vY2, vYR = vA[0], vA[1], vA[2], vA[3]
        sQ0, sQ1, sQ8, sG0, sRc, sRc8 = f's{HS}', f's{HS+1}', f's{HS+2}', f's{HS+3}', f's{HS+4}', f's{HS+5}'
        sY0, sY8 = f's{HS+6}', f's{HS+7}'
        a_(valu('v_and_b32', V(vG), 15, V(vL)))
        a_(valu('v_mul_u32_u24', V(vQ), 1152, V(vG)))
        a_(valu('v_lshrrev_b32', V(vY2), 4, V(vL)))
        a_(valu('v_lshl_add_u32', V(vQ), V(vY2), 3, V(vQ)))
        a_(valu('v_lshlrev_b32', V(vG), 2, V(vG)))
        a_(valu('v_lshrrev_b32', V(vY2), 2, V(vL)))
        a_(valu('v_lshlrev_b32', V(vYR), 6, V(vY2)))
        a_(valu('v_lshlrev_b32', V(vY2), 12, V(vY2)))
        a_(valu('v_and_b32', V(vB), 3, V(vL)))
        a_(valu('v_lshl_add_u32', V(vY2), V(vB), 4, V(vY2)))
        a_(valu('v_lshl_add_u32', V(vYR), V(vB), 3, V(vYR)))
        a_(salu('s_lshl_b32', ja, sWv, 12))
        a_(valu('v_add_u32', V(vYR), ja, V(vYR)))
        a_(salu('s_and_b32', ja, 's2', 1))
        a_(salu('s_lshl_b32', ja, ja, 3))
        a_(salu('s_bfe_u32', jb, 's2', hex(3 | (3 << 16))))
        a_(salu('s_add_u32', ja, ja, jb))
        a_(salu('s_lshr_b32', jb, 's2', 6))
        a_(salu('s_lshl_b32', jc, ja, 2))
        a_(salu('s_add_u32', 's78', jc, jb))
        a_(salu('s_add_u32', ja, jc, sWv))
        a_(salu('s_lshl_b32', jc, 's78', 2))
        a_(salu('s_add_u32', 's79', jc, sQ))
        a_(salu('s_lshl_b32', 's79', 's79', 2))
        a_(salu('s_add_u32', 's79', 's79', sWv))
        a_(salu('s_mul_i32', 's79', 's79', 6144))
        a_(salu('s_add_u32', sRc, 's79', WS_R))
        a_(salu('s_add_u32', WI[1], sRc, 4096))
        a_(salu('s_add_u32', jc, jc, sWv))
        a_(salu('s_lshl_b32', jc, jc, 12))
        a_(salu('s_and_b32', 's78', sQ, 1))
        a_(salu('s_lshl_b32', 's79', 's78', 3))
        a_(salu('s_add_u32', jc, jc, 's79'))
        a_(salu('s_add_u32', sRc8, jc, WS_R8))
        a_(salu('s_mul_i32', jb, jb, 9))
        a_(salu('s_lshl_b32', jc, sQ, 1))
        a_(salu('s_add_u32', jc, jc, jb))
        a_(salu('s_add_u32', jb, jb, 8))
        a_(salu('s_mul_i32', 's79', ja, 32 * 1152))
        a_(salu('s_lshl_b32', sQ0, jc, 5))
        a_(salu('s_add_u32', sQ0, sQ0, 's79'))
        a_(salu('s_add_u32', sQ1, sQ0, 18432))
        a_(salu('s_lshl_b32', sQ8, jb, 5))
        a_(salu('s_add_u32', sQ8, sQ8, 's79'))
        a_(salu('s_mul_i32', 's79', 's78', 18432))
        a_(salu('s_add_u32', sQ8, sQ8, 's79'))
        a_(salu('s_lshl_b32', sG0, ja, 7))
        a_(salu('s_add_u32', sG0, sG0, WS_G))
        a_(salu('s_lshl_b32', ja, ja, 6))
        a_(salu('s_add_u32', ja, ja, WS_Y2))
        a_(salu('s_lshl_b32', sY0, jc, 16))
        a_(salu('s_add_u32', sY0, sY0, ja))
        a_(salu('s_lshl_b32', sY8, jb, 16))
        a_(salu('s_add_u32', sY8, sY8, ja))
        a_(salu('s_lshl_b32', 's79', 's78', 5))
        a_(salu('s_add_u32', sY8, sY8, 's79'))
        a_(salu('s_lshl_b32', 's79', 's78', 6))
        a_(salu('s_add_u32', 's79', 's79', sG0))
        fs += mksrd(sT, pOUT, 2048 * 1152)
        sJ.spread(fs, G2 + 330, G2 + 400, G2 + 410)
        fl = []; a_ = fl.append
        for tl in range(4):
            s, mh = tl >> 1, tl & 1
            a_(bload(V(QR + 2 * tl, 2), V(vQ), sX, sQ1 if mh else sQ0, off=32 * s, width=2, tag='fq'))
        a_(bload(V(QR + 8, 2), V(vQ), sX, sQ8, width=2, tag='fq'))
        for mh in range(2): a_(bload(V(GR + mh), V(vG), sWS, sG0, off=64 * mh, width=1, tag='fq', flags=SC))
        a_(bload(V(GR + 2), V(vG), sWS, 's79', width=1, tag='fq', flags=SC))
        def ydma(tmp):
            return [salu('s_lshl_b32', 'm0', sWv, 12), bload_lds(V(vY2), sWS, sY0, tag='fy', flags=SC),
                    salu('s_add_u32', tmp, sY0, 65536 - 1024), bload_lds(V(vY2), sWS, tmp, off=1024, tag='fy', flags=SC),
                    salu('s_sub_u32', tmp, sY8, 2048), bload_lds(V(vY2), sWS, tmp, off=2048, tag='fy', flags=SC)]
        fl += ydma(tL)
        def recv_loads(tag):
            r = []
            for t in range(6): r.append(bload(V(RECV + 4 * t, 4), V(vH), sWS, WI[1] if t >= 4 else sRc, off=1024 * (t & 3), tag=tag, flags=SC))
            for u in range(4): r.append(bload(V(RECV + 24 + 2 * u, 2), V(vH), sWS, sRc8, off=1024 * u, width=2, tag=tag, flags=SC))
            return r
        gLend = plan_loads(fl)
        sS = Stream('send', 1)
        gsl = 0
        for sl in sorted(range(2, 9), key=lambda x: slast[x]):
            b = GACC + 8 * sl
            lst = [valu('v_cvt_pk_bf16_f32', V(b + j), V(b + 2 * j), V(b + 2 * j + 1)) for j in range(4)] + [send1(sl, V(b, 4), 'snd')]
            gsl = max(gsl, slast[sl] + 2)
            sS.spread(lst, gsl, gsl + 5, gsl + 8)
            gsl += 5
        gPA = max(gsl + 6, int(gLend) + 2)
        rl = recv_loads('rc')
        sL.spread(rl[:4], max(gPA, GEND - RCV - 30), GEND - RCV - 20)
        sL.spread(rl[4:], max(gPA, GEND - RCV), GEND - RCV + 12)
        def yreads():
            yr = []
            for tl in range(4):
                s, mh = tl >> 1, tl & 1
                yr.append(dsread('ds_read_b64_tr_b16', V(YR + 2 * tl, 2), V(vYR), off=1024 * s + 32 * mh, tag='yr'))
            yr.append(dsread('ds_read_b64_tr_b16', V(YR + 8, 2), V(vYR), off=2048, tag='yr'))
            return yr
        YT = ET + 24
        def yfold():
            r = [valu('v_pk_max_u16', V(YT), V(YR), V(YR + 1)), valu('v_pk_max_u16', V(YT + 1), V(YR + 2), V(YR + 3))]
            for k in range(4, 10): r.append(valu('v_pk_max_u16', V(YT + (k & 1)), V(YT + (k & 1)), V(YR + k)))
            r.append(valu('v_pk_max_u16', V(YT), V(YT), V(YT + 1)))
            r.append(valu('v_lshlrev_b32', V(YT + 1), 16, V(YT)))
            r.append(valu('v_max_u32', V(YT), V(YT), V(YT + 1)))
            return r
        ycmp = lambda: valu('v_cmp_le_u32', 'vcc', sMask, V(YT))
        yr = yreads()
        yr[0].need(vm=['fy'])
        yf = yfold(); yf[0].need(lg=['yr'])
        yr += yf
        yr.append(stamp(24) + [ycmp(), raw(f's_cbranch_vccnz SLOW_Y{tagp}', 'branch'), label(f'BACK_Y{tagp}')] + stamp(25))
        slow.extend(pad_hazards([label(f'SLOW_Y{tagp}'), raw('s_sleep 4')] + ydma(jb) + [raw('s_waitcnt vmcnt(0)', 'drain_vm')] + yreads() +
                                [raw('s_waitcnt lgkmcnt(0)', 'drain_lg')] + yfold() + [ycmp()] + spin_tail(f'SLOW_Y{tagp}', f'BACK_Y{tagp}')))
        AF = GACC + 16
        pa = list(yr)
        for tl in range(5):
            gi = GR + (tl & 1 if tl < 4 else 2)
            for r_ in range(4):
                sq = V(QR + 2 * tl + (r_ >> 1)); sy = V(YR + 2 * tl + (r_ >> 1))
                d1 = V(AF + 4 * tl + r_); d2 = V(AF + 20 + r_)
                if r_ & 1: i1 = valu('v_and_b32', d1, sMask, sq); i2 = valu('v_and_b32', d2, sMask, sy)
                else: i1 = valu('v_lshlrev_b32', d1, 16, sq); i2 = valu('v_lshlrev_b32', d2, 16, sy)
                if tl == 0 and r_ == 0: i1.need(vm=['fq']); i2.need(lg=['yr'])
                pa += [i1, i2]
            for r_ in range(4): pa.append(valu('v_mul_f32', V(AF + 4 * tl + r_), V(AF + 4 * tl + r_), V(AF + 20 + r_)))
            for r_ in range(4): pa.append(valu('v_mul_f32', V(AF + 4 * tl + r_), V(AF + 4 * tl + r_), V(gi)))
        for k in range(3): pa.append(valu('v_sub_f32', V(GR + k), '1.0', V(GR + k)))
        sE.spread(pa, gPA, GEND - 4)

        log = []
        body = schedule(mf, [sF, sG, sC, sS, sL, sE, sJ, sM], log)
        if verbose:
            print(tagp, "overflow cycles total", sum(x[1] for x in log), "by region:", {k: sum(x[1] for x in log if lo <= x[0] < hi) for k, (lo, hi) in
                  {'Q1': (0, 288), 'Q2': (288, 576), 'S': (576, 648), 'conv': (648, G2), 'A': (G2, GA), 'B': (GA, GEND)}.items()})
        nb = []; n = 0
        marks = {0: 1, 288: 2, 576: 3, G2: 5, GA: 6}
        for j in range(1, 6): marks[G2 + 84 * j] = 9 + j
        for ins in body:
            if ins.kind == 'mfma':
                if n == C0:
                    nb += stamp(4)
                    nb.append(salu('s_cmp_lt_u32', 's2', 64))
                    nb.append(raw('s_cbranch_scc1 KF_THREE', 'branch'))
                    nb.append(comment('SPLIT'))
                elif n in marks: nb += stamp(marks[n])
                n += 1
            nb.append(ins)
        body = nb
        body += stamp(7)
        MX = AF + 24
        def sent(need):
            r = []
            i0 = valu('v_max3_u32', V(MX), V(RECV), V(RECV + 1), V(RECV + 2))
            if need: i0.need(vm=['rc'])
            r.append(i0)
            r.append(valu('v_max3_u32', V(MX + 1), V(RECV + 3), V(RECV + 4), V(RECV + 5)))
            for k in range(6, 32, 4):
                r.append(valu('v_max3_u32', V(MX), V(MX), V(RECV + k), V(RECV + k + 1)))
                if k + 3 < 32: r.append(valu('v_max3_u32', V(MX + 1), V(MX + 1), V(RECV + k + 2), V(RECV + k + 3)))
            r.append(valu('v_max_u32', V(MX), V(MX), V(MX + 1)))
            r.append(valu('v_cmp_eq_u32', 'vcc', -1, V(MX)))
            return r
        body += sent(True)
        body += [raw(f's_cbranch_vccnz SLOW_R{tagp}', 'branch'), label(f'BACK_R{tagp}')]
        slow.extend(pad_hazards([label(f'SLOW_R{tagp}'), raw('s_sleep 2')] + recv_loads('rc') + [raw('s_waitcnt vmcnt(0)', 'drain_vm')] + sent(False) +
                                spin_tail(f'SLOW_R{tagp}', f'BACK_R{tagp}')))
        body += stamp(8)
        UT = RECV + 32
        def unpk(d, src, r_):
            return valu('v_and_b32', V(d), sMask, V(src + (r_ >> 1))) if r_ & 1 else valu('v_lshlrev_b32', V(d), 16, V(src + (r_ >> 1)))
        for tl in [0, 1, 2, 3, 4]:
            s_, mh = tl >> 1, tl & 1
            if tl < 4:
                accb = GACC + 8 * s_ + 4 * mh
                src = [RECV + 8 * u + 4 * s_ + 2 * mh for u in range(3)]
            else:
                accb = UT + 12
                for r_ in range(4): body.append(unpk(accb + r_, RECV + 24, r_))
                src = [RECV + 24 + 2 * u for u in range(1, 4)]
            gi = GR + (mh if tl < 4 else 2)
            for u in range(3):
                for r_ in range(4): body.append(unpk(UT + 4 * u + r_, src[u], r_))
            for r_ in range(4): body.append(valu('v_add_f32', V(UT + r_), V(UT + r_), V(UT + 4 + r_)))
            for r_ in range(4): body.append(valu('v_add_f32', V(accb + r_), V(accb + r_), V(UT + 8 + r_)))
            for r_ in range(4): body.append(valu('v_add_f32', V(accb + r_), V(accb + r_), V(UT + r_)))
            for r_ in range(4): body.append(valu('v_fmac_f32', V(AF + 4 * tl + r_), V(accb + r_), V(gi)))
            body.append(valu('v_cvt_pk_bf16_f32', V(AF + 4 * tl), V(AF + 4 * tl), V(AF + 4 * tl + 1)))
            body.append(valu('v_cvt_pk_bf16_f32', V(AF + 4 * tl + 1), V(AF + 4 * tl + 2), V(AF + 4 * tl + 3)))
            if tl < 4: body.append(bstore(V(AF + 4 * tl, 2), V(vQ), sT, sQ1 if mh else sQ0, off=32 * s_, width=2))
            else: body.append(bstore(V(AF + 4 * tl, 2), V(vQ), sT, sQ8, width=2))
        if stamps:
            body.append(raw('s_waitcnt vmcnt(0)', 'drain_vm'))
            body += stamp(9)
            body += [salu('s_lshl_b32', ja, 's2', 2), salu('s_add_u32', ja, ja, sWv), salu('s_lshl_b32', ja, ja, 8), salu('s_add_u32', ja, ja, 64 << 20),
                     valu('v_lshlrev_b32', V(vT0), 2, V(vL)), bstore(V(vST), V(vT0), sWS, ja, width=1)]
        body.append(raw('s_endpgm', 'end'))
        allins = pad_hazards(insert_waits(P + body))
        return allins, slow

    two, slow2 = build(False)
    thr, slow3 = build(True)
    def split(l):
        k = next(i for i, x in enumerate(l) if x.kind == 'comment' and 'SPLIT' in x.text)
        return l[:k + 1], l[k + 1:]
    p2, s2_ = split(two); p3, s3_ = split(thr)
    assert [x.text for x in p2] == [x.text for x in p3], "prefix mismatch"
    out = p2 + s2_ + [label('KF_THREE'), nop(7)] + s3_ + slow2 + slow3 + [label('KF_END'), raw('s_endpgm', 'end')]
    return out

if __name__ == '__main__':
    ins = gen_f(verbose=True)
    print(len(ins))
```

```python
import sys, argparse
from asmlib import *
import gen_k1, gen_k0, gen_k2, gen_k3, gen_f

HEADER = open('gated_mix__ssm_conv_h3__glu_gated_swiglu__prompt.s.ref').read().split('; Override launch')[0]

def add_rt(ins, kidx):
    endl = [i for i in ins if i.kind == 'label' and i.text.endswith('_END:')][0].text[:-1]
    out = [raw('s_memrealtime s[96:97]'), raw('v_lshrrev_b32 v1, 6, v0'), raw('s_nop 0'), raw('v_readfirstlane_b32 s100, v1'), raw('s_waitcnt lgkmcnt(0)')]
    n = len(ins)
    for j, i in enumerate(ins):
        if i.kind == 'end' and j != n - 1: out.append(raw(f's_branch {endl}'))
        elif i.kind == 'end':
            out += [raw(t) for t in f"""s_waitcnt vmcnt(0) lgkmcnt(0)
s_memrealtime s[98:99]
s_load_dwordx2 s[4:5], s[0:1], 104
s_lshl_b32 s6, s2, 4
s_add_u32 s6, s6, s100
s_lshl_b32 s6, s6, 4
s_add_u32 s6, s6, {(80 << 20) + kidx * 65536 * 2}
s_waitcnt lgkmcnt(0)
s_mov_b64 exec, 1
v_mov_b32 v0, s6
v_mov_b32 v4, s96
v_mov_b32 v5, s97
v_mov_b32 v6, s98
v_mov_b32 v7, s99
global_store_dwordx4 v0, v[4:7], s[4:5]
s_endpgm""".split("\n")]
        else: out.append(i)
    return out

def kernel_text(name, ins):
    return f""".globl {name}
.p2align 8
.type {name},@function
{name}:
{render(ins)}
"""
def desc(name, nvgpr, accum, nsgpr=102):
    return f""".p2align 6
.amdhsa_kernel {name}
  .amdhsa_next_free_vgpr {nvgpr}
  .amdhsa_next_free_sgpr {nsgpr}
  .amdhsa_accum_offset {accum}
  .amdhsa_group_segment_fixed_size 0
  .amdhsa_kernarg_size 112
  .amdhsa_user_sgpr_count 2
  .amdhsa_user_sgpr_kernarg_segment_ptr 1
  .amdhsa_system_sgpr_workgroup_id_x 1
.end_amdhsa_kernel
"""
def build(kernels):
    s = HEADER
    for k in kernels:
        s += f"; @launch kernel={k[0]} grid=({k[2]},1,1) block=({k[3]},1,1) lds={k[4]}\n"
    s += '.amdgcn_target "amdgcn-amd-amdhsa--gfx950"\n.text\n'
    for k in kernels: s += kernel_text(k[0], k[1])
    s += '.section .rodata,"a"\n'
    for k in kernels: s += desc(k[0], k[5], k[6])
    return s

if __name__ == '__main__':
    ap = argparse.ArgumentParser()
    ap.add_argument('-o', default='test.s')
    ap.add_argument('--only', default='')
    ap.add_argument('--hflags', default='')
    ap.add_argument('--stamps', action='store_true')
    ap.add_argument('--norot', action='store_true')
    ap.add_argument('--pst', action='store_true')
    ap.add_argument('--rt', action='store_true')
    ap.add_argument('--fused', action='store_true')
    ap.add_argument('--opt', default='')
    ap.add_argument('--plain', action='store_true')
    a = ap.parse_args()
    ks = []
    only = a.only.split(',') if a.only else ['k0','k1','k2','k3']
    if 'k0' in only: ks.append(('k0_kernel', gen_k0.gen_k0(), 256, 256, 16384, 160, 160))
    if 'k1' in only: ks.append(('k1_kernel', gen_k1.gen_k1(hflags=a.hflags, stamps=a.stamps, rot=not a.norot, pst=a.pst), 256, 256, 163840, 512, 256))
    if 'k2' in only: ks.append(('k2_kernel', gen_k2.gen_k2(stamps=a.stamps), 256, 256, 163840, 512, 256))
    if 'k3' in only: ks.append(('k3_kernel', gen_k3.gen_k3(), 256, 576, 9216, 64, 64))
    if a.fused:
        kw = eval('dict(' + a.opt + ')')
        ks = [('kf_kernel', gen_f.gen_f(stamps=a.stamps, verbose=True, **kw), 256, 256, 163840, 512, 256)]
    if a.rt: ks = [(k[0], add_rt(k[1], i)) + k[2:] for i, k in enumerate(ks)]
    txt = build(ks)
    if a.plain:
        txt = txt.replace('; @launch kernel=kf_kernel grid', '; @launch grid').replace('kf_kernel', 'gated_mix__ssm_conv_h3__glu_gated_swiglu__prompt_kernel')
    open(a.o, 'w').write(txt)
```

```python
from asmlib import *
from sched2 import *
from layout_f import *

SC = "sc1"

def gen_f(stamps=False, rot=True, QSP=8, D=4, NB=5, D2=4, NB2=6, PACE=4.0, NBF=16, SPIN=20000, verbose=False, fHS=SC, fWS=SC, fHL=SC, fUL=SC, FHLG=210, JBF=22, GHE=60, GHL=150, LDL=6, SEGV=1, W2=1, EPACE=3, FLG=430, RCV=50, TOUCH=0, CPF=5, STQ=0, NOJOB=0):
    VX0 = 0; ACC = 32; WF = 192; TMP = 212; ADR = 220; AS0 = 232; XR = 236
    vX0 = 240; vX1 = 241; vW = 242; vS = 243; vH = 244; vT0 = 245; vT1 = 246; vST = 247; vL = 248
    pK, pV, pSK, pSSM, pD, pW2, pGW, pOUT, pDBG = 6, 8, 10, 12, 14, 22, 24, 26, 28
    sX, sW, sWS, sT, sU = S(32, 4), S(36, 4), S(40, 4), S(44, 4), S(48, 4)
    sWv, sQ, sRot, sM0, sM0S, sM0X = 's52', 's53', 's54', 's55', 's56', 's57'
    WI = ['0', 's58', 's59', 's60']
    XJ = ['0'] + [f's{60+j}' for j in range(1, 8)]
    HS = 68
    sNL, sNonce = 's76', 's77'
    sJM, sJM2 = 's[78:79]', 's[80:81]'
    tL = 's82'
    tJ = ['s83', 's84', 's85']
    sCC = 's[86:87]'
    GSEQ = ['s61', 's62', 's63', 's64', 's65', 's66', 's67', 's4', 's5']
    TT = ['s16', 's17', 's18', 's19', 's20', 's21', 's30']; sTB = 's31'
    sWq, sWcur, sHb, sHcur, sW1k = 's88', 's89', 's90', 's91', 's92'
    SEND = ['s93', 's94', 's95']; sSend8 = 's96'
    sScr, sDv, sMask, sYb, sFH = 's97', 's98', 's99', 's100', 's101'

    def xreg(s, rt):
        if s < 4: return V(VX0 + s * 8 + rt * 4, 4)
        return A((s - 4) * 8 + rt * 4, 4)
    hreg = xreg
    def acc(s, rt): return ACC + s * 32 + rt * 16
    def mksrd(srd, ptr, nbytes):
        lo = int(srd[2:srd.index(':')])
        return [salu('s_mov_b64', S(lo, 2), S(ptr, 2)), salu('s_mov_b32', f's{lo+2}', nbytes)]
    def smov64(d, s): return Inst(f"s_mov_b64 {d}, {s}", 'salu', rd=[s], wr=[d])

    def build(three):
        tagp = 'T' if three else 'D'
        slow = []
        nst = [0]
        def stamp(i, q=True):
            if not stamps: return []
            if STQ and not q: return []
            r = [raw('s_memtime s[86:87]', 'smem', wr=['s[86:87]']), raw('s_waitcnt lgkmcnt(0)', 'drain_lg'),
                 Inst(f"v_writelane_b32 v{vST}, s86, {i}", 'valu', rd=['s86', V(vST)], wr=[V(vST)])]
            if i < 10:
                r += [raw('s_memrealtime s[86:87]', 'smem', wr=['s[86:87]']), raw('s_waitcnt lgkmcnt(0)', 'drain_lg'),
                      Inst(f"v_writelane_b32 v{vST}, s86, {48 + i}", 'valu', rd=['s86', V(vST)], wr=[V(vST)])]
            return r
        def spin_tail(sl, bk):
            return [raw(f's_cbranch_vccz {bk}', 'branch'), salu('s_sub_u32', 's3', 's3', 1), raw(f's_cbranch_scc0 {sl}', 'branch'),
                    salu('s_mov_b32', 's3', 0), raw(f's_branch {bk}', 'branch')]
        def poll(name, mkload, regs, common):
            lab = name if common else name + tagp
            def cmps(need):
                r = []
                for j, rg in enumerate(regs):
                    if j == 0:
                        i = valu('v_cmp_ne_u32', 'vcc', sNonce, V(rg))
                        if need: i.need(vm=[('poll', name)])
                        r.append(i)
                    else:
                        r.append(valu('v_cmp_ne_u32', sCC, sNonce, V(rg)))
                        r.append(Inst(f"s_or_b64 vcc, vcc, {sCC}", 'salu', rd=['vcc', sCC], wr=['vcc', 'scc']))
                return r
            pi = {'J1': 16, 'J2': 18, 'HE': 20, 'HL': 22, 'Y': 24}[name]
            chk = stamp(pi, False) + cmps(True) + [raw(f's_cbranch_vccnz SLOW_{lab}', 'branch'), label(f'BACK_{lab}')] + stamp(pi + 1, False)
            if not (common and three):
                sl = [label(f'SLOW_{lab}'), raw('s_sleep 4'), mkload(), raw('s_waitcnt vmcnt(0)', 'drain_vm')] + cmps(False)
                sl += spin_tail(f'SLOW_{lab}', f'BACK_{lab}')
                slow.extend(pad_hazards(sl))
            return mkload(), chk

        P = []; e = P.append
        e(salu('s_cmp_ge_u32', 's2', 256))
        e(raw('s_cbranch_scc1 KF_END', 'branch'))
        e(raw('s_load_dwordx16 s[4:19], s[0:1], 0', 'smem', wr=['s[4:19]']))
        e(raw('s_load_dwordx8 s[20:27], s[0:1], 64', 'smem', wr=['s[20:27]']))
        e(raw('s_load_dwordx4 s[28:31], s[0:1], 96', 'smem', wr=['s[28:31]']))
        e(valu('v_lshrrev_b32', V(vT0), 6, 'v0'))
        e(valu('v_and_b32', V(vL), 63, 'v0'))
        if CPF:
            e(raw('s_getpc_b64 s[44:45]', 'salu', wr=['s[44:45]']))
            e(label('KF_PC'))
            e(salu('s_mov_b32', 's46', 'KF_END-KF_PC'))
            e(salu('s_mov_b32', 's47', 0x20000))
            e(salu('s_lshr_b32', 's88', 's2', 3))
            e(valu('v_lshl_add_u32', V(vT1), 's88', 2, V(vT0)))
            e(valu('v_lshl_add_u32', V(vT1), V(vL), 7, V(vT1)))
            e(valu('v_lshlrev_b32', V(vT1), 7, V(vT1)))
            e(smov64('exec', str((1 << CPF) - 1)))
            e(bload(V(vST if not stamps else 254), V(vT1), sT, '0', width=1, tag='touch'))
            e(smov64('exec', '-1'))
        tx, tidx, tmt, ti, tl1, tls, tcs, trg, tw1, ta, tb, tr9 = [f's{n}' for n in range(88, 100)]
        e(salu('s_and_b32', tx, 's2', 7))
        e(salu('s_mov_b32', 's3', SPIN))
        e(valu('v_readfirstlane_b32', sWv, V(vT0)))
        e(salu('s_lshr_b32', tidx, 's2', 3))
        e(salu('s_and_b32', tmt, tx, 1))
        e(salu('s_lshl_b32', tmt, tmt, 2))
        e(salu('s_and_b32', ta, tidx, 3))
        e(salu('s_add_u32', tmt, tmt, ta))
        e(salu('s_lshr_b32', sQ, tx, 1))
        e(salu('s_lshr_b32', ti, tidx, 2))
        e(salu('s_mul_i32', ta, sQ, 18))
        e(salu('s_add_u32', tl1, ti, ta))
        e(salu('s_lshr_b32', tls, ti, 2))
        e(salu('s_add_u32', tls, tls, ta))
        e(salu('s_add_u32', tls, tls, 16))
        e(salu('s_and_b32', tcs, ti, 3))
        if rot:
            e(salu('s_add_u32', sRot, ti, tidx))
            e(salu('s_and_b32', sRot, sRot, 3))
            e(salu('s_lshl_b32', sRot, sRot, 1))
        else:
            e(salu('s_mov_b32', sRot, 0))
        e(salu('s_mul_i32', tr9, sRot, 589824))
        e(salu('s_lshr_b32', trg, sWv, 1))
        e(salu('s_and_b32', tw1, sWv, 1))
        e(valu('v_lshrrev_b32', V(TMP), 3, V(vL)))
        e(salu('s_lshl_b32', 's100', tw1, 5))
        e(valu('v_add_u32', V(vT0), 's100', V(TMP)))
        e(salu('s_movk_i32', 's101', 9216))
        e(valu('v_mul_lo_u32', V(vW), V(vT0), 's101'))
        e(valu('v_bfe_u32', V(vT0), V(vL), 1, 2))
        e(valu('v_bfe_u32', V(vT1), V(vL), 4, 1))
        e(salu('s_lshl_b32', ta, trg, 1))
        e(valu('v_add_u32', V(vT1), ta, V(vT1)))
        e(valu('v_xor_b32', V(vT0), V(vT0), V(vT1)))
        e(valu('v_lshl_add_u32', V(vW), V(vT0), 5, V(vW)))
        e(valu('v_and_b32', V(TMP + 1), 1, V(vL)))
        e(valu('v_lshl_add_u32', V(vW), V(TMP + 1), 4, V(vW)))
        e(salu('s_lshl_b32', ta, tl1, 7))
        e(salu('s_add_u32', ta, ta, tr9))
        e(valu('v_add_u32', V(vW), ta, V(vW)))
        e(salu('s_lshl_b32', ta, tmt, 8))
        e(salu('s_lshl_b32', tb, sWv, 6))
        e(salu('s_add_u32', ta, ta, tb))
        e(valu('v_add_u32', V(vT0), ta, V(TMP)))
        e(salu('s_movk_i32', tb, 1152))
        e(valu('v_mul_lo_u32', V(vX0), V(vT0), tb))
        e(salu('s_lshl_b32', tb, sRot, 7))
        e(valu('v_add_u32', V(vX0), tb, V(vX0)))
        e(valu('v_lshrrev_b32', V(vT0), 4, V(vL)))
        e(valu('v_and_b32', V(vT1), 7, V(vL)))
        e(valu('v_xor_b32', V(vT0), V(vT0), V(vT1)))
        e(valu('v_xor_b32', V(vT1), 4, V(vT0)))
        e(valu('v_lshl_add_u32', V(vX1), V(vT1), 4, V(vX0)))
        e(valu('v_lshl_add_u32', V(vX0), V(vT0), 4, V(vX0)))
        e(salu('s_lshl_b32', sM0, trg, 13))
        e(salu('s_lshl_b32', ta, tw1, 12))
        e(salu('s_add_u32', sM0, sM0, ta))
        e(salu('s_lshr_b32', sM0S, sM0, 2))
        e(salu('s_lshl_b32', sM0X, sWv, 13))
        for j in range(1, 8): e(salu('s_mov_b32', XJ[j], j * 9216 - (j & 3) * 1024))
        for j in range(1, 4): e(salu('s_mov_b32', WI[j], j * 72704))
        e(salu('s_mov_b32', 's34', 2048 * 1152))
        e(salu('s_mov_b32', 's35', 0x20000))
        e(salu('s_mov_b32', 's38', 576 * 9216))
        e(salu('s_mov_b32', 's39', 0x20000))
        e(salu('s_mov_b32', 's42', WS_END if not stamps else 128 << 20))
        e(salu('s_mov_b32', 's43', 0x20000))
        e(salu('s_mov_b32', 's47', 0x20000))
        e(salu('s_mov_b32', 's51', 0x20000))
        e(salu('s_mov_b32', 'm0', sM0))
        e(raw('s_waitcnt lgkmcnt(0)', 'drain_lg'))
        e(salu('s_cmp_eq_u32', trg, 0))
        e(salu('s_cselect_b32', 's36', 's18', 's20'))
        e(salu('s_cselect_b32', 's37', 's19', 's21'))
        e(smov64('s[32:33]', 's[4:5]'))
        e(smov64('s[40:41]', 's[30:31]'))

        def slotQ1(t): return t % 4
        Q2SLOT = [8, 9, 6, 7, 1, 4, 5, 2, 3]
        def spos(t): return t if t < 4 else 32 + (t - 4)
        def step(vreg, t, stride, extra=0, vreg2=None):
            r = []
            wr = (9 - t) % 9
            if wr in (0, 2, 4, 6):
                r.append([salu('s_cmp_eq_u32', sRot, wr), salu('s_mov_b32', tL, stride + extra),
                          salu('s_cselect_b32', tL, hex((-8 * stride + extra) & 0xffffffff), tL)])
                src = tL
            else:
                src = stride + extra
            r.append(valu('v_add_u32', V(vreg), src, V(vreg)))
            if vreg2 is not None: r.append(valu('v_add_u32', V(vreg2), src, V(vreg2)))
            return r
        def wdma(ph, t, first=False):
            r = []
            slot = slotQ1(t) if ph == 'Q1' else Q2SLOT[t]
            if not first:
                r += step(vW, t, 589824, 1024 if (ph == 'Q2' and t == 0) else 0)
                r.append(salu('s_add_u32', 'm0', sM0, slot * 16384))
            for i in range(4): r.append(bload_lds(V(vW), sW, WI[i], off=i * 1024, tag=('w', ph, t)))
            return r
        def xdma(t):
            r = []
            if t > 0: r += step(vX0, t, 128, 0, vX1)
            for j in range(8):
                if j % 4 == 0: r.append(salu('s_add_u32', 'm0', sM0X, 65536 + (t % 2) * 32768 + (j >> 2) * 4096))
                ins = bload_lds(V(vX0 + (j & 1)), sX, XJ[j], off=(j & 3) * 1024, tag=('xd', t, j >> 2))
                if j == 0 and t >= 2: ins.need(lg=[('xr', t - 2)])
                r.append(ins)
            return r
        def xread(t):
            r = []
            for rt in range(2):
                for s in range(4):
                    ins = dsread('ds_read_b128', xreg(4 * t + s, rt), V(XR + s), off=(t % 2) * 32768 + rt * 4096, tag=('xr', t))
                    if s == 0: ins.need(vm=[('xd', t, rt)])
                    r.append(ins)
            return r
        def sdma(t):
            r = []
            if t > 0: r += step(vS, t, 589824)
            r.append(salu('s_add_u32', 'm0', sM0S, spos(t) * 4096))
            r.append(bload_lds(V(vS), sW, '0', tag=('s', t)))
            return r
        def flat(lst):
            o = []
            for i in lst:
                if isinstance(i, list): o += i
                else: o.append(i)
            return o
        P += stamp(0)
        P += flat(wdma('Q1', 0, first=True))
        P += flat(xdma(0))
        e(valu('v_lshrrev_b32', V(vT0), 1, V(vL)))
        e(salu('s_lshl_b32', ta, trg, 2))
        e(valu('v_xor_b32', V(vT0), ta, V(vT0)))
        e(valu('v_add_u32', V(vT0), 's100', V(vT0)))
        e(valu('v_mul_lo_u32', V(vS), V(vT0), 's101'))
        e(valu('v_lshl_add_u32', V(vS), V(TMP + 1), 4, V(vS)))
        e(salu('s_lshl_b32', ta, tls, 7))
        e(salu('s_lshl_b32', tb, tcs, 5))
        e(salu('s_add_u32', ta, ta, tb))
        e(salu('s_add_u32', ta, ta, tr9))
        e(valu('v_add_u32', V(vS), ta, V(vS)))
        P += flat(wdma('Q1', 1))
        P += flat(xdma(1))
        vTQ = 255
        vDum = vST if not stamps else 254
        if TOUCH:
            A0, A1 = ACC, ACC + 1
            e(salu('s_lshl_b32', ta, tmt, 8))
            e(salu('s_lshl_b32', tb, sWv, 6))
            e(salu('s_add_u32', ta, ta, tb))
            e(valu('v_add_u32', V(A0), ta, V(vL)))
            e(valu('v_mul_u32_u24', V(A0), 1152, V(A0)))
            e(salu('s_lshl_b32', ta, sRot, 7))
            e(bload(V(vDum), V(A0), sX, ta, off=256, width=1, tag='touch'))
            e(valu('v_and_b32', V(A0), 31, V(vL)))
            e(valu('v_add_u32', V(A0), 's100', V(A0)))
            e(valu('v_mul_u32_u24', V(A0), 9216, V(A0)))
            e(valu('v_lshrrev_b32', V(A1), 5, V(vL)))
            e(salu('s_lshl_b32', ta, tl1, 7))
            e(salu('s_add_u32', ta, ta, tr9))
            e(valu('v_add_u32', V(A0), ta, V(A0)))
            e(valu('v_mul_u32_u24', V(vTQ), 589824, V(A1)))
            e(valu('v_add_u32', V(vTQ), V(vTQ), V(A0)))
            e(valu('v_lshl_add_u32', V(A0), V(A1), 10, V(A0)))
            e(salu('s_mov_b32', ta, 2 * 589824))
            e(bload(V(vDum), V(A0), sW, ta, width=1, tag='touch'))
        e(salu('s_or_b32', ta, 's2', sWv))
        e(salu('s_cmp_lg_u32', ta, 0))
        e(raw('s_cbranch_scc1 KF_NONONCE', 'branch'))
        e(raw('s_memrealtime s[86:87]', 'smem', wr=['s[86:87]']))
        e(valu('v_mov_b32', V(vT0), 0))
        e(raw('s_waitcnt lgkmcnt(0)', 'drain_lg'))
        e(salu('s_or_b32', 's86', 's86', 1))
        e(valu('v_mov_b32', V(vT1), 's86'))
        e(smov64('exec', '1'))
        e(raw(f'global_store_dword v{vT0}, v{vT1}, s[{pDBG}:{pDBG+1}] sc1', 'other'))
        e(smov64('exec', '-1'))
        e(label('KF_NONONCE'))
        t_regl, t_r, t_base, t_sw = TMP + 2, TMP + 3, TMP + 4, TMP + 5
        T6, T7 = TMP + 6, TMP + 7
        vC1 = TMP + 1
        e(valu('v_bfe_u32', V(t_regl), V(vL), 1, 1))
        e(valu('v_bfe_u32', V(t_r), V(vL), 2, 2))
        e(valu('v_lshrrev_b32', V(T7), 5, V(vL)))
        e(valu('v_lshl_add_u32', V(vT0), V(T7), 3, V(t_r)))
        e(valu('v_bfe_u32', V(vT1), V(vL), 4, 1))
        e(valu('v_lshlrev_b32', V(vT1), 4, V(vT1)))
        e(valu('v_lshl_add_u32', V(vT1), V(vC1), 3, V(vT1)))
        e(valu('v_lshl_add_u32', V(t_base), V(vT0), 7, V(vT1)))
        e(valu('v_lshl_add_u32', V(t_base), V(t_regl), 13, V(t_base)))
        e(valu('v_lshrrev_b32', V(t_sw), 1, V(t_r)))
        e(valu('v_lshl_add_u32', V(t_sw), V(t_regl), 1, V(t_sw)))
        for cc in range(4):
            e(valu('v_xor_b32', V(T6), cc, V(t_sw)))
            e(valu('v_lshl_add_u32', V(ADR + cc), V(T6), 5, V(t_base)))
            e(valu('v_add_u32', V(ADR + 4 + cc), 65536, V(ADR + cc)))
            e(valu('v_add_u32', V(ADR + 8 + cc), 131072, V(ADR + cc)))
        e(valu('v_lshlrev_b32', V(t_base), 2, V(t_regl)))
        e(valu('v_lshl_add_u32', V(t_sw), V(t_regl), 11, V(vT1)))
        e(valu('v_xor_b32', V(T6), V(vT0), V(t_base)))
        e(valu('v_lshl_add_u32', V(AS0), V(T6), 5, V(t_sw)))
        e(valu('v_xor_b32', V(T6), 4, V(T6)))
        e(valu('v_lshl_add_u32', V(AS0 + 1), V(T6), 5, V(t_sw)))
        e(valu('v_add_u32', V(AS0 + 2), 131072, V(AS0)))
        e(valu('v_add_u32', V(AS0 + 3), 131072, V(AS0 + 1)))
        e(valu('v_lshlrev_b32', V(vH), 4, V(vL)))
        e(valu('v_and_b32', V(t_base), 31, V(vL)))
        e(valu('v_lshlrev_b32', V(t_base), 7, V(t_base)))
        e(salu('s_add_u32', ta, sM0X, 65536))
        e(valu('v_add_u32', V(t_base), ta, V(t_base)))
        e(valu('v_bfe_u32', V(t_sw), V(vL), 1, 3))
        e(valu('v_xor_b32', V(t_sw), V(t_sw), V(T7)))
        for s in range(4):
            e(valu('v_xor_b32', V(T6), 2 * s, V(t_sw)))
            e(valu('v_lshl_add_u32', V(XR + s), V(T6), 4, V(t_base)))
        e(salu('s_lshl_b32', ta, tmt, 3))
        e(salu('s_lshl_b32', tb, sWv, 1))
        e(salu('s_add_u32', ta, ta, tb))
        e(salu('s_mul_i32', ta, ta, 288))
        e(salu('s_mul_i32', tb, sQ, 72))
        e(salu('s_add_u32', ta, ta, tb))
        e(salu('s_mul_i32', tb, ti, 6))
        e(salu('s_add_u32', f's{HS}', ta, tb))
        e(salu('s_add_u32', f's{HS+2}', f's{HS}', 4))
        e(salu('s_lshl_b32', tb, ti, 1))
        e(salu('s_add_u32', tb, tb, 48))
        e(salu('s_add_u32', f's{HS+4}', ta, tb))
        e(salu('s_add_u32', tb, ti, 64))
        e(salu('s_add_u32', f's{HS+6}', ta, tb))
        for k in range(0, 8, 2):
            e(salu('s_lshl_b32', f's{HS+k}', f's{HS+k}', 10))
            e(salu('s_add_u32', f's{HS+k+1}', f's{HS+k}', 288 * 1024))
        e(salu('s_lshl_b32', ta, tmt, 2))
        e(salu('s_add_u32', ta, ta, sQ))
        e(salu('s_lshl_b32', ta, ta, 2))
        e(salu('s_add_u32', ta, ta, sWv))
        e(salu('s_lshl_b32', ta, ta, 7))
        e(salu('s_lshl_b32', tb, ti, 2))
        e(salu('s_add_u32', ta, ta, tb))
        e(salu('s_add_u32', sFH, ta, WS_FHE))
        e(salu('s_mov_b32', sNL, '0xbfb8aa3b'))
        e(salu('s_mov_b32', sMask, '0xffff0000'))

        frags = []
        for s in range(36):
            for cc in range(4): frags.append(('Q1', s, cc, cc))
        QSET = [4, 0, 1, 2]
        for cc in range(4):
            for s in range(36): frags.append(('Q2', s, cc, QSET[cc]))
        for s in range(36): frags.append(('S', s, 0, 3))
        NF = len(frags)
        def fread(f):
            ph, s, cc, st = frags[f]
            b = WF + 4 * (f % NB)
            r = []
            for t in range(2):
                if ph == 'S':
                    sp = spos(s >> 2)
                    a = V(AS0 + t + (2 if sp >= 32 else 0)); off = (sp & 31) * 4096 + (16 * (s & 3)) * 32
                else:
                    slot = slotQ1(s >> 2) if ph == 'Q1' else Q2SLOT[s >> 2]
                    a = V(ADR + 4 * (slot >> 2) + cc); off = (slot & 3) * 16384 + (16 * (s & 3) + 4 * t) * 128
                r.append(dsread('ds_read_b64_tr_b16', V(b + 2 * t, 2), a, off=off, tag=('f', f)))
            return r
        mf = []
        for f, (ph, s, cc, st) in enumerate(frags):
            b = WF + 4 * (f % NB)
            for rt in range(2):
                a = V(acc(st, rt), 16)
                m = mfma32(a, V(b, 4), xreg(s, rt), a if s != 0 else '0')
                if rt == 0: m.need(lg=[('f', f)])
                if ph == 'Q1' and cc == 0 and rt == 0 and (s & 3) == 0: m.need(lg=[('xr', s >> 2)])
                mf.append(m)
        def epi(st, soff_base, off, k):
            r = []
            for rt in range(2):
                a = acc(st, rt)
                for half in range(2):
                    g = [a + 8 * half + i for i in range(4)]
                    u = [a + 8 * half + 4 + i for i in range(4)]
                    T = [TMP + 4 * half + i for i in range(4)]
                    for i in range(4): r.append(valu('v_mul_f32', V(T[i]), sNL, V(g[i])))
                    for i in range(4): r.append(valu('v_exp_f32', V(T[i]), V(T[i])))
                    for i in range(4): r.append(valu('v_mul_f32', V(g[i]), V(g[i]), V(u[i])))
                    for i in range(4): r.append(valu('v_add_f32', V(T[i]), '1.0', V(T[i])))
                    for i in range(4): r.append(valu('v_rcp_f32', V(T[i]), V(T[i])))
                    for i in range(4): r.append(valu('v_mul_f32', V(g[i]), V(g[i]), V(T[i])))
                    for i in range(2): r.append(valu('v_cvt_pk_bf16_f32', V(a + 4 + 2 * half + i), V(g[2 * i]), V(g[2 * i + 1])))
                r.append(bstore(V(a + 4, 4), V(vH), sWS, f's{soff_base + rt}', off=off, tag=('h', k), flags=fHS))
            return r

        sF = Stream('frag', 0); sL = Stream('load', 2); sE = Stream('epi', 3); sJ = Stream('job', 4)
        bar_gap = {}
        def first_frag_of(ph, stage):
            for f, fr in enumerate(frags):
                if fr[0] == ph and fr[1] == 4 * stage and fr[2] == 0: return f
        bars = {}
        for t in range(1, 9): bars[first_frag_of('Q1', t)] = [('Q1', t), [('w', 'Q1', t)], [('xr', t)]]
        bars[first_frag_of('Q1', 6)][2].append('kvr')
        Q2G = {0: (0, 1), 2: (2, 3, 4), 5: (5, 6, 7), 8: (8,)}
        for t, g in Q2G.items(): bars[first_frag_of('Q2', t)] = [('Q2', t), [('w', 'Q2', k) for k in g], []]
        bars[144 + 36 + JBF] = [('J', 0), ['jst'], []]
        bars[144 + 3 * 36 + 4 * 5] = [('C3', 0), [], []]
        SGROUP = {0: (0, 1, 2, 3), 4: (4, 5, 6, 7, 8)}
        for t, g in SGROUP.items(): bars[first_frag_of('S', t)] = [('S', t), [('s', k) for k in g], []]
        XRG = 12
        pend = {}
        for t in range(1, 9):
            for j, ins in enumerate(xread(t)):
                if STQ and j == 0: ins = stamp(10 + 4 * t - 4) + [ins]
                if STQ and j == 4: ins = [ins] + stamp(10 + 4 * t - 3)
                pend[32 * (t - 1) + XRG + j] = ins
        for f in range(D, NF):
            g0 = 2 * (f - D)
            if f in bars:
                key, tags, ltags = bars[f]
                if STQ and key[0] == 'Q1': sF.add(stamp(10 + 4 * key[1] - 2) + [barrier().need(vm=tags, lg=ltags)] + stamp(10 + 4 * key[1] - 1), g0 - 1, g0 - 1)
                else: sF.add(barrier().need(vm=tags, lg=ltags), g0 - 1, g0 - 1)
                bar_gap[key] = g0 - 1
            r = fread(f)
            for k in range(2):
                sF.add(r[k], g0 + k, g0 + k)
                if g0 + k in pend: sF.add(pend.pop(g0 + k), g0 + k, g0 + k)
        assert not pend

        J0 = 160
        vKR, vKS, vO4 = 249, 250, 251
        ja, jb, jc = tJ
        vW2R, vW2 = 252, [253, vT1]
        sD = ['s88', 's89']; sJM2 = 's[90:91]'; sStg = 's92'; jd = 's93'
        w2a = []; a_ = w2a.append
        a_(salu('s_mul_i32', sStg, sWv, 9216))
        a_(salu('s_add_u32', sStg, sStg, 131072))
        a_(valu('v_lshrrev_b32', V(vT1), 3, V(vL)))
        a_(valu('v_mul_u32_u24', V(vT1), 1152, V(vT1)))
        a_(valu('v_and_b32', V(vT0), 7, V(vL)))
        a_(valu('v_lshl_add_u32', V(vT1), V(vT0), 4, V(vT1)))
        w2b = []; a_ = w2b.append
        a_(valu('v_lshrrev_b32', V(vW2R), 5, V(vL)))
        a_(valu('v_lshlrev_b32', V(vW2R), 4, V(vW2R)))
        a_(valu('v_bfe_u32', V(vT0), V(vL), 4, 1))
        a_(valu('v_lshl_add_u32', V(vW2R), V(vT0), 2, V(vW2R)))
        a_(valu('v_bfe_u32', V(vT0), V(vL), 2, 2))
        a_(valu('v_add_u32', V(vW2R), V(vW2R), V(vT0)))
        a_(valu('v_lshlrev_b32', V(vW2R), 7, V(vW2R)))
        a_(valu('v_and_b32', V(vT0), 3, V(vL)))
        a_(valu('v_lshl_add_u32', V(vW2R), V(vT0), 3, V(vW2R)))
        a_(valu('v_add_u32', V(vW2R), sStg, V(vW2R)))
        def w2_addr(rnd):
            r = []; b_ = r.append
            d = sD[rnd]
            if rnd == 0:
                b_(salu('s_lshl_b32', ja, 's2', 2))
                b_(salu('s_add_u32', ja, ja, sWv))
            else:
                b_(salu('s_mul_i32', ja, 's2', 3))
                b_(salu('s_add_u32', ja, ja, sWv))
                b_([salu('s_cmp_lt_u32', ja, 272), salu('s_cselect_b32', 's90', -1, 0)])
                b_([salu('s_cmp_lt_u32', sWv, 3), salu('s_cselect_b32', 's90', 's90', 0)])
                b_(salu('s_mov_b32', 's91', 's90'))
                b_(salu('s_add_u32', ja, ja, 1024))
            b_(salu('s_mul_i32', jb, ja, 7282))
            b_(salu('s_lshr_b32', jb, jb, 16))
            b_(salu('s_mul_i32', jc, jb, 9))
            b_(salu('s_sub_u32', ja, ja, jc))
            b_(salu('s_mul_i32', jc, jb, 32 * 1152))
            b_(salu('s_lshl_b32', d, ja, 7))
            b_(salu('s_add_u32', jc, jc, d))
            b_(valu('v_add_u32', V(vW2[rnd]), jc, V(vT1)))
            b_(salu('s_mul_i32', jc, jb, 57))
            b_(salu('s_lshr_b32', jc, jc, 11))
            b_(salu('s_mul_i32', jc, jc, 36))
            b_(salu('s_sub_u32', jb, jb, jc))
            b_(salu('s_lshr_b32', d, jb, 4))
            b_(salu('s_lshl_b32', d, d, 1))
            b_(salu('s_and_b32', jd, jb, 1))
            b_(salu('s_add_u32', jd, jd, d))
            b_(salu('s_bfe_u32', d, jb, hex(1 | (3 << 16))))
            b_([salu('s_cmp_eq_u32', jd, 3), salu('s_cselect_b32', 's86', 1, 3), salu('s_cselect_b32', jd, 24, jd), salu('s_mul_i32', d, d, 's86')])
            b_(salu('s_add_u32', d, d, jd))
            b_([salu('s_cmp_lt_u32', jb, 32), salu('s_cselect_b32', d, d, jb)])
            b_(salu('s_add_u32', d, d, jc))
            b_(salu('s_mul_i32', d, d, 9))
            b_(salu('s_add_u32', d, d, ja))
            b_(salu('s_lshl_b32', d, d, 12))
            b_(salu('s_add_u32', d, d, WS_W2T))
            return r
        def masked(ins, mask=sJM):
            return [smov64('exec', mask)] + (ins if isinstance(ins, list) else [ins]) + [smov64('exec', '-1')]
        w2d = mksrd(sU, pW2, 4608 * 1152)
        for rnd in range(2):
            w2d.append(salu('s_add_u32', 'm0', sStg, 4096 * rnd))
            for j in range(4):
                ins = bload_lds(V(vW2[rnd]), sU, XJ[j], off=j * 1024, tag='w2d')
                w2d.append(masked(ins, sJM2) if rnd else ins)
        w2o = []
        def w2reg(rnd, jj): return J0 + 16 * (1 - rnd) + 4 * jj
        for rnd in range(2):
            for jj in range(4):
                for t in range(2): w2o.append(dsread('ds_read_b64_tr_b16', V(w2reg(rnd, jj) + 2 * t, 2), V(vW2R), off=rnd * 4096 + t * 1024 + jj * 32, tag=('w2r', rnd)))
        w2o[0].need(vm=['w2d'])
        for rnd in range(2):
            for jj in range(4):
                ins = bstore(V(w2reg(rnd, jj), 4), V(vH), sWS, sD[rnd], off=jj * 1024, tag='jst', flags=fWS).need(lg=[('w2r', rnd)])
                w2o.append(masked(ins, sJM2) if rnd else ins)
        P += flat(w2a + w2_addr(0) + w2_addr(1))
        pre = []; a_ = pre.append
        a_(salu('s_lshl_b32', ja, 's2', 2))
        a_(salu('s_add_u32', ja, ja, sWv))
        a_(valu('v_and_b32', V(TMP + 5), 31, V(vL)))
        a_(valu('v_mul_u32_u24', V(TMP + 5), 12, V(TMP + 5)))
        a_(valu('v_lshrrev_b32', V(vO4), 5, V(vL)))
        a_(valu('v_mul_u32_u24', V(TMP + 4), 1152, V(vO4)))
        a_(valu('v_add_u32', V(TMP + 4), V(TMP + 4), V(TMP + 5)))
        a_(salu('s_mul_i32', jb, ja, 2304))
        a_(valu('v_add_u32', V(TMP + 4), jb, V(TMP + 4)))
        a_(valu('v_lshlrev_b32', V(vO4), 2, V(vO4)))
        a_(salu('s_lshl_b32', jc, ja, 3))
        a_(valu('v_add_u32', V(vO4), jc, V(vO4)))
        pre += mksrd(sT, pGW, 1152)
        def bl3(d, voff, srd, soff, off, tag):
            return Inst(f"buffer_load_dwordx3 {V(d, 3)}, {voff}, {srd}, {soff} offen" + (f" offset:{off}" if off else ""), 'vmem', rd=[voff, srd, soff], wr=[V(d, 3)], tag=tag)
        gld = []
        for j in range(3):
            gld.append(bl3(J0 + 8 * j, V(TMP + 4), sX, '0', 384 * j, 'gx'))
            gld.append(bl3(J0 + 8 * j + 4, V(TMP + 5), sT, '0', 384 * j, 'gx'))
        gld.append(valu('v_mov_b32', V(TMP + 4), 0))
        def nonce_load():
            return Inst(f'global_load_dword v{TMP+5}, v{TMP+4}, s[{pDBG}:{pDBG+1}] sc1', 'vmem', rd=[V(TMP + 4)], wr=[V(TMP + 5)], tag='nonce')
        a_(salu('s_lshl_b32', ja, 's2', 1))
        a_(salu('s_add_u32', ja, ja, sWv))
        a_(salu('s_add_u32', jb, 's2', 512))
        a_([salu('s_cmp_lt_u32', sWv, 2), salu('s_cselect_b32', ja, ja, jb)])
        a_(salu('s_lshl_b32', jb, sWv, 6))
        a_([salu('s_cmp_lt_u32', ja, 576), salu('s_cselect_b32', jc, -1, 0)])
        a_([salu('s_cmp_lt_u32', sWv, 3), salu('s_cselect_b32', 's78', jc, 0), salu('s_cselect_b32', jb, sWv, 0)])
        a_(salu('s_mov_b32', 's79', 's78'))
        a_(salu('s_mul_i32', jb, jb, 9216))
        a_(salu('s_add_u32', 's80', jb, 131072))
        a_(salu('s_mul_i32', jb, ja, 7282))
        a_(salu('s_lshr_b32', jb, jb, 16))
        a_(salu('s_mul_i32', jc, jb, 9))
        a_(salu('s_sub_u32', jc, ja, jc))
        a_(valu('v_lshrrev_b32', V(TMP), 3, V(vL)))
        a_(valu('v_mul_u32_u24', V(TMP), 1152, V(TMP)))
        a_(valu('v_and_b32', V(TMP + 1), 7, V(vL)))
        a_(valu('v_lshl_add_u32', V(TMP), V(TMP + 1), 4, V(TMP)))
        a_(salu('s_mul_i32', ja, jb, 32 * 1152))
        a_(salu('s_lshl_b32', 's81', jc, 7))
        a_(salu('s_add_u32', ja, ja, 's81'))
        a_(valu('v_add_u32', V(TMP), ja, V(TMP)))
        a_(valu('v_subrev_u32', V(TMP + 1), 4608, V(TMP)))
        a_(valu('v_add_u32', V(TMP + 2), 4608, V(TMP)))
        a_(valu('v_and_b32', V(TMP + 6), 15, V(vL)))
        a_(valu('v_lshlrev_b32', V(TMP + 3), 3, V(TMP + 6)))
        a_(salu('s_lshl_b32', ja, jc, 9))
        a_(valu('v_add_u32', V(TMP + 3), ja, V(TMP + 3)))
        a_(valu('v_lshrrev_b32', V(TMP + 7), 4, V(vL)))
        a_(valu('v_lshlrev_b32', V(vKS), 12, V(TMP + 6)))
        a_(valu('v_lshlrev_b32', V(TMP + 6), 4, V(TMP + 7)))
        a_(valu('v_sub_u32', V(vKS), V(vKS), V(TMP + 6)))
        a_(salu('s_lshl_b32', ja, jc, 18))
        a_(salu('s_lshl_b32', jb, jb, 6))
        a_(salu('s_sub_u32', ja, ja, jb))
        a_(salu('s_add_u32', ja, ja, WS_UR + 4080))
        a_(valu('v_add_u32', V(vKS), ja, V(vKS)))
        a_(valu('v_bfe_u32', V(TMP + 6), V(vL), 2, 2))
        a_(valu('v_lshl_add_u32', V(TMP + 6), V(TMP + 7), 3, V(TMP + 6)))
        a_(valu('v_lshlrev_b32', V(vKR), 7, V(TMP + 6)))
        a_(valu('v_and_b32', V(TMP + 6), 3, V(vL)))
        a_(valu('v_lshl_add_u32', V(vKR), V(TMP + 6), 3, V(vKR)))
        a_(valu('v_add_u32', V(vKR), 's80', V(vKR)))
        P += flat(w2b + pre)
        P.append(barrier().need(vm=[('w', 'Q1', 0)]))
        for f in range(D): P += fread(f)
        P += xread(0)
        SKW = J0 + 24
        kvd = []
        kvd += mksrd(sU, pK, 2048 * 1152)
        kvd.append(salu('s_mov_b32', 'm0', 's80'))
        kvd.append(masked(bload_lds(V(TMP + 1), sU, '0', tag='kvd').need(lg=[('w2r', 1)])))
        kvd.append(salu('s_add_u32', 'm0', 's80', 1024))
        for j in range(4): kvd.append(masked(bload_lds(V(TMP + 2), sU, XJ[j], off=j * 1024, tag='kvd')))
        kvd.append(smov64('s[48:49]', S(pV, 2)))
        kvd.append(salu('s_add_u32', 'm0', 's80', 5120))
        for j in range(4): kvd.append(masked(bload_lds(V(TMP), sU, XJ[j], off=j * 1024, tag='kvd')))
        kvd += mksrd(sU, pSK, 576 * 8)
        for it in range(4): kvd.append(bload(V(SKW + 2 * it, 2), V(TMP + 3), sU, '0', off=128 * it, width=2, tag='kvd'))
        gc = []; a_ = gc.append
        for j in range(3):
            for t in range(3):
                ins = valu('v_dot2_f32_bf16', V(J0 + 3 + 8 * t), V(J0 + 8 * j + t), V(J0 + 8 * j + 4 + t), 0 if j == 0 else V(J0 + 3 + 8 * t))
                if j == 0 and t == 0: ins.need(vm=['gx'])
                a_(ins)
        g0_, g1_ = J0 + 3, J0 + 7
        a_(valu('v_add_f32', V(g0_), V(g0_), V(J0 + 11)))
        a_(valu('v_add_f32', V(g0_), V(g0_), V(J0 + 19)))
        for sh in (8, 4, 2, 1):
            a_(Inst(f"v_add_f32_dpp v{g0_}, v{g0_}, v{g0_} row_ror:{sh} row_mask:0xf bank_mask:0xf", 'valu', rd=[V(g0_)], wr=[V(g0_)]))
        a_(valu('v_mov_b32', V(g1_), V(g0_)))
        a_(valu('v_permlane16_swap_b32', V(g0_), V(g1_)))
        a_(valu('v_add_f32', V(g0_), V(g0_), V(g1_)))
        a_(valu('v_cvt_pk_bf16_f32', V(g0_), V(g0_), V(g0_)))
        a_(valu('v_lshlrev_b32', V(g0_), 16, V(g0_)))
        a_(valu('v_mul_f32', V(g0_), sNL, V(g0_)))
        a_(valu('v_exp_f32', V(g0_), V(g0_)))
        a_(valu('v_add_f32', V(g0_), '1.0', V(g0_)))
        a_(valu('v_rcp_f32', V(g0_), V(g0_)))
        a_(valu('v_cvt_pk_bf16_f32', V(g0_), V(g0_), V(g0_)))
        a_(valu('v_lshlrev_b32', V(g0_), 16, V(g0_)))
        gst = [salu('s_mov_b32', ja, WS_G), salu('s_mov_b32', 'exec_lo', 1), salu('s_mov_b32', 'exec_hi', 1), bstore(V(g0_), V(vO4), sWS, ja, width=1, tag='jst', flags=SC), smov64('exec', '-1')]
        sJ.spread(gc, 46, 58, 59)
        sJ.add(gst, 60, 60)
        sJ.spread(w2o[:16], 61, 69, 70)
        nchk = [valu('v_cmp_eq_u32', 'vcc', 0, V(TMP + 5)).need(vm=['nonce']), raw('s_cbranch_vccnz SLOW_N', 'branch'), label('BACK_N'),
                valu('v_readfirstlane_b32', sNonce, V(TMP + 5))]
        if not three:
            slow.extend(pad_hazards([label('SLOW_N'), raw('s_sleep 4'), nonce_load(), raw('s_waitcnt vmcnt(0)', 'drain_vm'),
                                     valu('v_cmp_eq_u32', 'vcc', 0, V(TMP + 5))] + spin_tail('SLOW_N', 'BACK_N')))
        O = [J0 + 20, J0 + 21, J0 + 22, J0 + 23, vO4]
        AC = TMP
        def kv_reads(it):
            b = J0 + 10 * (it & 1)
            r = [dsread('ds_read_b64_tr_b16', V(b + 2 * k, 2), V(vKR), off=512 * k + 32 * it, tag='kvr') for k in range(3)]
            r += [dsread('ds_read_b64_tr_b16', V(b + 6 + 2 * k, 2), V(vKR), off=5120 + 512 * k + 32 * it, tag='kvr') for k in range(2)]
            for x in r: x.tag = 'kvr'
            return r
        kc = []; a_ = kc.append; kst = []
        a_(nchk)
        r0 = kv_reads(0); r0[0].need(vm=['kvd']); kc += r0
        for it in range(4):
            b = J0 + 10 * (it & 1)
            Dk = [b + k for k in range(6)]; Vd = [b + 6 + k for k in range(4)]
            w10, w32 = SKW + 2 * it, SKW + 2 * it + 1
            a_(valu('v_alignbit_b32', V(w10), V(w10), V(w10), 16))
            a_(valu('v_alignbit_b32', V(w32), V(w32), V(w32), 16))
            for m in range(5):
                ins = valu('v_alignbit_b32', V(O[m]), V(Dk[m + 1]), V(Dk[m]), 16)
                if m == 0: ins.need(lg=['kvr'])
                a_(ins)
            if it < 3: kc += kv_reads(it + 1)
            for t in range(8):
                u = t >> 1
                a_(valu('v_dot2_f32_bf16', V(AC + t), V(O[u + 1] if t % 2 == 0 else Dk[u + 2]), V(w10), 0))
            for t in range(8):
                u = t >> 1
                a_(valu('v_dot2_f32_bf16', V(AC + t), V(O[u] if t % 2 == 0 else Dk[u + 1]), V(w32), V(AC + t)))
            for hlf in range(2):
                for t in range(4 * hlf, 4 * hlf + 4):
                    if t & 1: a_(valu('v_and_b32', V(Dk[t & 3]), sMask, V(Vd[t >> 1])))
                    else: a_(valu('v_lshlrev_b32', V(Dk[t & 3]), 16, V(Vd[t >> 1])))
                for t in range(4 * hlf, 4 * hlf + 4):
                    a_(valu('v_mul_f32', V(AC + t), V(AC + t), V(Dk[t & 3])))
            ob = O[0] if it == 2 else 252
            for k in range(4): a_(valu('v_cvt_pk_bf16_f32', V(ob + k), V(AC + 7 - 2 * k), V(AC + 6 - 2 * k)))
            kst.append([salu('s_mov_b32', tL, it * 65536)] + masked(bstore(V(ob, 4), V(vKS), sWS, tL, tag='jst', flags=SC)))
            lo, hi = [(120, 138), (139, 156), (157, 171), (182, 200)][it]
            if it == 1:
                sJ.spread(kc[:-4], lo, hi - 3, hi - 2); sJ.spread(kc[-4:], hi - 2, hi, hi + 1)
            else: sJ.spread(kc, lo, hi, hi + 1)
            kc = []; a_ = kc.append
        def flagstore(soff_ins, soff, tagneed=None, off=0, vz=None, vd=None, w0=False):
            r = list(soff_ins)
            r.append(valu('v_mov_b32', V(vd), sNonce))
            i = Inst(f"buffer_store_dword v{vd}, off, {sWS}, {soff}" + (f" offset:{off}" if off else "") + " sc1", 'vstore', rd=[V(vd), sWS, soff], tag='flag')
            if tagneed: r[-1].need(vm=tagneed)
            if w0: r += [salu('s_cmp_eq_u32', sWv, 0), Inst("s_cselect_b64 exec, 1, 0", 'salu', rd=['scc'], wr=['exec'])]
            else: r.append(smov64('exec', '1'))
            r.append(i)
            r.append(smov64('exec', '-1'))
            return r
        fj1 = flagstore([salu('s_lshl_b32', ja, 's2', 7), salu('s_add_u32', ja, ja, WS_FJ1)], ja, vd=vKR, w0=True)

        win = {0: gld + w2d,
               1: ([bload(V(vDum), V(vTQ), sW, '0', off=1024, width=1, tag='touch')] if TOUCH else []) + [nonce_load()],
               2: w2o[16:20] + kvd, 3: w2o[20:], 4: [kst[0]], 5: [kst[1], kst[2]], 6: [kst[3]]}
        first = {}
        wlo = {0: 11, 1: 44, 2: 71, 3: 103, 4: 141, 5: 174, 6: 212}
        whi = {0: 21, 1: 50, 2: 85, 3: 112, 4: 143, 5: 178, 6: 214}
        q2_after = [('Q1', 6), ('Q1', 6), ('Q1', 7), ('Q1', 7), ('Q1', 7), ('Q1', 8), ('Q1', 8), ('Q1', 8), ('Q2', 0)]
        for u in range(0, 7):
            if u == 0:
                sL.spread(xdma(2), 0, 6, 7); sL.spread(wdma('Q1', 2), 7, 10, 11)
            else:
                assert bar_gap[('Q1', u)] == 32 * u - 9
                sL.spread(xdma(u + 2), 32 * u - 10, 32 * u, 32 * u + 1)
                sL.spread(wdma('Q1', u + 2), 32 * u + 1, 32 * u + 6, 32 * u + 7)
            if u == 6:
                for t in range(2): sL.spread(wdma('Q2', t), 199 + 6 * t, 205 + 6 * t, 206 + 6 * t)
            if NOJOB and u != 1: win[u] = [x for x in flat(win[u]) if x.kind not in ('vmem_lds', 'vstore') or x.tag in ('w2d', 'kvd', 'jst') and x is first.setdefault(x.tag, x)]
            sL.spread(win[u], wlo[u], whi[u], whi[u] + 1)
        cur = 0
        for t in range(2, 9):
            lo2 = max(cur, bar_gap[q2_after[t]] + 1)
            sL.spread(wdma('Q2', t), lo2, lo2 + QSP, lo2 + QSP + 1)
            cur = lo2 + QSP
        cur = max(cur, bar_gap[('Q2', 2)] + 1)
        FB = [236, 252]
        sa = []; a_ = sa.append
        a_(salu('s_and_b32', ja, 's2', 1))
        a_(salu('s_lshl_b32', ja, ja, 3))
        a_(salu('s_bfe_u32', jb, 's2', hex(3 | (3 << 16))))
        a_(salu('s_add_u32', ja, ja, jb))
        a_(salu('s_lshr_b32', jb, 's2', 6))
        a_(salu('s_lshl_b32', ja, ja, 2))
        a_(salu('s_add_u32', ja, ja, jb))
        for u in range(1, 4):
            a_(salu('s_add_u32', jb, sQ, u))
            a_(salu('s_and_b32', jb, jb, 3))
            a_(salu('s_lshl_b32', jc, ja, 2))
            a_(salu('s_add_u32', jb, jb, jc))
            a_(salu('s_lshl_b32', jb, jb, 2))
            a_(salu('s_add_u32', jb, jb, sWv))
            a_(salu('s_mul_i32', jb, jb, 6144))
            a_(salu('s_add_u32', SEND[u - 1], jb, WS_R + (u - 1) * 2048))
        a_(salu('s_lshl_b32', jb, ja, 2))
        a_(salu('s_add_u32', jb, jb, sWv))
        a_(salu('s_lshl_b32', jb, jb, 12))
        a_(salu('s_lshl_b32', jc, sQ, 10))
        a_(salu('s_add_u32', jb, jb, jc))
        a_(salu('s_add_u32', sSend8, jb, WS_R8))
        def send1(slot, reg, tag):
            if slot == 8: return bstore(reg, V(vH), sWS, sSend8, tag=tag, flags=SC)
            return bstore(reg, V(vH), sWS, SEND[(slot >> 1) - 1], off=(slot & 1) * 1024, tag=tag, flags=SC)
        for k in range(4): a_(valu('v_mov_b32', V(FB[1] + k), -1))
        sa += [send1(sl, V(FB[1], 4), 'jst') for sl in range(2, 9)]
        a_(salu('s_lshl_b32', ja, 's2', 2))
        a_(salu('s_add_u32', ja, ja, sWv))
        a_(salu('s_lshl_b32', jb, ja, 11))
        a_(salu('s_add_u32', jb, jb, WS_Y2))
        for k in range(2): a_(bstore(V(FB[1], 4), V(vH), sWS, jb, off=1024 * k, tag='jst', flags=SC))
        a_(salu('s_lshl_b32', jb, ja, 10))
        a_(salu('s_add_u32', jb, jb, WS_Y2 + 512 * 4096))
        a_([salu('s_cmp_lt_u32', 's2', 64), Inst("s_cselect_b64 exec, -1, 0", 'salu', rd=['scc'], wr=['exec']),
            bstore(V(FB[1], 4), V(vH), sWS, jb, tag='jst', flags=SC), smov64('exec', '-1')])
        gJ = bar_gap[('J', 0)]
        sJ.spread(sa, 286, gJ - 50, gJ - 44)
        sJ.add(fj1, gJ + 1, gJ + 3)
        lst = []
        for t in range(4): lst += sdma(t)
        assert cur > bar_gap[('Q2', 2)]
        sL.spread(lst, cur + 4, cur + 24)
        gC3 = bar_gap[('C3', 0)]
        assert gC3 >= 2 * (144 + 108 + 15) + 1
        lst = []
        for t in range(4, 9): lst += sdma(t)
        sL.spread(lst, gC3 + 1, gC3 + 16)
        g_S = 288; g_Q2 = [288 + 72 * c for c in range(5)]
        EP = [(0, HS, 0, g_Q2[1] - 2), (1, HS, 1024, g_Q2[2] - 2), (2, HS, 2048, g_Q2[3] - 2), (3, HS, 3072, g_Q2[4] - 2),
              (4, HS + 2, 0, 515), (0, HS + 2, 1024, 600), (1, HS + 4, 0, 630), (2, HS + 4, 1024, 668)]
        for k, (st, so, off, dl) in enumerate(EP):
            sE.spread(epi(st, so, off, k), g_S + 3 + (k * 356) // 8, g_S + 3 + ((k + 1) * 356) // 8, dl)

        C0 = 648
        NCU = 6 if three else 4
        G2 = C0 + 36 * NCU
        CACC = 160; CACC2 = 128; ET = 192
        GACC = 32; WF2 = 104; RECV = 128
        vA = [236, 237, 238, 239]; vB = 240; vE = 241; vY = 249; vHl = 250; vR1 = 251; vR2 = 252; vRW = 253; vRR = 254; vP = 255
        def bufA(b, k1): return V(32 + 4 * k1, 4) if b == 0 else A(192 + 4 * k1, 4)
        def bufB(b, dl): return V(64 + 4 * dl, 4) if b == 0 else A(224 + 4 * dl, 4)
        def breg(b, base, n): return V(base + 32, n) if b == 0 else A(base + 192, n)
        SCR0 = 98304; SCRW = 12928; SCR3 = 16384
        cs = []; a_ = cs.append
        a_(salu('s_lshl_b32', WI[1], sWv, 13))
        a_(salu('s_add_u32', WI[1], WI[1], WS_FJ1))
        a_(valu('v_lshlrev_b32', V(CACC + 17), 7, V(vL)))
        l1, c1 = poll('J1', lambda: bload(V(CACC + 16), V(CACC + 17), sWS, WI[1], width=1, tag=('poll', 'J1'), flags=SC), [CACC + 16], True)
        a_(l1)
        kS0 = next(i for i, it in enumerate(sF.items) if it.at == bar_gap[('S', 0)] and not isinstance(it.ins, list) and it.ins.kind == 'barrier')
        sF.items[kS0].ins = c1 + [sF.items[kS0].ins]
        a_(salu('s_lshr_b32', ja, sWv, 1))
        a_(salu('s_mul_i32', sScr, ja, SCRW))
        a_(salu('s_add_u32', sScr, sScr, SCR0))
        a_(salu('s_lshl_b32', jb, 's2', 1))
        a_(salu('s_add_u32', jb, jb, ja))
        a_(salu('s_and_b32', jc, sWv, 1))
        a_(salu('s_lshl_b32', 's78', jb, 12))
        a_(salu('s_lshl_b32', 's79', jc, 11))
        a_(salu('s_add_u32', 's78', 's78', 's79'))
        a_(salu('s_add_u32', sYb, 's78', WS_Y2))
        a_(salu('s_lshl_b32', ja, 's2', 2))
        a_(raw(f's_load_dword {sDv}, s[{pD}:{pD+1}], {ja}', 'smem', rd=[ja], wr=[sDv]))
        a_(salu('s_lshl_b32', 's80', jc, 8))
        a_(salu('s_add_u32', 's80', 's80', sScr))
        t0, t1, t2, t3 = CACC + 20, CACC + 21, CACC + 22, CACC + 23
        a_(valu('v_lshrrev_b32', V(t0), 4, V(vL)))
        a_(valu('v_and_b32', V(t1), 15, V(vL)))
        a_(valu('v_lshlrev_b32', V(vHl), 9, V(t0)))
        a_(valu('v_lshl_add_u32', V(vHl), V(t1), 4, V(vHl)))
        a_(valu('v_lshl_add_u32', V(t2), V(t0), 3, V(t1)))
        a_(valu('v_add_u32', V(t2), 1, V(t2)))
        a_(valu('v_and_b32', V(t3), 1, V(t2)))
        a_(valu('v_lshrrev_b32', V(t2), 1, V(t2)))
        a_(valu('v_mul_u32_u24', V(t3), 4160, V(t3)))
        a_(valu('v_lshl_add_u32', V(t3), V(t2), 2, V(t3)))
        a_(valu('v_add_u32', V(vA[0]), 's80', V(t3)))
        for b in range(1, 4): a_(valu('v_add_u32', V(vA[b]), 1024 * b, V(vA[0])))
        a_(valu('v_lshlrev_b32', V(t2), 5, V(t1)))
        a_(valu('v_lshlrev_b32', V(t3), 4, V(t0)))
        a_(valu('v_sub_u32', V(t3), V(t3), V(t2)))
        a_(salu('s_add_u32', ja, 's80', 8320 + 480))
        a_(valu('v_add_u32', V(vB), ja, V(t3)))
        a_(valu('v_lshl_add_u32', V(vY), V(t0), 3, V(t2)))
        a_(salu('s_add_u32', ja, sScr, 8320 + 504))
        a_(salu('s_sub_u32', ja, ja, 's79'))
        a_(valu('v_sub_u32', V(vE), ja, V(vY)))
        a_(valu('v_add_u32', V(vR1), 65536, V(vH)))
        a_(valu('v_add_u32', V(vR2), 131072, V(vH)))
        a_(salu('s_lshl_b32', ja, sWv, 12))
        a_(valu('v_add_u32', V(vRW), ja, V(vH)))
        a_(valu('v_xor_b32', V(vRR), 4096, V(vRW)))
        a_(valu('v_and_b32', V(vP), 7, V(vL)))
        a_(valu('v_lshlrev_b32', V(vP), 2, V(vP)))
        sJ.spread(cs, 517, gC3 + 12, gC3 + 15)
        def conv_loads(nk, sOff, sBase, sPart, R0, R1, chk):
            r = []
            r += mksrd(sU, pSSM, 576 * 4096)
            for i in range(nk):
                r.append(bload(V(R0 + 4 * i, 4), V(vH), sU, sOff, off=i * 1024, tag='cr'))
                r.append(bload(V(R1 + 4 * i, 4), V(vH), sU, sOff, off=i * 1024 + 4, tag='cr'))
            r.append(salu('s_add_u32', tL, sBase, sPart))
            r.append(salu('s_add_u32', 'm0', tL, 32))
            for i in range(nk): r.append(bload_lds(V(vH), sU, sOff, off=i * 1024, tag='cin'))
            if chk: r.append(chk)
            r.append(salu('s_add_u32', 'm0', tL, 8320))
            r.append(salu('s_add_u32', tL, sOff, WS_UR))
            for i in range(nk): r.append(bload_lds(V(vH), sWS, tL, off=i * 1024, tag='cin', flags=SC))
            return r
        def conv_prep(nk, sBase, sPart, R0, R1, T):
            r = []; b_ = r.append
            b_(valu('v_mov_b32', V(T), 0))
            b_(valu('v_mov_b32', V(T + 1), 0))
            b_(valu('v_lshrrev_b32', V(T + 2), 1, V(vH)))
            b_(salu('s_add_u32', ja, sBase, 8320 + 4096))
            b_(valu('v_add_u32', V(T + 2), ja, V(T + 2)))
            b_(dswrite('ds_write_b64', V(T + 2), V(T, 2), tag='cw'))
            b_([salu('s_cmp_eq_u32', sPart, 0), salu('s_cselect_b32', ja, 0, 4128)])
            b_(salu('s_add_u32', ja, ja, sBase))
            b_(valu('v_add_u32', V(T + 2), ja, V(vP)))
            b_(dswrite('ds_write_b32', V(T + 2), V(T), tag='cw'))
            b_(salu('s_add_u32', ja, sBase, sPart))
            b_(salu('s_add_u32', ja, ja, 4160 + 32))
            b_(valu('v_add_u32', V(T + 3), ja, V(vH)))
            for i in range(4 * nk):
                ins = valu('v_alignbit_b32', V(R1 + i), V(R1 + i), V(R0 + i), 16)
                if i == 0: ins.need(vm=['cr'])
                b_(ins)
            b_(valu('v_readfirstlane_b32', jb, V(R0)))
            for i in range(nk): b_(dswrite('ds_write_b128', V(T + 3), V(R1 + 4 * i, 4), off=i * 1024, tag='cw'))
            b_(salu('s_lshl_b32', jb, jb, 16))
            b_(valu('v_mov_b32', V(T + 1), jb))
            b_([valu('v_cmp_eq_u32', 'vcc', 28, V(vP)), valu('v_cndmask_b32', V(T + 1), V(T), V(T + 1), 'vcc')])
            b_(dswrite('ds_write_b32', V(T + 2), V(T + 1), off=4160, tag='cw'))
            return r
        cl_ = conv_loads(2, 's78', sScr, 's79', CACC, CACC + 8, None)
        sL.spread(cl_[:-4], gC3 + 17, gC3 + 30, gC3 + 34)
        gU = max(gC3 + 31, bar_gap[('S', 0)] + 1)
        sL.spread(cl_[-4:], gU, gU + 6, gU + 8)
        gCB = 634
        sJ.spread(conv_prep(2, sScr, 's79', CACC, CACC + 8, CACC + 24), gCB - 34, gCB - 4, gCB - 2)
        fhe = flagstore([], sFH, tagneed=[('h', 5)], vd=CACC + 28)
        ts = []; a_ = ts.append
        a_(salu('s_and_b32', ja, 's2', 1))
        a_(salu('s_lshl_b32', ja, ja, 3))
        a_(salu('s_bfe_u32', jb, 's2', hex(3 | (3 << 16))))
        a_(salu('s_add_u32', ja, ja, jb))
        a_(salu('s_lshr_b32', jb, 's2', 6))
        a_(salu('s_add_u32', jc, ja, jb))
        a_(salu('s_and_b32', jc, jc, 3))
        a_(salu('s_mul_i32', sM0, jc, 3))
        a_(salu('s_add_u32', sM0, sM0, 1))
        a_(salu('s_lshr_b32', GSEQ[0], sM0, 1))
        for n in range(1, 6):
            a_(salu('s_add_u32', GSEQ[n], GSEQ[n - 1], 1))
            a_([salu('s_cmp_eq_u32', GSEQ[n], 6), salu('s_cselect_b32', GSEQ[n], 0, GSEQ[n])])
        a_([salu('s_cmp_eq_u32', jc, 3), salu('s_cselect_b32', jc, 0, jc)])
        a_(salu('s_add_u32', GSEQ[6], jc, 6))
        for n in range(7, 9):
            a_(salu('s_add_u32', GSEQ[n], GSEQ[n - 1], 1))
            a_([salu('s_cmp_eq_u32', GSEQ[n], 9), salu('s_cselect_b32', GSEQ[n], 6, GSEQ[n])])
        a_(salu('s_mul_i32', jc, sQ, 1296))
        a_(salu('s_mul_i32', jb, jb, 9))
        a_(salu('s_add_u32', jc, jc, jb))
        a_(salu('s_lshl_b32', sWq, jc, 10))
        a_(salu('s_lshl_b32', jb, ja, 2))
        a_(salu('s_add_u32', jb, jb, sWv))
        a_(salu('s_mul_i32', jb, jb, 288))
        a_(salu('s_mul_i32', jc, sQ, 72))
        a_(salu('s_add_u32', jb, jb, jc))
        a_(salu('s_lshl_b32', sHb, jb, 10))
        GW = TT + [sTB, sWcur]; sW4k = sHcur
        for n in range(9):
            a_(salu('s_mul_i32', GW[n], GSEQ[n], 147456))
            a_(salu('s_add_u32', GW[n], GW[n], sWq))
            a_(salu('s_lshl_b32', GSEQ[n], GSEQ[n], 13))
            a_(salu('s_add_u32', GSEQ[n], GSEQ[n], sHb))
        a_(salu('s_lshr_b32', jb, ja, 1))
        a_(salu('s_lshl_b32', jb, jb, 2))
        a_(salu('s_add_u32', jb, jb, sQ))
        a_(salu('s_lshl_b32', jb, jb, 2))
        a_(salu('s_and_b32', jc, ja, 1))
        a_(salu('s_lshl_b32', jc, jc, 1))
        a_(salu('s_add_u32', jb, jb, jc))
        a_(salu('s_lshr_b32', jc, sWv, 1))
        a_(salu('s_add_u32', jb, jb, jc))
        a_(salu('s_lshl_b32', jb, jb, 7))
        a_(salu('s_add_u32', sM0X, jb, WS_FHE))
        a_(salu('s_lshl_b32', sW1k, sWv, 10))
        a_(salu('s_lshl_b32', sW4k, sWv, 12))
        vU = [ADR + 1 + j for j in range(5)]; vHl2 = ADR + 6
        SOFF = [0, 1024, 0, 1024, 2048, 3072, 0, 1024, 2048]
        ts2 = []; a_ = ts2.append
        a_(salu('s_mul_i32', ja, sWv, 36864))
        a_(salu('s_add_u32', ja, ja, WS_W2T))
        for j in range(4):
            a_(salu('s_add_u32', jb, sQ, j))
            a_(salu('s_and_b32', jb, jb, 3))
            a_(salu('s_lshl_b32', jb, jb, 11))
            a_(salu('s_add_u32', jb, jb, ja))
            if SOFF[2 * j]: a_(salu('s_sub_u32', jb, jb, SOFF[2 * j]))
            a_(valu('v_add_u32', V(vU[j]), jb, V(vH)))
        a_(salu('s_add_u32', jb, ja, 8192 - SOFF[8]))
        a_(valu('v_add_u32', V(vU[4]), jb, V(vH)))
        a_(valu('v_add_u32', V(vHl2), 4096, V(vHl)))
        items_after = [it for it in sJ.items if it.at >= gCB - 34]
        sJ.items = [it for it in sJ.items if it.at < gCB - 34]
        sJ.spread(ts, gC3 + 16, 584, 586)
        sJ.spread(ts2, 585, gCB - 37, gCB - 35)
        sJ.items += items_after
        sM = Stream('misc', 5)
        sM.add(fhe, 612, 624)
        dv = [raw('s_waitcnt lgkmcnt(0)', 'drain_lg'), salu('s_lshl_b32', ja, sDv, 16), salu('s_and_b32', sDv, sDv, sMask),
              salu('s_cmp_lt_u32', sWv, 2), salu('s_cselect_b32', sDv, ja, sDv)]
        cb = dv + [barrier().need(vm=['cin'], lg=['cw'])]
        k = next(i for i, it in enumerate(sF.items) if it.at >= gCB)
        sF.items.insert(k, Item(cb, gCB, gCB))
        def creads(un):
            b = un & 1
            k0 = un if un < 4 else un - 4
            def ar(k1):
                o = (k1 & 1) * 128 + 16 * k0
                return [dsread('ds_read2_b32', breg(b, 4 * k1 + 2 * t, 2), V(vA[k1 >> 1]), offtext=f"offset0:{o+2*t} offset1:{o+2*t+1}", tag=('c', un)) for t in range(2)]
            def br(dl):
                return [dsread('ds_read_b128', bufB(b, dl), V(vB), off=512 * (7 - dl) + 64 * k0, tag=('c', un))]
            r = ar(0)
            for dl in range(8): r += br(dl)
            for k1 in range(1, 8): r += ar(k1)
            return r
        sC = Stream('conv', 1)
        sC.spread(creads(0), gCB + 1, 646, 646)
        mf.append(None); mf.pop()
        for un in range(NCU):
            b = un & 1
            ca = CACC if un < 4 else CACC2
            first = True
            for k1 in range(8):
                for c in range(k1, 8):
                    a = V(ca + 4 * c, 4)
                    m = mfma16(a, bufA(b, k1), bufB(b, c - k1), '0' if (un in (0, 4) and k1 == 0) else a)
                    if first: m.need(lg=[('c', un)]); first = False
                    mf.append(m)
        sE.spread(epi(3, HS + 6, 0, 8), C0 + 2, C0 + 100, C0 + 138)
        fhl = flagstore([], sFH, tagneed=[('h', 8)], vd=vW, off=64)
        gPS = C0 + 4
        ps = barrier()
        if three:
            R0, R1, T3 = WF, WF + 4, WF + 8
            c3 = [salu('s_add_u32', 's78', 's2', 512), salu('s_lshl_b32', 's78', 's78', 12), salu('s_add_u32', 's78', 's78', sW1k),
                  salu('s_mov_b32', 's79', SCR3)]
            sL.spread(c3 + conv_loads(1, 's78', 's79', sW1k, R0, R1, None), C0 + 1, C0 + 16, C0 + 20)
            sJ.spread(conv_prep(1, 's79', sW1k, R0, R1, T3), C0 + 70, C0 + 100, C0 + 104)
        for un in range(1, NCU):
            g = C0 + 36 * (un - 1)
            lst = creads(un)
            if un == 1: sC.add(ps, gPS, gPS)
            if un == 4:
                dl_ = [salu('s_lshl_b32', 's86', sWv, 7), salu('s_add_u32', 's86', 's86', SCR3), salu('s_sub_u32', 's86', 's86', 's80')]
                dl_ += [valu('v_add_u32', V(x), 's86', V(x)) for x in vA + [vB]]
                lst = [dl_, barrier().need(vm=['cin'], lg=['cw'])] + lst
            sC.spread(lst, g + (gPS - C0 + 1 if un == 1 else 1), g + 31, g + 33)
        def swaps(lab, cond, pairs):
            return [Inst('v_nop', 'valu', rd=[V(x) for p_ in pairs for x in p_]), cond, raw(f's_cbranch_scc0 {lab}{tagp}', 'branch')] + [Inst(f"v_swap_b32 v{x}, v{y}", 'valu', rd=[V(x), V(y)], wr=[V(x), V(y)]) for x, y in pairs] + [label(f'{lab}{tagp}')]
        def cfin(ca, nblk, nsrc, rdaddr, rdoff, tagr):
            r = []
            RC = ET; KV = ET + 16; T = ET + 24
            for t in range(nblk): r.append(dsread('ds_read_b64', V(KV + 2 * t, 2), V(vE), off=512 * (7 - t), tag=('e', tagr)))
            per = 4 // nblk if nsrc > 1 else 1
            seq = [(t, u) for u in range(nsrc) for t in range(nblk)]
            for base in range(0, len(seq), 4):
                grp = seq[base:base + 4]
                for z, (t, u) in enumerate(grp): r.append(dsread('ds_read_b128', V(RC + 4 * z, 4), V(rdaddr), off=rdoff(t, u), tag=('rr', tagr, base)))
                for z, (t, u) in enumerate(grp):
                    for k in range(4):
                        ins = valu('v_add_f32', V(ca + 4 * t + k), V(ca + 4 * t + k), V(RC + 4 * z + k))
                        if z == 0 and k == 0: ins.need(lg=[('rr', tagr, base)])
                        r.append(ins)
            for t in range(nblk):
                lo, hi = KV + 2 * t, KV + 2 * t + 1
                r.append(valu('v_and_b32', V(T), sMask, V(hi)))
                r.append(valu('v_lshlrev_b32', V(T + 1), 16, V(hi)))
                r.append(valu('v_and_b32', V(T + 2), sMask, V(lo)))
                r.append(valu('v_lshlrev_b32', V(T + 3), 16, V(lo)))
                for k in range(4): r.append(valu('v_fmac_f32', V(ca + 4 * t + k), sDv, V(T + k)))
                r.append(valu('v_cvt_pk_bf16_f32', V(lo), V(ca + 4 * t), V(ca + 4 * t + 1)))
                r.append(valu('v_cvt_pk_bf16_f32', V(hi), V(ca + 4 * t + 2), V(ca + 4 * t + 3)))
                r.append(bstore(V(lo, 2), V(vY), sWS, sYb, off=512 * t, width=2, tag='yst', flags=SC))
            return r
        E1 = C0 + 144
        e1 = [swaps('SW1', salu('s_bitcmp1_b32', sWv, 0), [(CACC + k, CACC + 16 + k) for k in range(16)])]
        e1 += [dswrite('ds_write_b128', V(vRW), V(CACC + 16 + 4 * t, 4), off=1024 * t, tag='rw1') for t in range(4)]
        sM.add(fhl, C0 + FHLG, C0 + FHLG + 4)
        sE.spread(e1, E1 + 3, E1 + 12, E1 + 14)
        xbars = []
        if SEGV == 1:
            segs = [[(gn, [2, 3, 4, 5]), (gn, [6, 7, 8])] for gn in range(6)]
            segs += [[(gn, sl) for gn in (6, 7, 8)] for sl in ([2, 3], [4, 5], [6, 7, 8])]
        elif SEGV == 0:
            segs = [[(gn, [2, 3, 4, 5]), (gn, [6, 7, 8])] for gn in range(9)]
        elif SEGV == 2:
            segs = [[(gn, [2, 3, 4, 5]), (gn, [6, 7, 8])] for gn in range(3)]
            segs += [[(gn, [2, 3, 4, 5]) for gn in (3, 4)], [(5, [2, 3, 4, 5]), (6, [2, 3]), (7, [2, 3])], [(8, [2, 3]), (6, [4, 5]), (7, [4, 5]), (8, [4, 5])]]
            segs += [[(gn, [6, 7, 8]) for gn in gg] for gg in ((3, 4), (5, 6), (7, 8))]
        segs += [[(gn, [0, 1]) for gn in gg] for gg in ((0, 1, 2), (3, 4, 5), (6, 7, 8))]
        blocks = [b for sg in segs for b in sg]
        fr2 = []; bf = []; bneed_vm = []; blk_seg = []; blk_last = []
        for si, sg in enumerate(segs):
            bf.append(len(fr2)); bneed_vm.append([])
            for (gn, sl) in sg:
                bi = len(blk_seg); blk_seg.append(si); bneed_vm[-1].append(('u', bi))
                for kw in range(4):
                    for c, s_ in enumerate(sl): fr2.append((4 * gn + kw, s_, bi, kw, c))
                blk_last.append(len(fr2) - 1)
        NF2 = 324
        assert len(fr2) == NF2
        def gacc(slot, mh): return V(GACC + 8 * slot + 4 * mh, 4)
        hneed = {}; sfirst = set(); slast = {}
        for f, (k, s_, bi, kw, c) in enumerate(fr2):
            for mh in range(2):
                a = gacc(s_, mh)
                m = mfma16(a, V(WF2 + 4 * (f % NB2), 4), hreg(k, mh), a if s_ in sfirst else '0')
                if mh == 0:
                    if W2 == 0: m.need(lg=[('g', f)])
                    elif f % 2 == 0: m.need(lg=[('g', min(f + 1, NF2 - 1))])
                    if k not in hneed: m.need(vm=[('hl', k)]); hneed[k] = G2 + 2 * f
                mf.append(m)
            sfirst.add(s_); slast[s_] = G2 + 2 * f + 1
        GEND = G2 + 648
        assert len(mf) == GEND
        bgap = [G2 + 2 * (f - D2) - 1 for f in bf]
        def bar_after(g):
            for i, x in enumerate(bgap):
                if x >= g: return i
            return None
        bneed_lg = [[] for f in bf]
        gR1 = E1 + 16
        fin1 = cfin(CACC, 4, 1, vRR, lambda t, u: 1024 * t, 1)
        page_free = {}
        gE0 = bar_gap[('S', 4)] + 2
        for pg in range(8, 24): page_free[pg] = gE0
        for pg in range(32, 40): page_free[pg] = gPS + 2
        if not three:
            for pg in range(4, 8): page_free[pg] = C0
            xbars.append((gR1, barrier().need(lg=['rw1'])))
            kd = max(i for i, x in enumerate(fin1) if x.kind == 'ds') + 1
            sE.spread(fin1[:kd], gR1 + 1, gR1 + 12, gR1 + 16)
            sE.spread(fin1[kd:], gR1 + 16, gR1 + 80, gR1 + 100)
            i1 = bar_after(gR1 + 20); bneed_lg[i1].append(('e', 1))
            for pg in range(24, 32): page_free[pg] = bgap[i1] + 1
        else:
            sC.items.insert(next(i for i, it in enumerate(sC.items) if it.at >= gR1), Item(barrier().need(lg=['rw1']), gR1, gR1))
            sE.spread(fin1, gR1 + 1, gR1 + 50, gR1 + 52)
            E2 = C0 + 216
            e2 = [swaps('SW2', salu('s_bitcmp1_b32', sWv, 1), [(CACC2 + k, CACC2 + 16 + k) for k in range(16)]),
                  swaps('SW3', salu('s_bitcmp1_b32', sWv, 0), [(CACC2 + k, CACC2 + 8 + k) for k in range(8)] + [(CACC2 + 16 + k, CACC2 + 24 + k) for k in range(8)])]
            e2 += [salu('s_add_u32', ja, 's2', 512), salu('s_lshr_b32', ja, ja, 1), salu('s_lshl_b32', ja, ja, 2),
                   raw(f's_load_dword {sDv}, s[{pD}:{pD+1}], {ja}', 'smem', rd=[ja], wr=[sDv]),
                   salu('s_add_u32', sYb, 's78', WS_Y2),
                   salu('s_sub_u32', ja, SCR3 + 8320 + 504, sW1k), valu('v_sub_u32', V(vE), ja, V(vY)),
                   salu('s_mul_i32', ja, sWv, 6144), salu('s_add_u32', ja, ja, SCR0), valu('v_add_u32', V(vRR), ja, V(vH))]
            bneed_lg[0].append(('e', 1))
            for u in range(1, 4):
                e2 += [salu('s_xor_b32', ja, sWv, u), salu('s_mul_i32', ja, ja, 6144), salu('s_add_u32', ja, ja, SCR0 + (u - 1) * 2048), valu('v_add_u32', V(vRW), ja, V(vH))]
                e2 += [dswrite('ds_write_b128', V(vRW), V(CACC2 + 8 * u + 4 * t, 4), off=1024 * t, tag='rw2') for t in range(2)]
            sE.spread(e2, E2 + 3, E2 + 30, E2 + 34)
            gR2 = E2 + 36
            dv2 = [raw('s_waitcnt lgkmcnt(0)', 'drain_lg'), salu('s_lshl_b32', ja, sDv, 16), salu('s_and_b32', sDv, sDv, sMask),
                   salu('s_bitcmp0_b32', 's2', 0), salu('s_cselect_b32', sDv, ja, sDv)]
            xbars.append((gR2, dv2 + [barrier().need(lg=['rw2'])]))
            fin2 = cfin(CACC2, 2, 3, vRR, lambda t, u: 2048 * u + 1024 * t, 2)
            kd = max(i for i, x in enumerate(fin2) if x.kind == 'ds') + 1
            sE.spread(fin2[:kd], gR2 + 1, gR2 + 30, gR2 + 34)
            sE.spread(fin2[kd:], gR2 + 34, gR2 + 70, gR2 + 90)
            i1 = bar_after(gR2 + 38); bneed_lg[i1] += [('e', 2), ('rr', 2, 4)]
            for pg in list(range(24, 32)) + [4, 5, 6, 7]: page_free[pg] = bgap[i1] + 1
        bcol = {}; bearly = {}
        pf = dict(page_free)
        for bi, (gn, sl) in enumerate(blocks):
            n = len(sl)
            best = min(((max(pf[p + j] for j in range(n)), p) for p in pf if (p & 3) + n <= 4 and (n != 2 or p % 2 == 0)))
            bearly[bi], bcol[bi] = best
            i = bar_after(G2 + 2 * blk_last[bi] + 1)
            for j in range(n): pf[bcol[bi] + j] = 10**9 if i is None else bgap[i] + 1
        def g2read(f):
            k, s_, bi, kw, c = fr2[f]
            addr = (bcol[bi] >> 2) * 16384 + kw * 4096 + ((bcol[bi] & 3) + c) * 1024
            return dsread('ds_read_b128', V(WF2 + 4 * (f % NB2), 4), V([vH, vR1, vR2][addr >> 16]), off=addr & 65535, tag=('g', f))
        sG = Stream('g2frag', 0)
        xb = sorted(xbars, key=lambda x: x[0])
        for f in range(NF2):
            g0 = G2 + 2 * (f - D2)
            while xb and xb[0][0] <= g0 - 1:
                sG.add(xb[0][1], xb[0][0], xb[0][0]); xb.pop(0)
            if f in bf:
                i = bf.index(f)
                sG.add(stamp(26 + i, False) + [barrier().need(vm=bneed_vm[i], lg=bneed_lg[i])], g0 - 1, g0 - 1)
            sG.add(g2read(f), g0, g0)
        assert not xb
        def udma(bi, c):
            gn, sl = blocks[bi]
            r = []
            if c == 0: r.append(salu('s_add_u32', 'm0', sW4k, (bcol[bi] >> 2) * 16384 + (bcol[bi] & 3) * 1024 - SOFF[sl[0]]))
            assert SOFF[sl[c]] == SOFF[sl[0]] + 1024 * c
            r.append(bload_lds(V(vU[sl[c] >> 1]), sWS, GW[gn], off=SOFF[sl[c]], tag=('u', bi), flags=fUL))
            return r
        def hld(k):
            return [bload(hreg(k, mh), V(vHl2 if k & 2 else vHl), sWS, GSEQ[k >> 2], off=(k & 1) * 2048 + mh * 256, tag=('hl', k), flags=fHL) for mh in range(2)]
        def ld_fh(off, name):
            def mk(): return bload(V(ADR), V(vP), sWS, sM0X, off=64 * off, width=1, tag=('poll', name), flags=SC)
            return mk
        lhe, che = poll('HE', ld_fh(0, 'HE'), [ADR], False)
        lhl, chl = poll('HL', ld_fh(1, 'HL'), [ADR], False)
        gHE = C0 + GHE
        gHL = G2 + GHL
        def plan_loads(fl):
            uq = [(bgap[blk_seg[bi]], bearly[bi], 'u', (bi, c)) for bi, (gn, sl) in enumerate(blocks) for c in range(len(sl))]
            hq = []
            for k in range(36):
                ea = gHE if k < 24 else gHL
                if k >= 28: ea = max(ea, G2 + 1)
                hq.append((hneed[k], ea, 'h', k))
            late = [it for it in sL.items if it.at >= C0]
            sL.items = [it for it in sL.items if it.at < C0]
            g = gE0
            while uq[0][1] <= gE0 and (g < C0 - 8 or uq[0][3][1] != 0):
                for ins in udma(*uq.pop(0)[3]): sL.add(ins, g, int(g) + 2)
                g += EPACE
            assert g < C0
            sL.items += late
            g = C0 + (22 if three else 1)
            did = set()
            slack = (10**9, None)
            while uq or hq or 'fl' not in did:
                if 'lhe' not in did and g >= gHE - 40: sL.add(lhe, g, int(g) + LDL); did.add('lhe'); g += 1
                if 'lhl' not in did and g >= gHL - 40 and 'che' in did:
                    sL.add(lhl, g, int(g) + LDL); did.add('lhl'); g += 1
                if 'fl' not in did and g >= G2 + FLG and (not uq or uq[0][3][1] == 0):
                    for j, x in enumerate(fl): sL.add(x, g + j, int(g) + j + LDL)
                    g += len(fl); did.add('fl')
                cand = [q_ for q_ in (uq, hq) if q_ and q_[0][1] <= g]
                if not cand:
                    g = g + 1; continue
                q_ = min(cand, key=lambda z: z[0][0])
                need, ea, kind, ix = q_.pop(0)
                if kind == 'h' and ix == 0: sL.add(che, g); did.add('che')
                if kind == 'h' and ix == 24: sL.add(chl, g)
                for ins in (udma(*ix) if kind == 'u' else hld(ix)):
                    sL.add(ins, g, min(need - 24, int(g) + LDL))
                    if ins.kind in ('vmem', 'vmem_lds'):
                        slack = min(slack, (need - g, (kind, ix)))
                        g += PACE
            if verbose: print(tagp, "load stream ends at G2+%d, min slack %s" % (g - G2, slack))
            return g
        GA = G2 + 504
        QR = ET; YR = ET + 10; GR = ET + 20; FT = CACC
        fs = []; a_ = fs.append
        vQ, vG, vY2, vYR = vA[0], vA[1], vA[2], vA[3]
        sQ0, sQ1, sQ8, sG0, sRc, sRc8 = f's{HS}', f's{HS+1}', f's{HS+2}', f's{HS+3}', f's{HS+4}', f's{HS+5}'
        sY0, sY8 = f's{HS+6}', f's{HS+7}'
        a_(valu('v_and_b32', V(vG), 15, V(vL)))
        a_(valu('v_mul_u32_u24', V(vQ), 1152, V(vG)))
        a_(valu('v_lshrrev_b32', V(vY2), 4, V(vL)))
        a_(valu('v_lshl_add_u32', V(vQ), V(vY2), 3, V(vQ)))
        a_(valu('v_lshlrev_b32', V(vG), 2, V(vG)))
        a_(valu('v_lshrrev_b32', V(vY2), 2, V(vL)))
        a_(valu('v_lshlrev_b32', V(vYR), 6, V(vY2)))
        a_(valu('v_lshlrev_b32', V(vY2), 12, V(vY2)))
        a_(valu('v_and_b32', V(vB), 3, V(vL)))
        a_(valu('v_lshl_add_u32', V(vY2), V(vB), 4, V(vY2)))
        a_(valu('v_lshl_add_u32', V(vYR), V(vB), 3, V(vYR)))
        a_(salu('s_lshl_b32', ja, sWv, 12))
        a_(valu('v_add_u32', V(vYR), ja, V(vYR)))
        a_(salu('s_and_b32', ja, 's2', 1))
        a_(salu('s_lshl_b32', ja, ja, 3))
        a_(salu('s_bfe_u32', jb, 's2', hex(3 | (3 << 16))))
        a_(salu('s_add_u32', ja, ja, jb))
        a_(salu('s_lshr_b32', jb, 's2', 6))
        a_(salu('s_lshl_b32', jc, ja, 2))
        a_(salu('s_add_u32', 's78', jc, jb))
        a_(salu('s_add_u32', ja, jc, sWv))
        a_(salu('s_lshl_b32', jc, 's78', 2))
        a_(salu('s_add_u32', 's79', jc, sQ))
        a_(salu('s_lshl_b32', 's79', 's79', 2))
        a_(salu('s_add_u32', 's79', 's79', sWv))
        a_(salu('s_mul_i32', 's79', 's79', 6144))
        a_(salu('s_add_u32', sRc, 's79', WS_R))
        a_(salu('s_add_u32', WI[1], sRc, 4096))
        a_(salu('s_add_u32', jc, jc, sWv))
        a_(salu('s_lshl_b32', jc, jc, 12))
        a_(salu('s_and_b32', 's78', sQ, 1))
        a_(salu('s_lshl_b32', 's79', 's78', 3))
        a_(salu('s_add_u32', jc, jc, 's79'))
        a_(salu('s_add_u32', sRc8, jc, WS_R8))
        a_(salu('s_mul_i32', jb, jb, 9))
        a_(salu('s_lshl_b32', jc, sQ, 1))
        a_(salu('s_add_u32', jc, jc, jb))
        a_(salu('s_add_u32', jb, jb, 8))
        a_(salu('s_mul_i32', 's79', ja, 32 * 1152))
        a_(salu('s_lshl_b32', sQ0, jc, 5))
        a_(salu('s_add_u32', sQ0, sQ0, 's79'))
        a_(salu('s_add_u32', sQ1, sQ0, 18432))
        a_(salu('s_lshl_b32', sQ8, jb, 5))
        a_(salu('s_add_u32', sQ8, sQ8, 's79'))
        a_(salu('s_mul_i32', 's79', 's78', 18432))
        a_(salu('s_add_u32', sQ8, sQ8, 's79'))
        a_(salu('s_lshl_b32', sG0, ja, 7))
        a_(salu('s_add_u32', sG0, sG0, WS_G))
        a_(salu('s_lshl_b32', ja, ja, 6))
        a_(salu('s_add_u32', ja, ja, WS_Y2))
        a_(salu('s_lshl_b32', sY0, jc, 16))
        a_(salu('s_add_u32', sY0, sY0, ja))
        a_(salu('s_lshl_b32', sY8, jb, 16))
        a_(salu('s_add_u32', sY8, sY8, ja))
        a_(salu('s_lshl_b32', 's79', 's78', 5))
        a_(salu('s_add_u32', sY8, sY8, 's79'))
        a_(salu('s_lshl_b32', 's79', 's78', 6))
        a_(salu('s_add_u32', 's79', 's79', sG0))
        fs += mksrd(sT, pOUT, 2048 * 1152)
        sJ.spread(fs, G2 + 330, G2 + 400, G2 + 410)
        fl = []; a_ = fl.append
        for tl in range(4):
            s, mh = tl >> 1, tl & 1
            a_(bload(V(QR + 2 * tl, 2), V(vQ), sX, sQ1 if mh else sQ0, off=32 * s, width=2, tag='fq'))
        a_(bload(V(QR + 8, 2), V(vQ), sX, sQ8, width=2, tag='fq'))
        for mh in range(2): a_(bload(V(GR + mh), V(vG), sWS, sG0, off=64 * mh, width=1, tag='fq', flags=SC))
        a_(bload(V(GR + 2), V(vG), sWS, 's79', width=1, tag='fq', flags=SC))
        def ydma(tmp):
            return [salu('s_lshl_b32', 'm0', sWv, 12), bload_lds(V(vY2), sWS, sY0, tag='fy', flags=SC),
                    salu('s_add_u32', tmp, sY0, 65536 - 1024), bload_lds(V(vY2), sWS, tmp, off=1024, tag='fy', flags=SC),
                    salu('s_sub_u32', tmp, sY8, 2048), bload_lds(V(vY2), sWS, tmp, off=2048, tag='fy', flags=SC)]
        fl += ydma(tL)
        def recv_loads(tag):
            r = []
            for t in range(6): r.append(bload(V(RECV + 4 * t, 4), V(vH), sWS, WI[1] if t >= 4 else sRc, off=1024 * (t & 3), tag=tag, flags=SC))
            for u in range(4): r.append(bload(V(RECV + 24 + 2 * u, 2), V(vH), sWS, sRc8, off=1024 * u, width=2, tag=tag, flags=SC))
            return r
        gLend = plan_loads(fl)
        sS = Stream('send', 1)
        gsl = 0
        for sl in sorted(range(2, 9), key=lambda x: slast[x]):
            b = GACC + 8 * sl
            lst = [valu('v_cvt_pk_bf16_f32', V(b + j), V(b + 2 * j), V(b + 2 * j + 1)) for j in range(4)] + [send1(sl, V(b, 4), 'snd')]
            gsl = max(gsl, slast[sl] + 2)
            sS.spread(lst, gsl, gsl + 5, gsl + 8)
            gsl += 5
        gPA = max(gsl + 6, int(gLend) + 2)
        rl = recv_loads('rc')
        sL.spread(rl[:4], max(gPA, GEND - RCV - 30), GEND - RCV - 20)
        sL.spread(rl[4:], max(gPA, GEND - RCV), GEND - RCV + 12)
        def yreads():
            yr = []
            for tl in range(4):
                s, mh = tl >> 1, tl & 1
                yr.append(dsread('ds_read_b64_tr_b16', V(YR + 2 * tl, 2), V(vYR), off=1024 * s + 32 * mh, tag='yr'))
            yr.append(dsread('ds_read_b64_tr_b16', V(YR + 8, 2), V(vYR), off=2048, tag='yr'))
            return yr
        YT = ET + 24
        def yfold():
            r = [valu('v_pk_max_u16', V(YT), V(YR), V(YR + 1)), valu('v_pk_max_u16', V(YT + 1), V(YR + 2), V(YR + 3))]
            for k in range(4, 10): r.append(valu('v_pk_max_u16', V(YT + (k & 1)), V(YT + (k & 1)), V(YR + k)))
            r.append(valu('v_pk_max_u16', V(YT), V(YT), V(YT + 1)))
            r.append(valu('v_lshlrev_b32', V(YT + 1), 16, V(YT)))
            r.append(valu('v_max_u32', V(YT), V(YT), V(YT + 1)))
            return r
        ycmp = lambda: valu('v_cmp_le_u32', 'vcc', sMask, V(YT))
        yr = yreads()
        yr[0].need(vm=['fy'])
        yf = yfold(); yf[0].need(lg=['yr'])
        yr += yf
        yr.append(stamp(24, False) + [ycmp(), raw(f's_cbranch_vccnz SLOW_Y{tagp}', 'branch'), label(f'BACK_Y{tagp}')] + stamp(25, False))
        slow.extend(pad_hazards([label(f'SLOW_Y{tagp}'), raw('s_sleep 4')] + ydma(jb) + [raw('s_waitcnt vmcnt(0)', 'drain_vm')] + yreads() +
                                [raw('s_waitcnt lgkmcnt(0)', 'drain_lg')] + yfold() + [ycmp()] + spin_tail(f'SLOW_Y{tagp}', f'BACK_Y{tagp}')))
        AF = GACC + 16
        pa = list(yr)
        for tl in range(5):
            gi = GR + (tl & 1 if tl < 4 else 2)
            for r_ in range(4):
                sq = V(QR + 2 * tl + (r_ >> 1)); sy = V(YR + 2 * tl + (r_ >> 1))
                d1 = V(AF + 4 * tl + r_); d2 = V(AF + 20 + r_)
                if r_ & 1: i1 = valu('v_and_b32', d1, sMask, sq); i2 = valu('v_and_b32', d2, sMask, sy)
                else: i1 = valu('v_lshlrev_b32', d1, 16, sq); i2 = valu('v_lshlrev_b32', d2, 16, sy)
                if tl == 0 and r_ == 0: i1.need(vm=['fq']); i2.need(lg=['yr'])
                pa += [i1, i2]
            for r_ in range(4): pa.append(valu('v_mul_f32', V(AF + 4 * tl + r_), V(AF + 4 * tl + r_), V(AF + 20 + r_)))
            for r_ in range(4): pa.append(valu('v_mul_f32', V(AF + 4 * tl + r_), V(AF + 4 * tl + r_), V(gi)))
        for k in range(3): pa.append(valu('v_sub_f32', V(GR + k), '1.0', V(GR + k)))
        sE.spread(pa, gPA, GEND - 4)

        log = []
        body = schedule(mf, [sF, sG, sC, sS, sL, sE, sJ, sM], log)
        if verbose:
            print(tagp, "overflow cycles total", sum(x[1] for x in log), "by region:", {k: sum(x[1] for x in log if lo <= x[0] < hi) for k, (lo, hi) in
                  {'Q1': (0, 288), 'Q2': (288, 576), 'S': (576, 648), 'conv': (648, G2), 'A': (G2, GA), 'B': (GA, GEND)}.items()})
        nb = []; n = 0
        marks = {0: 1, 288: 2, 576: 3, G2: 5, GA: 6}
        if not STQ:
            for j in range(1, 6): marks[G2 + 84 * j] = 9 + j
        for ins in body:
            if ins.kind == 'mfma':
                if n == C0:
                    nb += stamp(4)
                    nb.append(salu('s_cmp_lt_u32', 's2', 64))
                    nb.append(raw('s_cbranch_scc1 KF_THREE', 'branch'))
                    nb.append(comment('SPLIT'))
                elif n in marks: nb += stamp(marks[n])
                n += 1
            nb.append(ins)
        body = nb
        body += stamp(7)
        MX = AF + 24
        def sent(need):
            r = []
            i0 = valu('v_max3_u32', V(MX), V(RECV), V(RECV + 1), V(RECV + 2))
            if need: i0.need(vm=['rc'])
            r.append(i0)
            r.append(valu('v_max3_u32', V(MX + 1), V(RECV + 3), V(RECV + 4), V(RECV + 5)))
            for k in range(6, 32, 4):
                r.append(valu('v_max3_u32', V(MX), V(MX), V(RECV + k), V(RECV + k + 1)))
                if k + 3 < 32: r.append(valu('v_max3_u32', V(MX + 1), V(MX + 1), V(RECV + k + 2), V(RECV + k + 3)))
            r.append(valu('v_max_u32', V(MX), V(MX), V(MX + 1)))
            r.append(valu('v_cmp_eq_u32', 'vcc', -1, V(MX)))
            return r
        body += sent(True)
        body += [raw(f's_cbranch_vccnz SLOW_R{tagp}', 'branch'), label(f'BACK_R{tagp}')]
        slow.extend(pad_hazards([label(f'SLOW_R{tagp}'), raw('s_sleep 2')] + recv_loads('rc') + [raw('s_waitcnt vmcnt(0)', 'drain_vm')] + sent(False) +
                                spin_tail(f'SLOW_R{tagp}', f'BACK_R{tagp}')))
        body += stamp(8)
        UT = RECV + 32
        def unpk(d, src, r_):
            return valu('v_and_b32', V(d), sMask, V(src + (r_ >> 1))) if r_ & 1 else valu('v_lshlrev_b32', V(d), 16, V(src + (r_ >> 1)))
        for tl in [0, 1, 2, 3, 4]:
            s_, mh = tl >> 1, tl & 1
            if tl < 4:
                accb = GACC + 8 * s_ + 4 * mh
                src = [RECV + 8 * u + 4 * s_ + 2 * mh for u in range(3)]
            else:
                accb = UT + 12
                for r_ in range(4): body.append(unpk(accb + r_, RECV + 24, r_))
                src = [RECV + 24 + 2 * u for u in range(1, 4)]
            gi = GR + (mh if tl < 4 else 2)
            for u in range(3):
                for r_ in range(4): body.append(unpk(UT + 4 * u + r_, src[u], r_))
            for r_ in range(4): body.append(valu('v_add_f32', V(UT + r_), V(UT + r_), V(UT + 4 + r_)))
            for r_ in range(4): body.append(valu('v_add_f32', V(accb + r_), V(accb + r_), V(UT + 8 + r_)))
            for r_ in range(4): body.append(valu('v_add_f32', V(accb + r_), V(accb + r_), V(UT + r_)))
            for r_ in range(4): body.append(valu('v_fmac_f32', V(AF + 4 * tl + r_), V(accb + r_), V(gi)))
            body.append(valu('v_cvt_pk_bf16_f32', V(AF + 4 * tl), V(AF + 4 * tl), V(AF + 4 * tl + 1)))
            body.append(valu('v_cvt_pk_bf16_f32', V(AF + 4 * tl + 1), V(AF + 4 * tl + 2), V(AF + 4 * tl + 3)))
            if tl < 4: body.append(bstore(V(AF + 4 * tl, 2), V(vQ), sT, sQ1 if mh else sQ0, off=32 * s_, width=2))
            else: body.append(bstore(V(AF + 4 * tl, 2), V(vQ), sT, sQ8, width=2))
        if stamps:
            body.append(raw('s_waitcnt vmcnt(0)', 'drain_vm'))
            body += stamp(9)
            body += [salu('s_lshl_b32', ja, 's2', 2), salu('s_add_u32', ja, ja, sWv), salu('s_lshl_b32', ja, ja, 8), salu('s_add_u32', ja, ja, 64 << 20),
                     valu('v_lshlrev_b32', V(vT0), 2, V(vL)), bstore(V(vST), V(vT0), sWS, ja, width=1)]
        body.append(raw('s_endpgm', 'end'))
        allins = pad_hazards(insert_waits(P + body))
        return allins, slow

    two, slow2 = build(False)
    thr, slow3 = build(True)
    def split(l):
        k = next(i for i, x in enumerate(l) if x.kind == 'comment' and 'SPLIT' in x.text)
        return l[:k + 1], l[k + 1:]
    p2, s2_ = split(two); p3, s3_ = split(thr)
    assert [x.text for x in p2] == [x.text for x in p3], "prefix mismatch"
    out = p2 + s2_ + [label('KF_THREE'), nop(7)] + s3_ + slow2 + slow3 + [label('KF_END'), raw('s_endpgm', 'end')]
    return out

if __name__ == '__main__':
    ins = gen_f(verbose=True)
    print(len(ins))
```

```python
import re

def regs(spec):
    if spec is None: return set()
    if isinstance(spec, (list, tuple, set)):
        r = set()
        for s in spec: r |= regs(s)
        return r
    if not isinstance(spec, str): return set()
    spec = spec.strip()
    if spec.startswith('-'): spec = spec[1:]
    m = re.fullmatch(r'([vas])(\d+)', spec)
    if m: return {(m.group(1), int(m.group(2)))}
    m = re.fullmatch(r'([vas])\[(\d+):(\d+)\]', spec)
    if m: return {(m.group(1), i) for i in range(int(m.group(2)), int(m.group(3)) + 1)}
    if spec in ('vcc', 'exec', 'm0', 'scc'): return {(spec, 0)}
    return set()

def R(f, lo, n=1):
    return f"{f}{lo}" if n == 1 else f"{f}[{lo}:{lo+n-1}]"
def V(lo, n=1): return R('v', lo, n)
def A(lo, n=1): return R('a', lo, n)
def S(lo, n=1): return R('s', lo, n)

class Inst:
    __slots__ = ('text', 'kind', 'rd', 'wr', 'tag', 'nvm', 'nlg', 'passes', 'srcc', 'cost', 'ta')
    def __init__(self, text, kind, rd=None, wr=None, tag=None, nvm=None, nlg=None, passes=0, srcc=None, cost=1):
        self.text = text; self.kind = kind
        self.rd = regs(rd); self.wr = regs(wr)
        self.tag = tag
        self.nvm = list(nvm) if nvm else []
        self.nlg = list(nlg) if nlg else []
        self.passes = passes
        self.srcc = regs(srcc)
        self.cost = cost
        self.ta = 0
        if kind in ('vmem', 'vmem_lds', 'vstore'):
            op = text.split()[0]
            self.ta = 64 if 'x4' in op else (48 if ('x3' in op or 'x2' in op) else 32)
    def w(self, ta):
        self.ta = ta; return self
    def need(self, vm=None, lg=None):
        if vm: self.nvm += list(vm) if isinstance(vm, (list, tuple)) else [vm]
        if lg: self.nlg += list(lg) if isinstance(lg, (list, tuple)) else [lg]
        return self

TRANS = ('v_exp_f32', 'v_rcp_f32', 'v_log_f32', 'v_rsq_f32', 'v_sqrt_f32', 'v_sin_f32', 'v_cos_f32')

def mfma32(d, a, b, c):
    return Inst(f"v_mfma_f32_32x32x16_bf16 {d}, {a}, {b}, {c}", 'mfma', rd=[a, b, c], wr=[d], passes=8, srcc=c)
def mfma16(d, a, b, c):
    return Inst(f"v_mfma_f32_16x16x32_bf16 {d}, {a}, {b}, {c}", 'mfma', rd=[a, b, c], wr=[d], passes=4, srcc=c)
def valu(op, d, *src, extra_rd=None, extra_wr=None, mod=""):
    kind = 'trans' if op in TRANS else ('dot' if op.startswith('v_dot') else ('perml' if 'permlane' in op else 'valu'))
    rd = list(src) + (extra_rd or [])
    wr = [d] + (extra_wr or [])
    if op in ('v_fmac_f32', 'v_dot2c_f32_bf16'): rd.append(d)
    if kind == 'perml':
        rd.append(d); wr += list(src)
    return Inst(f"{op} {d}, " + ", ".join(str(s) for s in src) + (" " + mod if mod else ""), kind, rd=rd, wr=wr, cost=2 if kind == 'trans' else 1)
def salu(op, d, *src):
    wr = [d]
    if op.startswith('s_cmp') or op.startswith('s_bitcmp'):
        return Inst(f"{op} {d}, " + ", ".join(str(s) for s in src), 'salu', rd=[d] + list(src), wr=['scc'])
    rd = list(src)
    if op in ('s_cselect_b32', 's_cselect_b64', 's_addc_u32'): rd.append('scc')
    return Inst(f"{op} {d}, " + ", ".join(str(s) for s in src), 'salu', rd=rd, wr=wr + ['scc'])
def raw(text, kind='other', **kw):
    return Inst(text, kind, **kw)
def bload(d, voff, srd, soff, off=0, width=4, tag=None, flags=""):
    op = {1: 'buffer_load_dword', 2: 'buffer_load_dwordx2', 4: 'buffer_load_dwordx4', 'u16': 'buffer_load_ushort', 'd16': 'buffer_load_short_d16', 'd16hi': 'buffer_load_short_d16_hi'}[width]
    t = f"{op} {d}, {voff}, {srd}, {soff} offen" + (f" offset:{off}" if off else "") + (" " + flags if flags else "")
    rd = [voff, srd, soff] + ([d] if width in ('d16', 'd16hi') else [])
    return Inst(t, 'vmem', rd=rd, wr=[d], tag=tag)
def bload_lds(voff, srd, soff, off=0, tag=None, flags=""):
    t = f"buffer_load_dwordx4 {voff}, {srd}, {soff} offen" + (f" offset:{off}" if off else "") + (" " + flags if flags else "") + " lds"
    return Inst(t, 'vmem_lds', rd=[voff, srd, soff, 'm0'], tag=tag)
def bstore(d, voff, srd, soff, off=0, width=4, tag=None, flags=""):
    op = {1: 'buffer_store_dword', 2: 'buffer_store_dwordx2', 4: 'buffer_store_dwordx4'}[width]
    t = f"{op} {d}, {voff}, {srd}, {soff} offen" + (f" offset:{off}" if off else "") + (" " + flags if flags else "")
    return Inst(t, 'vstore', rd=[d, voff, srd, soff], tag=tag)
def dsread(op, d, addr, off=0, tag=None, offtext=None):
    t = f"{op} {d}, {addr}" + (f" {offtext}" if offtext else (f" offset:{off}" if off else ""))
    return Inst(t, 'ds', rd=[addr], wr=[d], tag=tag)
def dswrite(op, addr, d, off=0, tag=None):
    t = f"{op} {addr}, {d}" + (f" offset:{off}" if off else "")
    return Inst(t, 'ds', rd=[addr, d], tag=tag)
def barrier():
    return Inst("s_barrier", 'barrier')
def nop(n):
    return Inst(f"s_nop {n}", 'nop', cost=n + 1)
def label(name):
    return Inst(f"{name}:", 'label', cost=0)
def comment(t):
    return Inst(f"; {t}", 'comment', cost=0)

VM_KINDS = ('vmem', 'vmem_lds', 'vstore', 'vatomic')

def insert_waits(insts, max_vm=63):
    out = []
    vm = []; lg = []
    vm_done = 0; lg_done = 0
    for ins in insts:
        if ins.kind == 'drain':
            vm_done = len(vm); lg_done = len(lg)
            out.append(ins); continue
        if ins.kind == 'drain_lg':
            lg_done = len(lg); out.append(ins); continue
        if ins.kind == 'drain_vm':
            vm_done = len(vm); out.append(ins); continue
        wv = None; wl = None
        if ins.nvm:
            idx = max(max(i for i, t in enumerate(vm) if t == tg) for tg in ins.nvm)
            if idx + 1 > vm_done:
                wv = len(vm) - 1 - idx
                assert wv <= max_vm, f"vmcnt {wv} too large at {ins.text}"
                vm_done = idx + 1
        if ins.nlg:
            idx = max(max(i for i, t in enumerate(lg) if t == tg) for tg in ins.nlg)
            if idx + 1 > lg_done:
                wl = len(lg) - 1 - idx
                if wl > 15: wl = 15
                lg_done = len(lg) - wl
        if wv is not None or wl is not None:
            t = "s_waitcnt" + (f" vmcnt({wv})" if wv is not None else "") + (f" lgkmcnt({wl})" if wl is not None else "")
            out.append(Inst(t, 'wait'))
        if ins.kind in VM_KINDS and len(vm) - vm_done >= 63:
            out.append(Inst("s_waitcnt vmcnt(62)", 'wait')); vm_done = len(vm) - 62
        out.append(ins)
        if ins.kind in VM_KINDS:
            vm.append(ins.tag)
        if ins.kind == 'ds':
            lg.append(ins.tag)
    return out

def is_valu(k): return k in ('valu', 'trans', 'dot', 'perml')

def need_states(p, c):
    n = 0
    pw = p.wr;
    vw = {r for r in pw if r[0] in 'va'}
    sw = {r for r in pw if r[0] == 's' or r[0] in ('vcc',)}
    if is_valu(p.kind):
        if c.kind == 'mfma' and (vw & c.rd): n = max(n, 2)
        if c.kind == 'perml' and (vw & c.rd): n = max(n, 2)
        if p.kind == 'trans' and is_valu(c.kind) and c.kind != 'trans' and (vw & c.rd): n = max(n, 1)
        if p.kind == 'trans' and c.kind == 'trans' and (vw & c.rd): n = max(n, 1)
        if p.kind == 'dot' and (vw & (c.rd | c.wr)):
            if not (c.kind == 'dot' and c.text.split()[0] == p.text.split()[0] and not (vw & (c.rd - c.srcc)) ):
                n = max(n, 3)
        if sw:
            if c.kind in VM_KINDS and (sw & c.rd): n = max(n, 5)
            if is_valu(c.kind) and (sw & c.rd): n = max(n, 2)
            if c.kind == 'salu' and (sw & c.rd): n = max(n, 1)
        if ('readfirstlane' in c.text or 'readlane' in c.text) and (vw & c.rd): n = max(n, 1)
        if 'dpp' in c.text and (vw & c.rd): n = max(n, 2)
        if ('exec', 0) in pw and c.kind == 'mfma': n = max(n, 4)
    if p.kind == 'mfma':
        big = {2: 5, 4: 8, 8: 12, 16: 20}[p.passes]
        if c.kind == 'mfma':
            ab = c.rd - c.srcc
            if vw & ab: n = max(n, big)
            if (vw & c.srcc) and not (vw == c.srcc and p.passes == c.passes): n = max(n, big - 2)
        else:
            if vw & (c.rd | c.wr): n = max(n, big)
            if is_valu(c.kind) and (p.srcc & c.wr): n = max(n, {2: 1, 4: 3, 8: 7, 16: 15}[p.passes])
    if p.kind == 'salu' and ('m0', 0) in pw and c.kind == 'vmem_lds': n = max(n, 1)
    if p.kind == 'vstore' and 'x4' in p.text.split()[0] and (p.rd & c.wr): n = max(n, 2)
    return n

def pad_hazards(insts, window=24):
    out = []
    for ins in insts:
        if ins.kind in ('label', 'comment'):
            out.append(ins); continue
        dist = 0; need = 0
        for p in reversed(out):
            if p.kind == 'comment': continue
            if p.kind == 'label': continue
            rq = need_states(p, ins)
            if rq > dist: need = max(need, rq - dist)
            dist += p.cost if p.kind == 'nop' else 1
            if dist >= window: break
        while need > 0:
            k = min(need, 16)
            out.append(nop(k - 1)); need -= k
        out.append(ins)
    return out

def render(insts):
    lines = []
    for i in insts:
        if i.kind == 'label': lines.append(i.text)
        else: lines.append("    " + i.text)
    return "\n".join(lines)
```

```python
from asmlib import *
from sched2 import *
from layout_f import *

SC = "sc1"

def gen_f(stamps=False, rot=False, QSP=8, D=4, NB=5, D2=4, NB2=6, PACE=4.0, NBF=16, SPIN=20000, verbose=False, fHS=SC, fWS=SC, fHL=SC, fUL=SC, FHLG=210, JBF=34, GHE=60, GHL=150, LDL=6, SEGV=1, W2=1, EPACE=3, FLG=430, RCV=50, TOUCH=0, CPF=5, STQ=0, NOJOB=0, PROF=0, PLO=0, NFL='', LSH=0, TCH=1, SNT=(404, 596), J2G=300, W2O=(70, 36), PST=0, NA=17, LORD='W0 X0 N W1 X1 T23', FSK=2, FPL=10, WIN=('T45', 'G KK T67', 'KV NL T8', 'R1 TQa', 'TQb TQ8', '', ''), GC0=84, KV0=122, KVS=15):
    VX0 = 0; ACC = 32; WF = 192; TMP = 212; ADR = 220; AS0 = 232; XR = 236
    vX0 = 240; vX1 = 241; vW = 242; vS = 243; vH = 244; vT0 = 245; vT1 = 246; vST = 247; vL = 248
    pK, pV, pSK, pSSM, pD, pW2, pGW, pOUT, pDBG = 6, 8, 10, 12, 14, 22, 24, 26, 28
    sX, sW, sWS, sT, sU = S(32, 4), S(36, 4), S(40, 4), S(44, 4), S(48, 4)
    sWv, sQ, sRot, sM0, sM0S, sM0X = 's52', 's53', 's54', 's55', 's56', 's57'
    WI = ['0', 's58', 's59', 's60']
    XJ = ['0'] + [f's{60+j}' for j in range(1, 8)]
    HS = 68
    sNL, sNonce = 's76', 's77'
    sJM, sJM2 = 's[78:79]', 's[80:81]'
    tL = 's82'
    tJ = ['s83', 's84', 's85']
    sCC = 's[86:87]'
    GSEQ = ['s61', 's62', 's63', 's64', 's65', 's66', 's67', 's4', 's5']
    TT = ['s16', 's17', 's18', 's19', 's20', 's21', 's30']; sTB = 's31'
    sWq, sWcur, sHb, sHcur, sW1k = 's88', 's89', 's90', 's91', 's92'
    SEND = ['s93', 's94', 's95']; sSend8 = 's96'
    sScr, sDv, sMask, sYb, sFH = 's97', 's98', 's99', 's100', 's101'

    def xreg(s, rt):
        if s < 4: return V(VX0 + s * 8 + rt * 4, 4)
        return A((s - 4) * 8 + rt * 4, 4)
    hreg = xreg
    def acc(s, rt): return ACC + s * 32 + rt * 16
    def mksrd(srd, ptr, nbytes):
        lo = int(srd[2:srd.index(':')])
        return [salu('s_mov_b64', S(lo, 2), S(ptr, 2)), salu('s_mov_b32', f's{lo+2}', nbytes)]
    def smov64(d, s): return Inst(f"s_mov_b64 {d}, {s}", 'salu', rd=[s], wr=[d])

    def build(three):
        tagp = 'T' if three else 'D'
        slow = []
        nst = [0]
        def stamp(i, q=True):
            if not stamps or PROF: return []
            if STQ and not q: return []
            r = [raw('s_memtime s[86:87]', 'smem', wr=['s[86:87]']), raw('s_waitcnt lgkmcnt(0)', 'drain_lg'),
                 Inst(f"v_writelane_b32 v{vST}, s86, {i}", 'valu', rd=['s86', V(vST)], wr=[V(vST)])]
            if i < 10:
                r += [raw('s_memrealtime s[86:87]', 'smem', wr=['s[86:87]']), raw('s_waitcnt lgkmcnt(0)', 'drain_lg'),
                      Inst(f"v_writelane_b32 v{vST}, s86, {48 + i}", 'valu', rd=['s86', V(vST)], wr=[V(vST)])]
            return r
        def spin_tail(sl, bk):
            return [raw(f's_cbranch_vccz {bk}', 'branch'), salu('s_sub_u32', 's3', 's3', 1), raw(f's_cbranch_scc0 {sl}', 'branch'),
                    salu('s_mov_b32', 's3', 0), raw(f's_branch {bk}', 'branch')]
        def poll(name, mkload, regs, common):
            lab = name if common else name + tagp
            def cmps(need):
                r = []
                for j, rg in enumerate(regs):
                    if j == 0:
                        i = valu('v_cmp_ne_u32', 'vcc', sNonce, V(rg))
                        if need: i.need(vm=[('poll', name)])
                        r.append(i)
                    else:
                        r.append(valu('v_cmp_ne_u32', sCC, sNonce, V(rg)))
                        r.append(Inst(f"s_or_b64 vcc, vcc, {sCC}", 'salu', rd=['vcc', sCC], wr=['vcc', 'scc']))
                return r
            pi = {'J1': 16, 'J2': 18, 'HE': 20, 'HL': 22, 'Y': 24}[name]
            chk = stamp(pi, False) + cmps(True) + [raw(f's_cbranch_vccnz SLOW_{lab}', 'branch'), label(f'BACK_{lab}')] + stamp(pi + 1, False)
            if not (common and three):
                sl = [label(f'SLOW_{lab}'), raw('s_sleep 4'), mkload(), raw('s_waitcnt vmcnt(0)', 'drain_vm')] + cmps(False)
                sl += spin_tail(f'SLOW_{lab}', f'BACK_{lab}')
                slow.extend(pad_hazards(sl))
            return mkload(), chk

        P = []; e = P.append
        e(salu('s_cmp_ge_u32', 's2', 256))
        e(raw('s_cbranch_scc1 KF_END', 'branch'))
        e(raw('s_load_dwordx16 s[4:19], s[0:1], 0', 'smem', wr=['s[4:19]']))
        e(raw('s_load_dwordx8 s[20:27], s[0:1], 64', 'smem', wr=['s[20:27]']))
        e(raw('s_load_dwordx4 s[28:31], s[0:1], 96', 'smem', wr=['s[28:31]']))
        e(valu('v_lshrrev_b32', V(vT0), 6, 'v0'))
        e(valu('v_and_b32', V(vL), 63, 'v0'))
        if CPF:
            e(raw('s_getpc_b64 s[44:45]', 'salu', wr=['s[44:45]']))
            e(label('KF_PC'))
            e(salu('s_mov_b32', 's46', 'KF_END-KF_PC'))
            e(salu('s_mov_b32', 's47', 0x20000))
            e(salu('s_lshr_b32', 's88', 's2', 3))
            e(valu('v_lshl_add_u32', V(vT1), 's88', 2, V(vT0)))
            e(valu('v_lshl_add_u32', V(vT1), V(vL), 7, V(vT1)))
            e(valu('v_lshlrev_b32', V(vT1), 7, V(vT1)))
            e(smov64('exec', str((1 << CPF) - 1)))
            e(bload(V(AS0 + 3), V(vT1), sT, '0', width=1, tag='touch'))
            e(smov64('exec', '-1'))
        tx, tidx, tmt, ti, tl1, tls, tcs, trg, tw1, ta, tb, tr9 = [f's{n}' for n in range(88, 100)]
        e(salu('s_and_b32', tx, 's2', 7))
        e(salu('s_mov_b32', 's3', SPIN))
        e(valu('v_readfirstlane_b32', sWv, V(vT0)))
        e(salu('s_lshr_b32', tidx, 's2', 3))
        e(salu('s_and_b32', tmt, tx, 1))
        e(salu('s_lshl_b32', tmt, tmt, 2))
        e(salu('s_and_b32', ta, tidx, 3))
        e(salu('s_add_u32', tmt, tmt, ta))
        e(salu('s_lshr_b32', sQ, tx, 1))
        e(salu('s_lshr_b32', ti, tidx, 2))
        e(salu('s_mul_i32', ta, sQ, 18))
        if LSH:
            e(salu('s_add_u32', tl1, ti, LSH))
            e(salu('s_and_b32', tl1, tl1, 7))
            e(salu('s_add_u32', tl1, tl1, ta))
        else:
            e(salu('s_add_u32', tl1, ti, ta))
        e(salu('s_lshr_b32', tls, ti, 2))
        e(salu('s_add_u32', tls, tls, ta))
        e(salu('s_add_u32', tls, tls, 16))
        e(salu('s_and_b32', tcs, ti, 3))
        if rot:
            e(salu('s_add_u32', sRot, ti, tidx))
            e(salu('s_and_b32', sRot, sRot, 3))
            e(salu('s_lshl_b32', sRot, sRot, 1))
        else:
            e(salu('s_mov_b32', sRot, 0))
        e(salu('s_mul_i32', tr9, sRot, 589824))
        e(salu('s_lshr_b32', trg, sWv, 1))
        e(salu('s_and_b32', tw1, sWv, 1))
        e(valu('v_lshrrev_b32', V(TMP), 3, V(vL)))
        e(salu('s_lshl_b32', 's100', tw1, 5))
        e(valu('v_add_u32', V(vT0), 's100', V(TMP)))
        e(salu('s_movk_i32', 's101', 9216))
        e(valu('v_mul_lo_u32', V(vW), V(vT0), 's101'))
        e(valu('v_bfe_u32', V(vT0), V(vL), 1, 2))
        e(valu('v_bfe_u32', V(vT1), V(vL), 4, 1))
        e(salu('s_lshl_b32', ta, trg, 1))
        e(valu('v_add_u32', V(vT1), ta, V(vT1)))
        e(valu('v_xor_b32', V(vT0), V(vT0), V(vT1)))
        e(valu('v_lshl_add_u32', V(vW), V(vT0), 5, V(vW)))
        e(valu('v_and_b32', V(TMP + 1), 1, V(vL)))
        e(valu('v_lshl_add_u32', V(vW), V(TMP + 1), 4, V(vW)))
        e(salu('s_lshl_b32', ta, tl1, 7))
        e(salu('s_add_u32', ta, ta, tr9))
        e(valu('v_add_u32', V(vW), ta, V(vW)))
        e(salu('s_lshl_b32', ta, tmt, 8))
        e(salu('s_lshl_b32', tb, sWv, 6))
        e(salu('s_add_u32', ta, ta, tb))
        e(valu('v_add_u32', V(vT0), ta, V(TMP)))
        e(salu('s_movk_i32', tb, 1152))
        e(valu('v_mul_lo_u32', V(vX0), V(vT0), tb))
        e(salu('s_lshl_b32', tb, sRot, 7))
        e(valu('v_add_u32', V(vX0), tb, V(vX0)))
        e(valu('v_lshrrev_b32', V(vT0), 4, V(vL)))
        e(valu('v_and_b32', V(vT1), 7, V(vL)))
        e(valu('v_xor_b32', V(vT0), V(vT0), V(vT1)))
        e(valu('v_xor_b32', V(vT1), 4, V(vT0)))
        e(valu('v_lshl_add_u32', V(vX1), V(vT1), 4, V(vX0)))
        e(valu('v_lshl_add_u32', V(vX0), V(vT0), 4, V(vX0)))
        e(salu('s_lshl_b32', sM0, trg, 13))
        e(salu('s_lshl_b32', ta, tw1, 12))
        e(salu('s_add_u32', sM0, sM0, ta))
        e(salu('s_lshr_b32', sM0S, sM0, 2))
        e(salu('s_lshl_b32', sM0X, sWv, 13))
        for j in range(1, 8): e(salu('s_mov_b32', XJ[j], j * 9216 - (j & 3) * 1024))
        for j in range(1, 4): e(salu('s_mov_b32', WI[j], j * 72704))
        e(salu('s_mov_b32', 's34', 2048 * 1152))
        e(salu('s_mov_b32', 's35', 0x20000))
        e(salu('s_mov_b32', 's38', 576 * 9216))
        e(salu('s_mov_b32', 's39', 0x20000))
        e(salu('s_mov_b32', 's42', WS_END if not stamps else 128 << 20))
        e(salu('s_mov_b32', 's43', 0x20000))
        e(salu('s_mov_b32', 's47', 0x20000))
        e(salu('s_mov_b32', 's51', 0x20000))
        e(salu('s_mov_b32', 'm0', sM0))
        kwait = len(P)
        e(raw('s_waitcnt lgkmcnt(0)', 'drain_lg'))
        e(salu('s_cmp_eq_u32', trg, 0))
        e(salu('s_cselect_b32', 's36', 's18', 's20'))
        e(salu('s_cselect_b32', 's37', 's19', 's21'))
        e(smov64('s[32:33]', 's[4:5]'))
        e(smov64('s[40:41]', 's[30:31]'))

        def slotQ1(t): return t % 4
        Q2SLOT = [8, 9, 6, 7, 1, 4, 5, 2, 3]
        def spos(t): return t if t < 4 else 32 + (t - 4)
        def step(vreg, t, stride, extra=0, vreg2=None):
            r = []
            wr = (9 - t) % 9
            if not rot:
                src = hex((-8 * stride + extra) & 0xffffffff) if wr == 0 else stride + extra
            elif wr in (0, 2, 4, 6):
                r.append([salu('s_cmp_eq_u32', sRot, wr), salu('s_mov_b32', tL, stride + extra),
                          salu('s_cselect_b32', tL, hex((-8 * stride + extra) & 0xffffffff), tL)])
                src = tL
            else:
                src = stride + extra
            r.append(valu('v_add_u32', V(vreg), src, V(vreg)))
            if vreg2 is not None: r.append(valu('v_add_u32', V(vreg2), src, V(vreg2)))
            return r
        def wdma(ph, t, first=False):
            r = []
            slot = slotQ1(t) if ph == 'Q1' else Q2SLOT[t]
            if not first:
                r += step(vW, t, 589824, 1024 if (ph == 'Q2' and t == 0) else 0)
                r.append(salu('s_add_u32', 'm0', sM0, slot * 16384))
            for i in range(4): r.append(bload_lds(V(vW), sW, WI[i], off=i * 1024, tag=('w', ph, t)))
            return r
        def xdma(t):
            r = []
            if t > 0: r += step(vX0, t, 128, 0, vX1)
            for j in range(8):
                if j % 4 == 0: r.append(salu('s_add_u32', 'm0', sM0X, 65536 + (t % 2) * 32768 + (j >> 2) * 4096))
                ins = bload_lds(V(vX0 + (j & 1)), sX, XJ[j], off=(j & 3) * 1024, tag=('xd', t, j >> 2))
                if j == 0 and t >= 2: ins.need(lg=[('xr', t - 2)])
                r.append(ins)
            return r
        def xread(t):
            r = []
            for rt in range(2):
                for s in range(4):
                    ins = dsread('ds_read_b128', xreg(4 * t + s, rt), V(XR + s), off=(t % 2) * 32768 + rt * 4096, tag=('xr', t))
                    if s == 0: ins.need(vm=[('xd', t, rt)])
                    r.append(ins)
            return r
        def sdma(t):
            r = []
            if t > 0: r += step(vS, t, 589824)
            r.append(salu('s_add_u32', 'm0', sM0S, spos(t) * 4096))
            r.append(bload_lds(V(vS), sW, '0', tag=('s', t)))
            return r
        def flat(lst):
            o = []
            for i in lst:
                if isinstance(i, list): o += i
                else: o.append(i)
            return o
        P += stamp(0)
        if PROF: P.append(raw('s_memtime s[0:1]', 'smem', wr=['s[0:1]']))
        npst = [0]
        def pst():
            if not PST: return []
            npst[0] += 1
            return [raw('s_waitcnt lgkmcnt(0)', 'drain_lg'), Inst(f"v_writelane_b32 v{vST}, s0, {npst[0] - 1}", 'valu', rd=['s0', V(vST)], wr=[V(vST)]), raw('s_memtime s[0:1]', 'smem', wr=['s[0:1]'])]
        F = []; e = F.append
        vTW, vTX, vDum = AS0 + 1, AS0 + 2, AS0 + 3
        e(salu('s_lshl_b32', ta, tmt, 3))
        e(salu('s_add_u32', ta, ta, ti))
        e(salu('s_lshl_b32', ta, ta, 2))
        e(salu('s_add_u32', ta, ta, sWv))
        e(salu('s_mul_i32', ta, ta, 8 * 1152))
        e(valu('v_and_b32', V(vT0), 7, V(vL)))
        e(valu('v_mul_u32_u24', V(vT0), 1152, V(vT0)))
        e(valu('v_lshl_add_u32', V(vT0), V(TMP), 7, V(vT0)))
        e(valu('v_add_u32', V(vTX), ta, V(vT0)))
        def touch(mask, x=True, w=True, soffx='0', soffw='0', offw=0, pre_=()):
            if not TCH: return []
            r = list(pre_) + [salu('s_mov_b32', 'exec_lo', hex(mask & 0xffffffff)), salu('s_mov_b32', 'exec_hi', hex(mask >> 32))]
            n = bin(mask).count('1')
            if x: r.append(bload(V(vDum), V(vTX), sX, soffx, width=1, tag='touch').w(4 * n))
            if w: r.append(bload(V(vDum), V(vTW), sW, soffw, off=offw, width=1, tag='touch').w(4 * n))
            r.append(smov64('exec', '-1'))
            return r
        e(salu('s_and_b32', ta, tidx, 3))
        e(salu('s_lshl_b32', ta, ta, 1))
        e(salu('s_add_u32', ta, ta, tw1))
        e(salu('s_mul_i32', ta, ta, 9216))
        e(salu('s_lshl_b32', tb, tl1, 7))
        e(salu('s_add_u32', ta, ta, tb))
        e(valu('v_mul_u32_u24', V(vTW), 8 * 9216, V(vL)))
        e(valu('v_add_u32', V(vTW), ta, V(vTW)))
        e(valu('v_lshrrev_b32', V(vT0), 1, V(vL)))
        e(salu('s_lshl_b32', ta, trg, 2))
        e(valu('v_xor_b32', V(vT0), ta, V(vT0)))
        e(valu('v_add_u32', V(vT0), 's100', V(vT0)))
        e(valu('v_mul_lo_u32', V(vS), V(vT0), 's101'))
        e(valu('v_lshl_add_u32', V(vS), V(TMP + 1), 4, V(vS)))
        e(salu('s_lshl_b32', ta, tls, 7))
        e(salu('s_lshl_b32', tb, tcs, 5))
        e(salu('s_add_u32', ta, ta, tb))
        e(salu('s_add_u32', ta, ta, tr9))
        e(valu('v_add_u32', V(vS), ta, V(vS)))
        J0 = 160
        vKR, vKS, vO4 = 249, 250, 251
        vG0, vG1 = 252, 253
        e(salu('s_lshl_b32', ta, tmt, 3))
        e(salu('s_add_u32', ta, ta, ti))
        e(salu('s_lshl_b32', ta, ta, 2))
        e(salu('s_add_u32', ta, ta, sQ))
        e(salu('s_lshl_b32', ta, ta, 2))
        e(salu('s_add_u32', ta, ta, sWv))
        e(valu('v_and_b32', V(vG1), 31, V(vL)))
        e(valu('v_mul_u32_u24', V(vG1), 12, V(vG1)))
        e(valu('v_lshrrev_b32', V(vO4), 5, V(vL)))
        e(valu('v_mul_u32_u24', V(vG0), 1152, V(vO4)))
        e(valu('v_add_u32', V(vG0), V(vG0), V(vG1)))
        e(salu('s_mul_i32', tb, ta, 2304))
        e(valu('v_add_u32', V(vG0), tb, V(vG0)))
        def bl3(d, voff, srd, soff, off, tag):
            return Inst(f"buffer_load_dwordx3 {V(d, 3)}, {voff}, {srd}, {soff} offen" + (f" offset:{off}" if off else ""), 'vmem', rd=[voff, srd, soff], wr=[V(d, 3)], tag=tag)
        gld = mksrd(sT, pGW, 1152)
        for j in range(3):
            gld.append(bl3(J0 + 8 * j, V(vG0), sX, '0', 384 * j, 'gx'))
            gld.append(bl3(J0 + 8 * j + 4, V(vG1), sT, '0', 384 * j, 'gx').w(32))
        e(valu('v_lshlrev_b32', V(vO4), 2, V(vO4)))
        e(salu('s_lshl_b32', ta, ta, 3))
        e(valu('v_add_u32', V(vO4), ta, V(vO4)))
        NB_ = [salu('s_or_b32', 's86', 's2', sWv), salu('s_cmp_lg_u32', 's86', 0), raw('s_cbranch_scc1 KF_NONONCE', 'branch'),
               raw('s_memrealtime s[86:87]', 'smem', wr=['s[86:87]']), valu('v_mov_b32', V(254), 0), raw('s_waitcnt lgkmcnt(0)', 'drain_lg'),
               salu('s_or_b32', 's86', 's86', 1), valu('v_mov_b32', V(255), 's86'), smov64('exec', '1'),
               raw(f'global_store_dword v254, v255, s[{pDBG}:{pDBG+1}] sc1', 'other'), smov64('exec', '-1'), label('KF_NONONCE')]
        t_regl, t_r, t_base, t_sw = TMP + 2, TMP + 3, TMP + 4, TMP + 5
        T6, T7 = TMP + 6, TMP + 7
        vC1 = TMP + 1
        e(valu('v_bfe_u32', V(t_regl), V(vL), 1, 1))
        e(valu('v_bfe_u32', V(t_r), V(vL), 2, 2))
        e(valu('v_lshrrev_b32', V(T7), 5, V(vL)))
        e(valu('v_lshl_add_u32', V(vT0), V(T7), 3, V(t_r)))
        e(valu('v_bfe_u32', V(vT1), V(vL), 4, 1))
        e(valu('v_lshlrev_b32', V(vT1), 4, V(vT1)))
        e(valu('v_lshl_add_u32', V(vT1), V(vC1), 3, V(vT1)))
        e(valu('v_lshl_add_u32', V(t_base), V(vT0), 7, V(vT1)))
        e(valu('v_lshl_add_u32', V(t_base), V(t_regl), 13, V(t_base)))
        e(valu('v_lshrrev_b32', V(t_sw), 1, V(t_r)))
        e(valu('v_lshl_add_u32', V(t_sw), V(t_regl), 1, V(t_sw)))
        for cc in range(4):
            e(valu('v_xor_b32', V(T6), cc, V(t_sw)))
            e(valu('v_lshl_add_u32', V(ADR + cc), V(T6), 5, V(t_base)))
        e(valu('v_lshlrev_b32', V(t_base), 2, V(t_regl)))
        e(valu('v_lshl_add_u32', V(t_sw), V(t_regl), 11, V(vT1)))
        e(valu('v_xor_b32', V(T6), V(vT0), V(t_base)))
        e(valu('v_lshl_add_u32', V(AS0), V(T6), 5, V(t_sw)))
        late_adr = [valu('v_add_u32', V(ADR + 8 + cc), 131072, V(ADR + cc)) for cc in range(4)] + [valu('v_add_u32', V(ADR + 4 + cc), 65536, V(ADR + cc)) for cc in range(4)]
        late_as = [valu('v_xor_b32', V(AS0 + 1), 128, V(AS0)), valu('v_add_u32', V(AS0 + 2), 131072, V(AS0)), valu('v_add_u32', V(AS0 + 3), 131072, V(AS0 + 1))]
        e(valu('v_lshlrev_b32', V(vH), 4, V(vL)))
        e(valu('v_and_b32', V(t_base), 31, V(vL)))
        e(valu('v_lshlrev_b32', V(t_base), 7, V(t_base)))
        e(salu('s_add_u32', ta, sM0X, 65536))
        e(valu('v_add_u32', V(t_base), ta, V(t_base)))
        e(valu('v_bfe_u32', V(t_sw), V(vL), 1, 3))
        e(valu('v_xor_b32', V(t_sw), V(t_sw), V(T7)))
        for s in range(4):
            e(valu('v_xor_b32', V(T6), 2 * s, V(t_sw)))
            e(valu('v_lshl_add_u32', V(XR + s), V(T6), 4, V(t_base)))
        e(salu('s_lshl_b32', ta, tmt, 3))
        e(salu('s_lshl_b32', tb, sWv, 1))
        e(salu('s_add_u32', ta, ta, tb))
        e(salu('s_mul_i32', ta, ta, 288))
        e(salu('s_mul_i32', tb, sQ, 72))
        e(salu('s_add_u32', ta, ta, tb))
        e(salu('s_mul_i32', tb, ti, 6))
        e(salu('s_add_u32', f's{HS}', ta, tb))
        e(salu('s_add_u32', f's{HS+2}', f's{HS}', 4))
        e(salu('s_lshl_b32', tb, ti, 1))
        e(salu('s_add_u32', tb, tb, 48))
        e(salu('s_add_u32', f's{HS+4}', ta, tb))
        e(salu('s_add_u32', tb, ti, 64))
        e(salu('s_add_u32', f's{HS+6}', ta, tb))
        for k in range(0, 8, 2):
            e(salu('s_lshl_b32', f's{HS+k}', f's{HS+k}', 10))
            e(salu('s_add_u32', f's{HS+k+1}', f's{HS+k}', 288 * 1024))
        e(salu('s_lshl_b32', ta, tmt, 2))
        e(salu('s_add_u32', ta, ta, sQ))
        e(salu('s_lshl_b32', ta, ta, 2))
        e(salu('s_add_u32', ta, ta, sWv))
        e(salu('s_lshl_b32', ta, ta, 7))
        e(salu('s_lshl_b32', tb, ti, 2))
        e(salu('s_add_u32', ta, ta, tb))
        e(salu('s_add_u32', sFH, ta, WS_FHE))
        e(salu('s_mov_b32', sNL, '0xbfb8aa3b'))
        e(salu('s_mov_b32', sMask, '0xffff0000'))

        frags = []
        for s in range(36):
            for cc in range(4): frags.append(('Q1', s, cc, cc))
        QSET = [4, 0, 1, 2]
        for cc in range(4):
            for s in range(36): frags.append(('Q2', s, cc, QSET[cc]))
        for s in range(36): frags.append(('S', s, 0, 3))
        NF = len(frags)
        def fread(f):
            ph, s, cc, st = frags[f]
            b = WF + 4 * (f % NB)
            r = []
            for t in range(2):
                if ph == 'S':
                    sp = spos(s >> 2)
                    a = V(AS0 + t + (2 if sp >= 32 else 0)); off = (sp & 31) * 4096 + (16 * (s & 3)) * 32
                else:
                    slot = slotQ1(s >> 2) if ph == 'Q1' else Q2SLOT[s >> 2]
                    a = V(ADR + 4 * (slot >> 2) + cc); off = (slot & 3) * 16384 + (16 * (s & 3) + 4 * t) * 128
                r.append(dsread('ds_read_b64_tr_b16', V(b + 2 * t, 2), a, off=off, tag=('f', f)))
            return r
        mf = []
        for f, (ph, s, cc, st) in enumerate(frags):
            b = WF + 4 * (f % NB)
            for rt in range(2):
                a = V(acc(st, rt), 16)
                m = mfma32(a, V(b, 4), xreg(s, rt), a if s != 0 else '0')
                if rt == 0: m.need(lg=[('f', f)])
                if ph == 'Q1' and cc == 0 and rt == 0 and (s & 3) == 0: m.need(lg=[('xr', s >> 2)])
                mf.append(m)
        def epi(st, soff_base, off, k):
            r = []
            for rt in range(2):
                a = acc(st, rt)
                for half in range(2):
                    g = [a + 8 * half + i for i in range(4)]
                    u = [a + 8 * half + 4 + i for i in range(4)]
                    T = [TMP + 4 * half + i for i in range(4)]
                    for i in range(4): r.append(valu('v_mul_f32', V(T[i]), sNL, V(g[i])))
                    for i in range(4): r.append(valu('v_exp_f32', V(T[i]), V(T[i])))
                    for i in range(4): r.append(valu('v_mul_f32', V(g[i]), V(g[i]), V(u[i])))
                    for i in range(4): r.append(valu('v_add_f32', V(T[i]), '1.0', V(T[i])))
                    for i in range(4): r.append(valu('v_rcp_f32', V(T[i]), V(T[i])))
                    for i in range(4): r.append(valu('v_mul_f32', V(g[i]), V(g[i]), V(T[i])))
                    for i in range(2): r.append(valu('v_cvt_pk_bf16_f32', V(a + 4 + 2 * half + i), V(g[2 * i]), V(g[2 * i + 1])))
                r.append(bstore(V(a + 4, 4), V(vH), sWS, f's{soff_base + rt}', off=off, tag=('h', k), flags=fHS))
            return r

        sF = Stream('frag', 0); sL = Stream('load', 2); sE = Stream('epi', 3); sJ = Stream('job', 4)
        bar_gap = {}
        def first_frag_of(ph, stage):
            for f, fr in enumerate(frags):
                if fr[0] == ph and fr[1] == 4 * stage and fr[2] == 0: return f
        bars = {}
        for t in range(1, 9): bars[first_frag_of('Q1', t)] = [('Q1', t), [('w', 'Q1', t)], [('xr', t)]]
        bars[first_frag_of('Q1', 6)][2] += ['kvr', ('w2r', 1)]
        Q2G = {0: (0, 1), 2: (2, 3, 4), 5: (5, 6, 7), 8: (8,)}
        for t, g in Q2G.items(): bars[first_frag_of('Q2', t)] = [('Q2', t), [('w', 'Q2', k) for k in g], []]
        bars[144 + 36 + JBF] = [('J', 0), ['jst'], [('w2r', 0)]]
        bars[144 + 3 * 36 + 4 * 5] = [('C3', 0), [], []]
        SGROUP = {0: (0, 1, 2, 3), 4: (4, 5, 6, 7, 8)}
        for t, g in SGROUP.items(): bars[first_frag_of('S', t)] = [('S', t), [('s', k) for k in g], []]
        XRG = 12
        pend = {}
        for t in range(1, 9):
            for j, ins in enumerate(xread(t)):
                if STQ and j == 0: ins = stamp(10 + 4 * t - 4) + [ins]
                if STQ and j == 4: ins = [ins] + stamp(10 + 4 * t - 3)
                pend[32 * (t - 1) + XRG + j] = ins
        for f in range(D, NF):
            g0 = 2 * (f - D)
            if f in bars:
                key, tags, ltags = bars[f]
                if STQ and key[0] == 'Q1': sF.add(stamp(10 + 4 * key[1] - 2) + [barrier().need(vm=tags, lg=ltags)] + stamp(10 + 4 * key[1] - 1), g0 - 1, g0 - 1)
                else: sF.add(barrier().need(vm=tags, lg=ltags), g0 - 1, g0 - 1)
                bar_gap[key] = g0 - 1
            r = fread(f)
            for k in range(2):
                sF.add(r[k], g0 + k, g0 + k)
                if g0 + k in pend: sF.add(pend.pop(g0 + k), g0 + k, g0 + k)
        assert not pend

        ja, jb, jc = tJ
        vW2R, vW2S = vT0, vT1
        sD = ['s88', 's89']; sJM2 = 's[90:91]'; sStg = 's80'; jd = 's93'; sSrc1 = 's92'
        def w2_addr(rnd):
            r = []; b_ = r.append
            d = sD[rnd]
            if rnd == 0:
                b_(salu('s_lshl_b32', ja, 's2', 2))
                b_(salu('s_add_u32', ja, ja, sWv))
            else:
                b_(salu('s_sub_u32', jb, 's2', 64))
                b_([salu('s_cmp_lt_u32', jb, 16), salu('s_cselect_b32', jc, 2, 3)])
                b_([salu('s_cmp_ge_u32', sWv, jc), salu('s_cselect_b32', 's90', -1, 0)])
                b_(salu('s_mov_b32', 's91', 's90'))
                b_(salu('s_add_u32', jb, jb, 256))
                b_([salu('s_cmp_eq_u32', sWv, 3), salu('s_cselect_b32', ja, 's2', jb)])
                b_(salu('s_and_b32', ja, ja, 's90'))
                b_(salu('s_add_u32', ja, ja, 1024))
            b_(salu('s_mul_i32', jb, ja, 7282))
            b_(salu('s_lshr_b32', jb, jb, 16))
            b_(salu('s_mul_i32', jc, jb, 9))
            b_(salu('s_sub_u32', ja, ja, jc))
            b_(salu('s_mul_i32', jc, jb, 32 * 1152))
            b_(salu('s_lshl_b32', d, ja, 7))
            if rnd == 1:
                b_(salu('s_add_u32', sSrc1, jc, d))
                b_(valu('v_add_u32', V(vW2S), sSrc1, V(TMP)))
            else:
                b_(salu('s_add_u32', jc, jc, d))
                b_(salu('s_sub_u32', jc, jc, sSrc1))
                b_(valu('v_add_u32', V(vW2S), jc, V(vW2S)))
                b_(salu('s_lshl_b32', sSrc1, sWv, 12))
                b_(salu('s_sub_u32', jc, sSrc1, sStg))
                b_(valu('v_add_u32', V(vW2R), jc, V(vW2R)))
            b_(salu('s_mul_i32', jc, jb, 57))
            b_(salu('s_lshr_b32', jc, jc, 11))
            b_(salu('s_mul_i32', jc, jc, 36))
            b_(salu('s_sub_u32', jb, jb, jc))
            b_(salu('s_lshr_b32', d, jb, 4))
            b_(salu('s_lshl_b32', d, d, 1))
            b_(salu('s_and_b32', jd, jb, 1))
            b_(salu('s_add_u32', jd, jd, d))
            b_(salu('s_bfe_u32', d, jb, hex(1 | (3 << 16))))
            b_([salu('s_cmp_eq_u32', jd, 3), salu('s_cselect_b32', 's86', 1, 3), salu('s_cselect_b32', jd, 24, jd), salu('s_mul_i32', d, d, 's86')])
            b_(salu('s_add_u32', d, d, jd))
            b_([salu('s_cmp_lt_u32', jb, 32), salu('s_cselect_b32', d, d, jb)])
            b_(salu('s_add_u32', d, d, jc))
            b_(salu('s_mul_i32', d, d, 9))
            b_(salu('s_add_u32', d, d, ja))
            b_(salu('s_lshl_b32', d, d, 12))
            b_(salu('s_add_u32', d, d, WS_W2T))
            return r
        def masked(ins, mask=sJM):
            return [smov64('exec', mask)] + (ins if isinstance(ins, list) else [ins]) + [smov64('exec', '-1')]
        def w2dma(rnd):
            r = mksrd(sU, pW2, 4608 * 1152) + [salu('s_mov_b32', 'm0', sStg if rnd else sSrc1)]
            for j in range(4):
                ins = bload_lds(V(vW2S), sU, XJ[j], off=j * 1024, tag=('w2d', rnd))
                r.append(masked(ins.w(20), sJM2) if rnd else ins)
            return r
        def w2out(rnd, quads):
            r = []
            def rd(jj): return [dsread('ds_read_b64_tr_b16', V(quads[jj & 1] + 2 * t, 2), V(vW2R), off=t * 1024 + jj * 32, tag=('w2r', rnd, jj) if jj < 3 else ('w2r', rnd)) for t in range(2)]
            r += rd(0); r[0].need(vm=[('w2d', rnd)])
            for jj in range(4):
                if jj < 3: r += rd(jj + 1)
                ins = bstore(V(quads[jj & 1], 4), V(vH), sWS, sD[rnd], off=jj * 1024, tag='jst', flags=fWS).need(lg=[('w2r', rnd, jj) if jj < 3 else ('w2r', rnd)])
                r.append(masked(ins.w(20), sJM2) if rnd else ins)
            return r
        pre = []; a_ = pre.append
        def nonce_load(fl=' sc1'):
            return Inst(f'global_load_dword v{TMP+5}, v{TMP+4}, s[{pDBG}:{pDBG+1}]{fl}', 'vmem', rd=[V(TMP + 4)], wr=[V(TMP + 5)], tag='nonce').w(16)
        a_(salu('s_mul_i32', sStg, sWv, 9216))
        a_(salu('s_add_u32', sStg, sStg, 131072))
        a_(valu('v_lshrrev_b32', V(TMP), 3, V(vL)))
        a_(valu('v_mul_u32_u24', V(TMP), 1152, V(TMP)))
        a_(valu('v_and_b32', V(TMP + 1), 7, V(vL)))
        a_(valu('v_lshl_add_u32', V(TMP), V(TMP + 1), 4, V(TMP)))
        pre += w2_addr(1)
        a_(valu('v_lshrrev_b32', V(vW2R), 5, V(vL)))
        a_(valu('v_lshlrev_b32', V(vW2R), 4, V(vW2R)))
        a_(valu('v_bfe_u32', V(TMP + 1), V(vL), 4, 1))
        a_(valu('v_lshl_add_u32', V(vW2R), V(TMP + 1), 2, V(vW2R)))
        a_(valu('v_bfe_u32', V(TMP + 1), V(vL), 2, 2))
        a_(valu('v_add_u32', V(vW2R), V(vW2R), V(TMP + 1)))
        a_(valu('v_lshlrev_b32', V(vW2R), 7, V(vW2R)))
        a_(valu('v_and_b32', V(TMP + 1), 3, V(vL)))
        a_(valu('v_lshl_add_u32', V(vW2R), V(TMP + 1), 3, V(vW2R)))
        a_(valu('v_add_u32', V(vW2R), sStg, V(vW2R)))
        a_(salu('s_lshl_b32', ja, 's2', 1))
        a_(salu('s_add_u32', ja, ja, sWv))
        a_(salu('s_add_u32', jb, 's2', 512))
        a_([salu('s_cmp_lt_u32', sWv, 2), salu('s_cselect_b32', ja, ja, jb)])
        a_([salu('s_cmp_lt_u32', ja, 576), salu('s_cselect_b32', jc, -1, 0)])
        a_([salu('s_cmp_lt_u32', sWv, 3), salu('s_cselect_b32', 's78', jc, 0)])
        a_(salu('s_mov_b32', 's79', 's78'))
        a_(salu('s_and_b32', ja, ja, 's78'))
        a_(salu('s_mul_i32', jb, ja, 7282))
        a_(salu('s_lshr_b32', jb, jb, 16))
        a_(salu('s_mul_i32', jc, jb, 9))
        a_(salu('s_sub_u32', jc, ja, jc))
        a_(salu('s_mul_i32', ja, jb, 32 * 1152))
        a_(salu('s_lshl_b32', 's81', jc, 7))
        a_(salu('s_add_u32', ja, ja, 's81'))
        a_(valu('v_add_u32', V(TMP), ja, V(TMP)))
        a_(valu('v_subrev_u32', V(TMP + 1), 4608, V(TMP)))
        a_(valu('v_add_u32', V(TMP + 2), 4608, V(TMP)))
        a_(valu('v_and_b32', V(TMP + 6), 15, V(vL)))
        a_(valu('v_lshlrev_b32', V(TMP + 3), 3, V(TMP + 6)))
        a_(salu('s_lshl_b32', ja, jc, 9))
        a_(valu('v_add_u32', V(TMP + 3), ja, V(TMP + 3)))
        a_(valu('v_lshrrev_b32', V(TMP + 7), 4, V(vL)))
        a_(valu('v_lshlrev_b32', V(vKS), 12, V(TMP + 6)))
        a_(valu('v_lshlrev_b32', V(TMP + 6), 4, V(TMP + 7)))
        a_(valu('v_sub_u32', V(vKS), V(vKS), V(TMP + 6)))
        a_(salu('s_lshl_b32', ja, jc, 18))
        a_(salu('s_lshl_b32', jb, jb, 6))
        a_(salu('s_sub_u32', ja, ja, jb))
        a_(salu('s_add_u32', ja, ja, WS_UR + 4080))
        a_(valu('v_add_u32', V(vKS), ja, V(vKS)))
        a_(valu('v_bfe_u32', V(TMP + 6), V(vL), 2, 2))
        a_(valu('v_lshl_add_u32', V(TMP + 6), V(TMP + 7), 3, V(TMP + 6)))
        a_(valu('v_lshlrev_b32', V(vKR), 7, V(TMP + 6)))
        a_(valu('v_and_b32', V(TMP + 6), 3, V(vL)))
        a_(valu('v_lshl_add_u32', V(vKR), V(TMP + 6), 3, V(vKR)))
        a_(salu('s_min_u32', ja, sStg, 131072 + 2 * 9216))
        a_(valu('v_add_u32', V(vKR), ja, V(vKR)))
        a_(valu('v_mov_b32', V(TMP + 4), 0))
        F += pre
        P[kwait:kwait] = flat(F[:NA]); F = F[NA:]
        grp = {'W0': lambda: wdma('Q1', 0, first=True), 'X0': lambda: xdma(0), 'W1': lambda: wdma('Q1', 1), 'X1': lambda: xdma(1),
               'W2': lambda: wdma('Q1', 2), 'W3': lambda: wdma('Q1', 3), 'N': lambda: [NB_],
               'T23': lambda: [touch(0xffff0000)], 'TX23': lambda: [touch(0xffff0000, w=False)], 'T45': lambda: [touch(0xffff << 32)], 'T2345': lambda: [touch(0xffffffff << 16)],
               'T67': lambda: [touch(0xffff << 48)], 'T27': lambda: [touch(0xffffffffffff << 16)]}
        L = []
        for g in LORD.split(): L += grp[g]() + [pst()]
        nl = sum(1 for x in L if not isinstance(x, list) and x.kind == 'vmem_lds')
        k = 0; done = 0
        for x in L:
            P += flat([x])
            if not isinstance(x, list) and x.kind == 'vmem_lds':
                k += 1
                if k > FSK:
                    upto = min(len(F), done + FPL)
                    P += flat(F[done:upto]); done = upto
        P += flat(F[done:])
        P += pst()
        if PST: P.append(valu('v_mov_b32', V(TMP + 4), 0).need(vm=[('w', 'Q1', 0)]))
        P += pst()
        P.append(barrier().need(vm=[('w', 'Q1', 0)]))
        P += pst()
        for f in range(D): P += fread(f)
        P += xread(0)
        SKW = J0 + 24
        KW = 40
        kvk = mksrd(sU, pK, 2048 * 1152)
        kvk.append(salu('s_mov_b32', 'm0', sStg))
        kvk.append(masked(bload_lds(V(TMP + 1), sU, '0', tag='kvd').w(KW)))
        kvk.append(salu('s_add_u32', 'm0', sStg, 1024))
        for j in range(4): kvk.append(masked(bload_lds(V(TMP + 2), sU, XJ[j], off=j * 1024, tag='kvd').w(KW)))
        kvv = [smov64('s[48:49]', S(pV, 2))]
        kvv.append(salu('s_add_u32', 'm0', sStg, 5120))
        for j in range(4): kvv.append(masked(bload_lds(V(TMP), sU, XJ[j], off=j * 1024, tag='kvd').w(KW)))
        kvv += mksrd(sU, pSK, 576 * 8)
        for it in range(4): kvv.append(bload(V(SKW + 2 * it, 2), V(TMP + 3), sU, '0', off=128 * it, width=2, tag='kvd').w(24))
        gc = []; a_ = gc.append
        dots = []
        for j in range(3):
            for t in range(3):
                ins = valu('v_dot2_f32_bf16', V(J0 + 3 + 8 * t), V(J0 + 8 * j + t), V(J0 + 8 * j + 4 + t), 0 if j == 0 else V(J0 + 3 + 8 * t))
                if j == 0 and t == 0: ins.need(vm=['gx'])
                dots.append(ins)
        a_(dots)
        g0_, g1_ = J0 + 3, J0 + 7
        a_(valu('v_add_f32', V(g0_), V(g0_), V(J0 + 11)))
        a_(valu('v_add_f32', V(g0_), V(g0_), V(J0 + 19)))
        for sh in (8, 4, 2, 1):
            a_(Inst(f"v_add_f32_dpp v{g0_}, v{g0_}, v{g0_} row_ror:{sh} row_mask:0xf bank_mask:0xf", 'valu', rd=[V(g0_)], wr=[V(g0_)]))
        a_(valu('v_mov_b32', V(g1_), V(g0_)))
        a_(valu('v_permlane16_swap_b32', V(g0_), V(g1_)))
        a_(valu('v_add_f32', V(g0_), V(g0_), V(g1_)))
        a_(valu('v_cvt_pk_bf16_f32', V(g0_), V(g0_), V(g0_)))
        a_(valu('v_lshlrev_b32', V(g0_), 16, V(g0_)))
        a_(valu('v_mul_f32', V(g0_), sNL, V(g0_)))
        a_(valu('v_exp_f32', V(g0_), V(g0_)))
        a_(valu('v_add_f32', V(g0_), '1.0', V(g0_)))
        a_(valu('v_rcp_f32', V(g0_), V(g0_)))
        a_(valu('v_cvt_pk_bf16_f32', V(g0_), V(g0_), V(g0_)))
        a_(valu('v_lshlrev_b32', V(g0_), 16, V(g0_)))
        gst = [salu('s_mov_b32', ja, WS_G), salu('s_mov_b32', 'exec_lo', 1), salu('s_mov_b32', 'exec_hi', 1), bstore(V(g0_), V(vO4), sWS, ja, width=1, tag='jst', flags=SC).w(16), smov64('exec', '-1')]
        sJ.spread(gc, GC0, GC0 + 24, KV0 - 4)
        sJ.add(gst, GC0 + 25, KV0 - 2)
        nchk = [valu('v_cmp_eq_u32', 'vcc', 0, V(TMP + 5)).need(vm=['nonce']), raw('s_cbranch_vccnz SLOW_N', 'branch'), label('BACK_N'),
                valu('v_readfirstlane_b32', sNonce, V(TMP + 5))]
        if not three:
            slow.extend(pad_hazards([label('SLOW_N'), raw('s_sleep 4'), nonce_load(), raw('s_waitcnt vmcnt(0)', 'drain_vm'),
                                     valu('v_cmp_eq_u32', 'vcc', 0, V(TMP + 5))] + spin_tail('SLOW_N', 'BACK_N')))
        O = [J0 + 20, J0 + 21, J0 + 22, J0 + 23, vO4]
        AC = TMP
        def kv_reads(it):
            b = J0 + 10 * (it & 1)
            r = [dsread('ds_read_b64_tr_b16', V(b + 2 * k, 2), V(vKR), off=512 * k + 32 * it, tag='kvr') for k in range(3)]
            r += [dsread('ds_read_b64_tr_b16', V(b + 6 + 2 * k, 2), V(vKR), off=5120 + 512 * k + 32 * it, tag='kvr') for k in range(2)]
            return r
        kc = []; a_ = kc.append
        a_(nchk)
        r0 = kv_reads(0); r0[0].need(vm=['kvd']); kc += r0
        for it in range(4):
            b = J0 + 10 * (it & 1)
            Dk = [b + k for k in range(6)]; Vd = [b + 6 + k for k in range(4)]
            w10, w32 = SKW + 2 * it, SKW + 2 * it + 1
            a_(valu('v_alignbit_b32', V(w10), V(w10), V(w10), 16))
            a_(valu('v_alignbit_b32', V(w32), V(w32), V(w32), 16))
            for m in range(5):
                ins = valu('v_alignbit_b32', V(O[m]), V(Dk[m + 1]), V(Dk[m]), 16)
                if m == 0: ins.need(lg=['kvr'])
                a_(ins)
            if it < 3: kc += kv_reads(it + 1)
            dots = []
            for t in range(8):
                u = t >> 1
                dots.append(valu('v_dot2_f32_bf16', V(AC + t), V(O[u + 1] if t % 2 == 0 else Dk[u + 2]), V(w10), 0))
            for t in range(8):
                u = t >> 1
                dots.append(valu('v_dot2_f32_bf16', V(AC + t), V(O[u] if t % 2 == 0 else Dk[u + 1]), V(w32), V(AC + t)))
            a_(dots)
            for hlf in range(2):
                for t in range(4 * hlf, 4 * hlf + 4):
                    if t & 1: a_(valu('v_and_b32', V(Dk[t & 3]), sMask, V(Vd[t >> 1])))
                    else: a_(valu('v_lshlrev_b32', V(Dk[t & 3]), 16, V(Vd[t >> 1])))
                for t in range(4 * hlf, 4 * hlf + 4):
                    a_(valu('v_mul_f32', V(AC + t), V(AC + t), V(Dk[t & 3])))
            ob = 252
            for k in range(4): a_(valu('v_cvt_pk_bf16_f32', V(ob + k), V(AC + 7 - 2 * k), V(AC + 6 - 2 * k)))
            a_([salu('s_mov_b32', ja, it * 65536)] + masked(bstore(V(ob, 4), V(vKS), sWS, ja, tag='jst', flags=SC).w(KW)))
            sJ.spread(kc, KV0 + KVS * it, KV0 + KVS * (it + 1), 180 if it < 3 else 230)
            kc = []; a_ = kc.append
        sK = Stream('w2t', 6)
        o1 = w2out(1, [ADR + 4, ADR + 8])
        sK.spread(o1, 150, 176, 181)
        bars_extra = ('w2r', 1)
        sK.spread(late_adr, 240, 262, 268)
        sJ.spread(w2_addr(0), 232, 280, 290)
        def flagstore(soff_ins, soff, tagneed=None, off=0, vz=None, vd=None, w0=False):
            r = list(soff_ins)
            r.append(valu('v_mov_b32', V(vd), sNonce))
            i = Inst(f"buffer_store_dword v{vd}, off, {sWS}, {soff}" + (f" offset:{off}" if off else "") + " sc1", 'vstore', rd=[V(vd), sWS, soff], tag='flag').w(8)
            if tagneed: r[-1].need(vm=tagneed)
            if w0: r += [salu('s_cmp_eq_u32', sWv, 0), Inst("s_cselect_b64 exec, 1, 0", 'salu', rd=['scc'], wr=['exec'])]
            else: r.append(smov64('exec', '1'))
            r.append(i)
            r.append(smov64('exec', '-1'))
            return r
        fj1 = flagstore([salu('s_lshl_b32', ja, 's2', 7), salu('s_add_u32', ja, ja, WS_FJ1)], ja, vd=vKR, w0=True)

        def addall(lst, at, dl):
            for x in lst: sL.add(x, at, dl)
        def t8(x, offw):
            if not TCH: return []
            return [salu('s_mov_b32', tL, 512 * 9216), smov64('exec', '0xff')] + ([bload(V(vDum), V(vTX), sX, '0', off=1024, width=1, tag='touch').w(32)] if x else []) + \
                   [bload(V(vDum), V(vTW), sW, tL, off=offw, width=1, tag='touch').w(32), smov64('exec', '-1')]
        wg_ = dict(grp); wg_.update({'KK': lambda: kvk, 'KV': lambda: kvv, 'R1': lambda: w2dma(1), 'NL': lambda: [nonce_load(NFL)], 'G': lambda: gld,
                                     'T8': lambda: [t8(True, 0)], 'TQa': lambda: [touch(0xffffffff, x=False, offw=1024)], 'TQb': lambda: [touch(0xffffffff << 32, x=False, offw=1024)], 'TQ8': lambda: [t8(False, 1024)]})
        win = {}
        for u, wl in enumerate(WIN): win[u] = [x for g in wl.split() for x in wg_[g]()]
        q2_after = [('Q1', 6), ('Q1', 6), ('Q1', 7), ('Q1', 7), ('Q1', 7), ('Q1', 8), ('Q1', 8), ('Q1', 8), ('Q2', 0)]
        q2_dl = [232, 240, 250, 258, 266, 276, 284, 292, 300]
        for u in range(0, 7):
            if u == 0: addall(xdma(2), 0, 18)
            else:
                assert bar_gap[('Q1', u)] == 32 * u - 9
                addall(xdma(u + 2), 32 * u - 10, 32 * u + 14)
            if f'W{u + 2}' not in LORD.split(): addall(wdma('Q1', u + 2), max(0, 32 * u - 8), 32 * u + 24)
            addall([x for x in win[u] if x], 32 * u - 8, 32 * u + 30)
        for t in range(0, 9): addall(wdma('Q2', t), bar_gap[q2_after[t]] + 1, q2_dl[t])
        gW0 = bar_gap[('Q2', 2)] + 1
        addall(w2dma(0), gW0, gW0 + 20)
        FB = [236, 252]
        gJ = bar_gap[('J', 0)]
        sK.spread(w2out(0, FB), gJ - W2O[0], gJ - W2O[1], gJ - W2O[1] + 4)
        sK.spread(late_as, gJ, gJ + 10, 560)
        sa = []; a_ = sa.append
        a_(salu('s_and_b32', ja, 's2', 1))
        a_(salu('s_lshl_b32', ja, ja, 3))
        a_(salu('s_bfe_u32', jb, 's2', hex(3 | (3 << 16))))
        a_(salu('s_add_u32', ja, ja, jb))
        a_(salu('s_lshr_b32', jb, 's2', 6))
        a_(salu('s_lshl_b32', ja, ja, 2))
        a_(salu('s_add_u32', ja, ja, jb))
        for u in range(1, 4):
            a_(salu('s_add_u32', jb, sQ, u))
            a_(salu('s_and_b32', jb, jb, 3))
            a_(salu('s_lshl_b32', jc, ja, 2))
            a_(salu('s_add_u32', jb, jb, jc))
            a_(salu('s_lshl_b32', jb, jb, 2))
            a_(salu('s_add_u32', jb, jb, sWv))
            a_(salu('s_mul_i32', jb, jb, 6144))
            a_(salu('s_add_u32', SEND[u - 1], jb, WS_R + (u - 1) * 2048))
        a_(salu('s_lshl_b32', jb, ja, 2))
        a_(salu('s_add_u32', jb, jb, sWv))
        a_(salu('s_lshl_b32', jb, jb, 12))
        a_(salu('s_lshl_b32', jc, sQ, 10))
        a_(salu('s_add_u32', jb, jb, jc))
        a_(salu('s_add_u32', sSend8, jb, WS_R8))
        def send1(slot, reg, tag):
            if slot == 8: return bstore(reg, V(vH), sWS, sSend8, tag=tag, flags=SC)
            return bstore(reg, V(vH), sWS, SEND[(slot >> 1) - 1], off=(slot & 1) * 1024, tag=tag, flags=SC)
        sJ.spread(sa, 300, gJ - 10, gJ - 4)
        sJ.add(fj1, gJ + 1, gJ + 3)
        SQ = V(FB[0], 4)
        sK.spread([valu('v_mov_b32', V(FB[0] + k), -1) for k in range(4)], gJ + 2, SNT[0], SNT[0])
        sn = []
        sn.append([salu('s_lshl_b32', 's81', 's2', 2), salu('s_add_u32', 's81', 's81', sWv), salu('s_lshl_b32', 's81', 's81', 10), salu('s_add_u32', 's81', 's81', WS_Y2 + 512 * 4096),
                   salu('s_cmp_lt_u32', 's2', 64), Inst("s_cselect_b64 exec, -1, 0", 'salu', rd=['scc'], wr=['exec']),
                   bstore(SQ, V(vH), sWS, 's81', tag='js2', flags=SC).w(24), smov64('exec', '-1')])
        sn.append([salu('s_sub_u32', 's81', 's81', WS_Y2 + 512 * 4096), salu('s_lshl_b32', 's81', 's81', 1), salu('s_add_u32', 's81', 's81', WS_Y2), bstore(SQ, V(vH), sWS, 's81', tag='js2', flags=SC)])
        sn.append(bstore(SQ, V(vH), sWS, 's81', off=1024, tag='js2', flags=SC))
        sn += [send1(sl, SQ, 'js2') for sl in range(2, 9)]
        for j, x in enumerate(sn):
            g = SNT[0] + (j * (SNT[1] - SNT[0])) // (len(sn) - 1)
            sK.add(x, g, g + 6)
        cur = gJ + 1
        lst = []
        for t in range(4): lst += sdma(t)
        assert cur > bar_gap[('Q2', 2)]
        sL.spread(lst, cur + 4, cur + 24)
        gC3 = bar_gap[('C3', 0)]
        assert gC3 >= 2 * (144 + 108 + 15) + 1
        lst = []
        for t in range(4, 9): lst += sdma(t)
        sL.spread(lst, gC3 + 1, gC3 + 16)
        g_S = 288; g_Q2 = [288 + 72 * c for c in range(5)]
        EP = [(0, HS, 0, g_Q2[1] - 2), (1, HS, 1024, g_Q2[2] - 2), (2, HS, 2048, g_Q2[3] - 2), (3, HS, 3072, g_Q2[4] - 2),
              (4, HS + 2, 0, 515), (0, HS + 2, 1024, 600), (1, HS + 4, 0, 630), (2, HS + 4, 1024, 668)]
        for k, (st, so, off, dl) in enumerate(EP):
            sE.spread(epi(st, so, off, k), g_S + 3 + (k * 356) // 8, g_S + 3 + ((k + 1) * 356) // 8, dl)

        C0 = 648
        NCU = 6 if three else 4
        G2 = C0 + 36 * NCU
        CACC = 160; CACC2 = 128; ET = 192
        GACC = 32; WF2 = 104; RECV = 128
        vA = [236, 237, 238, 239]; vB = 240; vE = 241; vY = 249; vHl = 250; vR1 = 251; vR2 = 252; vRW = 253; vRR = 254; vP = 255
        def bufA(b, k1): return V(32 + 4 * k1, 4) if b == 0 else A(192 + 4 * k1, 4)
        def bufB(b, dl): return V(64 + 4 * dl, 4) if b == 0 else A(224 + 4 * dl, 4)
        def breg(b, base, n): return V(base + 32, n) if b == 0 else A(base + 192, n)
        SCR0 = 98304; SCRW = 12928; SCR3 = 16384
        cs = []; a_ = cs.append
        a_(salu('s_lshl_b32', WI[1], sWv, 13))
        a_(salu('s_add_u32', WI[1], WI[1], WS_FJ1))
        a_(valu('v_lshlrev_b32', V(CACC + 17), 7, V(vL)))
        l1, c1 = poll('J1', lambda: bload(V(CACC + 16), V(CACC + 17), sWS, WI[1], width=1, tag=('poll', 'J1'), flags=SC), [CACC + 16], True)
        a_(l1)
        kS0 = next(i for i, it in enumerate(sF.items) if it.at == bar_gap[('S', 0)] and not isinstance(it.ins, list) and it.ins.kind == 'barrier')
        sF.items[kS0].ins = c1 + [sF.items[kS0].ins]
        a_(salu('s_lshr_b32', ja, sWv, 1))
        a_(salu('s_mul_i32', sScr, ja, SCRW))
        a_(salu('s_add_u32', sScr, sScr, SCR0))
        a_(salu('s_lshl_b32', jb, 's2', 1))
        a_(salu('s_add_u32', jb, jb, ja))
        a_(salu('s_and_b32', jc, sWv, 1))
        a_(salu('s_lshl_b32', 's78', jb, 12))
        a_(salu('s_lshl_b32', 's79', jc, 11))
        a_(salu('s_add_u32', 's78', 's78', 's79'))
        a_(salu('s_add_u32', sYb, 's78', WS_Y2))
        a_(salu('s_lshl_b32', ja, 's2', 2))
        a_(raw(f's_load_dword {sDv}, s[{pD}:{pD+1}], {ja}', 'smem', rd=[ja], wr=[sDv]))
        a_(salu('s_lshl_b32', 's80', jc, 8))
        a_(salu('s_add_u32', 's80', 's80', sScr))
        t0, t1, t2, t3 = CACC + 20, CACC + 21, CACC + 22, CACC + 23
        a_(valu('v_lshrrev_b32', V(t0), 4, V(vL)))
        a_(valu('v_and_b32', V(t1), 15, V(vL)))
        a_(valu('v_lshlrev_b32', V(vHl), 9, V(t0)))
        a_(valu('v_lshl_add_u32', V(vHl), V(t1), 4, V(vHl)))
        a_(valu('v_lshlrev_b32', V(t2), 5, V(t1)))
        a_(valu('v_lshlrev_b32', V(t3), 4, V(t0)))
        a_(valu('v_sub_u32', V(t3), V(t3), V(t2)))
        a_(salu('s_add_u32', ja, 's80', 8320 + 480))
        a_(valu('v_add_u32', V(vB), ja, V(t3)))
        a_(valu('v_lshl_add_u32', V(vY), V(t0), 3, V(t2)))
        a_(salu('s_add_u32', ja, sScr, 8320 + 504))
        a_(salu('s_sub_u32', ja, ja, 's79'))
        a_(valu('v_sub_u32', V(vE), ja, V(vY)))
        a_(valu('v_add_u32', V(vR1), 65536, V(vH)))
        a_(valu('v_add_u32', V(vR2), 131072, V(vH)))
        a_(salu('s_lshl_b32', ja, sWv, 12))
        a_(valu('v_add_u32', V(vRW), ja, V(vH)))
        a_(valu('v_xor_b32', V(vRR), 4096, V(vRW)))
        a_(valu('v_and_b32', V(vP), 7, V(vL)))
        a_(valu('v_lshlrev_b32', V(vP), 2, V(vP)))
        a_(valu('v_lshl_add_u32', V(t2), V(t0), 3, V(t1)))
        a_(valu('v_add_u32', V(t2), 1, V(t2)))
        a_(valu('v_and_b32', V(t3), 1, V(t2)))
        a_(valu('v_lshrrev_b32', V(t2), 1, V(t2)))
        a_(valu('v_mul_u32_u24', V(t3), 4160, V(t3)))
        a_(valu('v_lshl_add_u32', V(t3), V(t2), 2, V(t3)))
        sK.spread([valu('v_add_u32', V(vA[0]), 's80', V(t3))] + [valu('v_add_u32', V(vA[b]), 1024 * b, V(vA[0])) for b in range(1, 4)], max(SNT[1] + 8, 600), 625, 632)
        sJ.spread(cs, 517, gC3 + 12, gC3 + 15)
        def conv_loads(nk, sOff, sBase, sPart, R0, R1, chk):
            r = []
            r += mksrd(sU, pSSM, 576 * 4096)
            for i in range(nk):
                r.append(bload(V(R0 + 4 * i, 4), V(vH), sU, sOff, off=i * 1024, tag='cr'))
                r.append(bload(V(R1 + 4 * i, 4), V(vH), sU, sOff, off=i * 1024 + 4, tag='cr'))
            r.append(salu('s_add_u32', tL, sBase, sPart))
            r.append(salu('s_add_u32', 'm0', tL, 32))
            for i in range(nk): r.append(bload_lds(V(vH), sU, sOff, off=i * 1024, tag='cin'))
            if chk: r.append(chk)
            r.append(salu('s_add_u32', 'm0', tL, 8320))
            r.append(salu('s_add_u32', tL, sOff, WS_UR))
            for i in range(nk): r.append(bload_lds(V(vH), sWS, tL, off=i * 1024, tag='cin', flags=SC))
            return r
        def conv_prep(nk, sBase, sPart, R0, R1, T):
            r = []; b_ = r.append
            b_(valu('v_mov_b32', V(T), 0))
            b_(valu('v_mov_b32', V(T + 1), 0))
            b_(valu('v_lshrrev_b32', V(T + 2), 1, V(vH)))
            b_(salu('s_add_u32', ja, sBase, 8320 + 4096))
            b_(valu('v_add_u32', V(T + 2), ja, V(T + 2)))
            b_(dswrite('ds_write_b64', V(T + 2), V(T, 2), tag='cw'))
            b_([salu('s_cmp_eq_u32', sPart, 0), salu('s_cselect_b32', ja, 0, 4128)])
            b_(salu('s_add_u32', ja, ja, sBase))
            b_(valu('v_add_u32', V(T + 2), ja, V(vP)))
            b_(dswrite('ds_write_b32', V(T + 2), V(T), tag='cw'))
            b_(salu('s_add_u32', ja, sBase, sPart))
            b_(salu('s_add_u32', ja, ja, 4160 + 32))
            b_(valu('v_add_u32', V(T + 3), ja, V(vH)))
            for i in range(4 * nk):
                ins = valu('v_alignbit_b32', V(R1 + i), V(R1 + i), V(R0 + i), 16)
                if i == 0: ins.need(vm=['cr'])
                b_(ins)
            b_(valu('v_readfirstlane_b32', jb, V(R0)))
            for i in range(nk): b_(dswrite('ds_write_b128', V(T + 3), V(R1 + 4 * i, 4), off=i * 1024, tag='cw'))
            b_(salu('s_lshl_b32', jb, jb, 16))
            b_(valu('v_mov_b32', V(T + 1), jb))
            b_([valu('v_cmp_eq_u32', 'vcc', 28, V(vP)), valu('v_cndmask_b32', V(T + 1), V(T), V(T + 1), 'vcc')])
            b_(dswrite('ds_write_b32', V(T + 2), V(T + 1), off=4160, tag='cw'))
            return r
        cl_ = conv_loads(2, 's78', sScr, 's79', CACC, CACC + 8, None)
        sL.spread(cl_[:-4], gC3 + 17, gC3 + 30, gC3 + 34)
        gU = max(gC3 + 31, bar_gap[('S', 0)] + 1)
        sL.spread(cl_[-4:], gU, gU + 6, gU + 8)
        gCB = 634
        sJ.spread(conv_prep(2, sScr, 's79', CACC, CACC + 8, CACC + 24), gCB - 34, gCB - 4, gCB - 2)
        fhe = flagstore([], sFH, tagneed=[('h', 5)], vd=CACC + 28)
        ts = []; a_ = ts.append
        a_(salu('s_and_b32', ja, 's2', 1))
        a_(salu('s_lshl_b32', ja, ja, 3))
        a_(salu('s_bfe_u32', jb, 's2', hex(3 | (3 << 16))))
        a_(salu('s_add_u32', ja, ja, jb))
        a_(salu('s_lshr_b32', jb, 's2', 6))
        a_(salu('s_add_u32', jc, ja, jb))
        a_(salu('s_and_b32', jc, jc, 3))
        a_(salu('s_mul_i32', sM0, jc, 3))
        a_(salu('s_add_u32', sM0, sM0, 1))
        a_(salu('s_lshr_b32', GSEQ[0], sM0, 1))
        for n in range(1, 6):
            a_(salu('s_add_u32', GSEQ[n], GSEQ[n - 1], 1))
            a_([salu('s_cmp_eq_u32', GSEQ[n], 6), salu('s_cselect_b32', GSEQ[n], 0, GSEQ[n])])
        a_([salu('s_cmp_eq_u32', jc, 3), salu('s_cselect_b32', jc, 0, jc)])
        a_(salu('s_add_u32', GSEQ[6], jc, 6))
        for n in range(7, 9):
            a_(salu('s_add_u32', GSEQ[n], GSEQ[n - 1], 1))
            a_([salu('s_cmp_eq_u32', GSEQ[n], 9), salu('s_cselect_b32', GSEQ[n], 6, GSEQ[n])])
        a_(salu('s_mul_i32', jc, sQ, 1296))
        a_(salu('s_mul_i32', jb, jb, 9))
        a_(salu('s_add_u32', jc, jc, jb))
        a_(salu('s_lshl_b32', sWq, jc, 10))
        a_(salu('s_lshl_b32', jb, ja, 2))
        a_(salu('s_add_u32', jb, jb, sWv))
        a_(salu('s_mul_i32', jb, jb, 288))
        a_(salu('s_mul_i32', jc, sQ, 72))
        a_(salu('s_add_u32', jb, jb, jc))
        a_(salu('s_lshl_b32', sHb, jb, 10))
        GW = TT + [sTB, sWcur]; sW4k = sHcur
        for n in range(9):
            a_(salu('s_mul_i32', GW[n], GSEQ[n], 147456))
            a_(salu('s_add_u32', GW[n], GW[n], sWq))
            a_(salu('s_lshl_b32', GSEQ[n], GSEQ[n], 13))
            a_(salu('s_add_u32', GSEQ[n], GSEQ[n], sHb))
        a_(salu('s_lshr_b32', jb, ja, 1))
        a_(salu('s_lshl_b32', jb, jb, 2))
        a_(salu('s_add_u32', jb, jb, sQ))
        a_(salu('s_lshl_b32', jb, jb, 2))
        a_(salu('s_and_b32', jc, ja, 1))
        a_(salu('s_lshl_b32', jc, jc, 1))
        a_(salu('s_add_u32', jb, jb, jc))
        a_(salu('s_lshr_b32', jc, sWv, 1))
        a_(salu('s_add_u32', jb, jb, jc))
        a_(salu('s_lshl_b32', jb, jb, 7))
        a_(salu('s_add_u32', sM0X, jb, WS_FHE))
        a_(salu('s_lshl_b32', sW1k, sWv, 10))
        a_(salu('s_lshl_b32', sW4k, sWv, 12))
        vU = [ADR + 1 + j for j in range(5)]; vHl2 = ADR + 6
        SOFF = [0, 1024, 0, 1024, 2048, 3072, 0, 1024, 2048]
        ts2 = []; a_ = ts2.append
        a_(salu('s_mul_i32', ja, sWv, 36864))
        a_(salu('s_add_u32', ja, ja, WS_W2T))
        for j in range(4):
            a_(salu('s_add_u32', jb, sQ, j))
            a_(salu('s_and_b32', jb, jb, 3))
            a_(salu('s_lshl_b32', jb, jb, 11))
            a_(salu('s_add_u32', jb, jb, ja))
            if SOFF[2 * j]: a_(salu('s_sub_u32', jb, jb, SOFF[2 * j]))
            a_(valu('v_add_u32', V(vU[j]), jb, V(vH)))
        a_(salu('s_add_u32', jb, ja, 8192 - SOFF[8]))
        a_(valu('v_add_u32', V(vU[4]), jb, V(vH)))
        a_(valu('v_add_u32', V(vHl2), 4096, V(vHl)))
        items_after = [it for it in sJ.items if it.at >= gCB - 34]
        sJ.items = [it for it in sJ.items if it.at < gCB - 34]
        sJ.spread(ts, gC3 + 16, 584, 586)
        sJ.spread(ts2, 585, gCB - 37, gCB - 35)
        sJ.items += items_after
        sM = Stream('misc', 5)
        sM.add(fhe, 612, 624)
        dv = [raw('s_waitcnt lgkmcnt(0)', 'drain_lg'), salu('s_lshl_b32', ja, sDv, 16), salu('s_and_b32', sDv, sDv, sMask),
              salu('s_cmp_lt_u32', sWv, 2), salu('s_cselect_b32', sDv, ja, sDv)]
        cb = dv + [barrier().need(vm=['cin'], lg=['cw'])]
        k = next(i for i, it in enumerate(sF.items) if it.at >= gCB)
        sF.items.insert(k, Item(cb, gCB, gCB))
        def creads(un):
            b = un & 1
            k0 = un if un < 4 else un - 4
            def ar(k1):
                o = (k1 & 1) * 128 + 16 * k0
                return [dsread('ds_read2_b32', breg(b, 4 * k1 + 2 * t, 2), V(vA[k1 >> 1]), offtext=f"offset0:{o+2*t} offset1:{o+2*t+1}", tag=('c', un)) for t in range(2)]
            def br(dl):
                return [dsread('ds_read_b128', bufB(b, dl), V(vB), off=512 * (7 - dl) + 64 * k0, tag=('c', un))]
            r = ar(0)
            for dl in range(8): r += br(dl)
            for k1 in range(1, 8): r += ar(k1)
            return r
        sC = Stream('conv', 1)
        sC.spread(creads(0), gCB + 1, 646, 646)
        mf.append(None); mf.pop()
        for un in range(NCU):
            b = un & 1
            ca = CACC if un < 4 else CACC2
            first = True
            for k1 in range(8):
                for c in range(k1, 8):
                    a = V(ca + 4 * c, 4)
                    m = mfma16(a, bufA(b, k1), bufB(b, c - k1), '0' if (un in (0, 4) and k1 == 0) else a)
                    if first: m.need(lg=[('c', un)]); first = False
                    mf.append(m)
        sE.spread(epi(3, HS + 6, 0, 8), C0 + 2, C0 + 100, C0 + 138)
        fhl = flagstore([], sFH, tagneed=[('h', 8)], vd=vW, off=64)
        gPS = C0 + 4
        ps = barrier().need(vm=['js2'])
        sJ.add(flagstore([salu('s_lshl_b32', ja, 's2', 7), salu('s_add_u32', ja, ja, WS_FJ1)], ja, vd=vS, w0=True, off=4), gPS + 1, gPS + 4)
        if three:
            R0, R1, T3 = WF, WF + 4, WF + 8
            c3 = [salu('s_add_u32', 's78', 's2', 512), salu('s_lshl_b32', 's78', 's78', 12), salu('s_add_u32', 's78', 's78', sW1k),
                  salu('s_mov_b32', 's79', SCR3)]
            sL.spread(c3 + conv_loads(1, 's78', 's79', sW1k, R0, R1, None), C0 + 1, C0 + 16, C0 + 20)
            sJ.spread(conv_prep(1, 's79', sW1k, R0, R1, T3), C0 + 70, C0 + 100, C0 + 104)
        for un in range(1, NCU):
            g = C0 + 36 * (un - 1)
            lst = creads(un)
            if un == 1: sC.add(ps, gPS, gPS)
            if un == 4:
                dl_ = [salu('s_lshl_b32', 's86', sWv, 7), salu('s_add_u32', 's86', 's86', SCR3), salu('s_sub_u32', 's86', 's86', 's80')]
                dl_ += [valu('v_add_u32', V(x), 's86', V(x)) for x in vA + [vB]]
                lst = [dl_, barrier().need(vm=['cin'], lg=['cw'])] + lst
            sC.spread(lst, g + (gPS - C0 + 1 if un == 1 else 1), g + 31, g + 33)
        def swaps(lab, cond, pairs):
            return [Inst('v_nop', 'valu', rd=[V(x) for p_ in pairs for x in p_]), cond, raw(f's_cbranch_scc0 {lab}{tagp}', 'branch')] + [Inst(f"v_swap_b32 v{x}, v{y}", 'valu', rd=[V(x), V(y)], wr=[V(x), V(y)]) for x, y in pairs] + [label(f'{lab}{tagp}')]
        def cfin(ca, nblk, nsrc, rdaddr, rdoff, tagr):
            r = []
            RC = ET; KV = ET + 16; T = ET + 24
            for t in range(nblk): r.append(dsread('ds_read_b64', V(KV + 2 * t, 2), V(vE), off=512 * (7 - t), tag=('e', tagr)))
            per = 4 // nblk if nsrc > 1 else 1
            seq = [(t, u) for u in range(nsrc) for t in range(nblk)]
            for base in range(0, len(seq), 4):
                grp = seq[base:base + 4]
                for z, (t, u) in enumerate(grp): r.append(dsread('ds_read_b128', V(RC + 4 * z, 4), V(rdaddr), off=rdoff(t, u), tag=('rr', tagr, base)))
                for z, (t, u) in enumerate(grp):
                    for k in range(4):
                        ins = valu('v_add_f32', V(ca + 4 * t + k), V(ca + 4 * t + k), V(RC + 4 * z + k))
                        if z == 0 and k == 0: ins.need(lg=[('rr', tagr, base)])
                        r.append(ins)
            for t in range(nblk):
                lo, hi = KV + 2 * t, KV + 2 * t + 1
                r.append(valu('v_and_b32', V(T), sMask, V(hi)))
                r.append(valu('v_lshlrev_b32', V(T + 1), 16, V(hi)))
                r.append(valu('v_and_b32', V(T + 2), sMask, V(lo)))
                r.append(valu('v_lshlrev_b32', V(T + 3), 16, V(lo)))
                for k in range(4): r.append(valu('v_fmac_f32', V(ca + 4 * t + k), sDv, V(T + k)))
                r.append(valu('v_cvt_pk_bf16_f32', V(lo), V(ca + 4 * t), V(ca + 4 * t + 1)))
                r.append(valu('v_cvt_pk_bf16_f32', V(hi), V(ca + 4 * t + 2), V(ca + 4 * t + 3)))
                r.append(bstore(V(lo, 2), V(vY), sWS, sYb, off=512 * t, width=2, tag='yst', flags=SC))
            return r
        E1 = C0 + 144
        e1 = [swaps('SW1', salu('s_bitcmp1_b32', sWv, 0), [(CACC + k, CACC + 16 + k) for k in range(16)])]
        e1 += [dswrite('ds_write_b128', V(vRW), V(CACC + 16 + 4 * t, 4), off=1024 * t, tag='rw1') for t in range(4)]
        sM.add(fhl, C0 + FHLG, C0 + FHLG + 4)
        l2, c2 = poll('J2', lambda: bload(V(CACC + 16), V(CACC + 17), sWS, WI[1], off=4, width=1, tag=('poll', 'J2'), flags=SC), [CACC + 16], False)
        sM.add(valu('v_lshlrev_b32', V(CACC + 17), 7, V(vL)), G2 + 200, G2 + 215)
        sM.add(l2, G2 + 204, G2 + 220)
        sE.spread(e1, E1 + 3, E1 + 12, E1 + 14)
        xbars = []
        if SEGV == 1:
            segs = [[(gn, [2, 3, 4, 5]), (gn, [6, 7, 8])] for gn in range(6)]
            segs += [[(gn, sl) for gn in (6, 7, 8)] for sl in ([2, 3], [4, 5], [6, 7, 8])]
        elif SEGV == 0:
            segs = [[(gn, [2, 3, 4, 5]), (gn, [6, 7, 8])] for gn in range(9)]
        elif SEGV == 2:
            segs = [[(gn, [2, 3, 4, 5]), (gn, [6, 7, 8])] for gn in range(3)]
            segs += [[(gn, [2, 3, 4, 5]) for gn in (3, 4)], [(5, [2, 3, 4, 5]), (6, [2, 3]), (7, [2, 3])], [(8, [2, 3]), (6, [4, 5]), (7, [4, 5]), (8, [4, 5])]]
            segs += [[(gn, [6, 7, 8]) for gn in gg] for gg in ((3, 4), (5, 6), (7, 8))]
        segs += [[(gn, [0, 1]) for gn in gg] for gg in ((0, 1, 2), (3, 4, 5), (6, 7, 8))]
        blocks = [b for sg in segs for b in sg]
        fr2 = []; bf = []; bneed_vm = []; blk_seg = []; blk_last = []
        for si, sg in enumerate(segs):
            bf.append(len(fr2)); bneed_vm.append([])
            for (gn, sl) in sg:
                bi = len(blk_seg); blk_seg.append(si); bneed_vm[-1].append(('u', bi))
                for kw in range(4):
                    for c, s_ in enumerate(sl): fr2.append((4 * gn + kw, s_, bi, kw, c))
                blk_last.append(len(fr2) - 1)
        NF2 = 324
        assert len(fr2) == NF2
        def gacc(slot, mh): return V(GACC + 8 * slot + 4 * mh, 4)
        hneed = {}; sfirst = set(); slast = {}
        for f, (k, s_, bi, kw, c) in enumerate(fr2):
            for mh in range(2):
                a = gacc(s_, mh)
                m = mfma16(a, V(WF2 + 4 * (f % NB2), 4), hreg(k, mh), a if s_ in sfirst else '0')
                if mh == 0:
                    if W2 == 0: m.need(lg=[('g', f)])
                    elif f % 2 == 0: m.need(lg=[('g', min(f + 1, NF2 - 1))])
                    if k not in hneed: m.need(vm=[('hl', k)]); hneed[k] = G2 + 2 * f
                mf.append(m)
            sfirst.add(s_); slast[s_] = G2 + 2 * f + 1
        GEND = G2 + 648
        assert len(mf) == GEND
        bgap = [G2 + 2 * (f - D2) - 1 for f in bf]
        def bar_after(g):
            for i, x in enumerate(bgap):
                if x >= g: return i
            return None
        bneed_lg = [[] for f in bf]
        gR1 = E1 + 16
        fin1 = cfin(CACC, 4, 1, vRR, lambda t, u: 1024 * t, 1)
        page_free = {}
        gE0 = bar_gap[('S', 4)] + 2
        for pg in range(8, 24): page_free[pg] = gE0
        for pg in range(32, 40): page_free[pg] = gPS + 2
        if not three:
            for pg in range(4, 8): page_free[pg] = C0
            xbars.append((gR1, barrier().need(lg=['rw1'])))
            kd = max(i for i, x in enumerate(fin1) if x.kind == 'ds') + 1
            sE.spread(fin1[:kd], gR1 + 1, gR1 + 12, gR1 + 16)
            sE.spread(fin1[kd:], gR1 + 16, gR1 + 80, gR1 + 100)
            i1 = bar_after(gR1 + 20); bneed_lg[i1].append(('e', 1))
            for pg in range(24, 32): page_free[pg] = bgap[i1] + 1
        else:
            sC.items.insert(next(i for i, it in enumerate(sC.items) if it.at >= gR1), Item(barrier().need(lg=['rw1']), gR1, gR1))
            sE.spread(fin1, gR1 + 1, gR1 + 50, gR1 + 52)
            E2 = C0 + 216
            e2 = [swaps('SW2', salu('s_bitcmp1_b32', sWv, 1), [(CACC2 + k, CACC2 + 16 + k) for k in range(16)]),
                  swaps('SW3', salu('s_bitcmp1_b32', sWv, 0), [(CACC2 + k, CACC2 + 8 + k) for k in range(8)] + [(CACC2 + 16 + k, CACC2 + 24 + k) for k in range(8)])]
            e2 += [salu('s_add_u32', ja, 's2', 512), salu('s_lshr_b32', ja, ja, 1), salu('s_lshl_b32', ja, ja, 2),
                   raw(f's_load_dword {sDv}, s[{pD}:{pD+1}], {ja}', 'smem', rd=[ja], wr=[sDv]),
                   salu('s_add_u32', sYb, 's78', WS_Y2),
                   salu('s_sub_u32', ja, SCR3 + 8320 + 504, sW1k), valu('v_sub_u32', V(vE), ja, V(vY)),
                   salu('s_mul_i32', ja, sWv, 6144), salu('s_add_u32', ja, ja, SCR0), valu('v_add_u32', V(vRR), ja, V(vH))]
            bneed_lg[0].append(('e', 1))
            for u in range(1, 4):
                e2 += [salu('s_xor_b32', ja, sWv, u), salu('s_mul_i32', ja, ja, 6144), salu('s_add_u32', ja, ja, SCR0 + (u - 1) * 2048), valu('v_add_u32', V(vRW), ja, V(vH))]
                e2 += [dswrite('ds_write_b128', V(vRW), V(CACC2 + 8 * u + 4 * t, 4), off=1024 * t, tag='rw2') for t in range(2)]
            sE.spread(e2, E2 + 3, E2 + 30, E2 + 34)
            gR2 = E2 + 36
            dv2 = [raw('s_waitcnt lgkmcnt(0)', 'drain_lg'), salu('s_lshl_b32', ja, sDv, 16), salu('s_and_b32', sDv, sDv, sMask),
                   salu('s_bitcmp0_b32', 's2', 0), salu('s_cselect_b32', sDv, ja, sDv)]
            xbars.append((gR2, dv2 + [barrier().need(lg=['rw2'])]))
            fin2 = cfin(CACC2, 2, 3, vRR, lambda t, u: 2048 * u + 1024 * t, 2)
            kd = max(i for i, x in enumerate(fin2) if x.kind == 'ds') + 1
            sE.spread(fin2[:kd], gR2 + 1, gR2 + 30, gR2 + 34)
            sE.spread(fin2[kd:], gR2 + 34, gR2 + 70, gR2 + 90)
            i1 = bar_after(gR2 + 38); bneed_lg[i1] += [('e', 2), ('rr', 2, 4)]
            for pg in list(range(24, 32)) + [4, 5, 6, 7]: page_free[pg] = bgap[i1] + 1
        bcol = {}; bearly = {}
        pf = dict(page_free)
        for bi, (gn, sl) in enumerate(blocks):
            n = len(sl)
            best = min(((max(pf[p + j] for j in range(n)), p) for p in pf if (p & 3) + n <= 4 and (n != 2 or p % 2 == 0)))
            bearly[bi], bcol[bi] = best
            i = bar_after(G2 + 2 * blk_last[bi] + 1)
            for j in range(n): pf[bcol[bi] + j] = 10**9 if i is None else bgap[i] + 1
        def g2read(f):
            k, s_, bi, kw, c = fr2[f]
            addr = (bcol[bi] >> 2) * 16384 + kw * 4096 + ((bcol[bi] & 3) + c) * 1024
            return dsread('ds_read_b128', V(WF2 + 4 * (f % NB2), 4), V([vH, vR1, vR2][addr >> 16]), off=addr & 65535, tag=('g', f))
        sG = Stream('g2frag', 0)
        xb = sorted(xbars, key=lambda x: x[0])
        for f in range(NF2):
            g0 = G2 + 2 * (f - D2)
            while xb and xb[0][0] <= g0 - 1:
                sG.add(xb[0][1], xb[0][0], xb[0][0]); xb.pop(0)
            if f in bf:
                i = bf.index(f)
                sG.add((c2 if i == 5 else []) + stamp(26 + i, False) + [barrier().need(vm=bneed_vm[i], lg=bneed_lg[i])], g0 - 1, g0 - 1)
            sG.add(g2read(f), g0, g0)
        assert not xb
        def udma(bi, c):
            gn, sl = blocks[bi]
            r = []
            if c == 0: r.append(salu('s_add_u32', 'm0', sW4k, (bcol[bi] >> 2) * 16384 + (bcol[bi] & 3) * 1024 - SOFF[sl[0]]))
            assert SOFF[sl[c]] == SOFF[sl[0]] + 1024 * c
            r.append(bload_lds(V(vU[sl[c] >> 1]), sWS, GW[gn], off=SOFF[sl[c]], tag=('u', bi), flags=fUL))
            return r
        def hld(k):
            return [bload(hreg(k, mh), V(vHl2 if k & 2 else vHl), sWS, GSEQ[k >> 2], off=(k & 1) * 2048 + mh * 256, tag=('hl', k), flags=fHL) for mh in range(2)]
        def ld_fh(off, name):
            def mk(): return bload(V(ADR), V(vP), sWS, sM0X, off=64 * off, width=1, tag=('poll', name), flags=SC)
            return mk
        lhe, che = poll('HE', ld_fh(0, 'HE'), [ADR], False)
        lhl, chl = poll('HL', ld_fh(1, 'HL'), [ADR], False)
        gHE = C0 + GHE
        gHL = G2 + GHL
        def plan_loads(fl):
            uq = [(bgap[blk_seg[bi]], bearly[bi], 'u', (bi, c)) for bi, (gn, sl) in enumerate(blocks) for c in range(len(sl))]
            hq = []
            for k in range(36):
                ea = gHE if k < 24 else gHL
                if k >= 28: ea = max(ea, G2 + 1)
                hq.append((hneed[k], ea, 'h', k))
            late = [it for it in sL.items if it.at >= C0]
            sL.items = [it for it in sL.items if it.at < C0]
            g = gE0
            while uq[0][1] <= gE0 and (g < C0 - 8 or uq[0][3][1] != 0):
                for ins in udma(*uq.pop(0)[3]): sL.add(ins, g, int(g) + 2)
                g += EPACE
            assert g < C0
            sL.items += late
            g = C0 + (22 if three else 1)
            did = set()
            slack = (10**9, None)
            while uq or hq or 'fl' not in did:
                if 'lhe' not in did and g >= gHE - 40: sL.add(lhe, g, int(g) + LDL); did.add('lhe'); g += 1
                if 'lhl' not in did and g >= gHL - 40 and 'che' in did:
                    sL.add(lhl, g, int(g) + LDL); did.add('lhl'); g += 1
                if 'fl' not in did and g >= G2 + FLG and (not uq or uq[0][3][1] == 0):
                    for j, x in enumerate(fl): sL.add(x, g + j, int(g) + j + LDL)
                    g += len(fl); did.add('fl')
                cand = [q_ for q_ in (uq, hq) if q_ and q_[0][1] <= g]
                if not cand:
                    g = g + 1; continue
                q_ = min(cand, key=lambda z: z[0][0])
                need, ea, kind, ix = q_.pop(0)
                if kind == 'h' and ix == 0: sL.add(che, g); did.add('che')
                if kind == 'h' and ix == 24: sL.add(chl, g)
                for ins in (udma(*ix) if kind == 'u' else hld(ix)):
                    sL.add(ins, g, min(need - 24, int(g) + LDL))
                    if ins.kind in ('vmem', 'vmem_lds'):
                        slack = min(slack, (need - g, (kind, ix)))
                        g += PACE
            if verbose: print(tagp, "load stream ends at G2+%d, min slack %s" % (g - G2, slack))
            return g
        GA = G2 + 504
        QR = ET; YR = ET + 10; GR = ET + 20; FT = CACC
        fs = []; a_ = fs.append
        vQ, vG, vY2, vYR = vA[0], vA[1], vA[2], vA[3]
        sQ0, sQ1, sQ8, sG0, sRc, sRc8 = f's{HS}', f's{HS+1}', f's{HS+2}', f's{HS+3}', f's{HS+4}', f's{HS+5}'
        sY0, sY8 = f's{HS+6}', f's{HS+7}'
        a_(valu('v_and_b32', V(vG), 15, V(vL)))
        a_(valu('v_mul_u32_u24', V(vQ), 1152, V(vG)))
        a_(valu('v_lshrrev_b32', V(vY2), 4, V(vL)))
        a_(valu('v_lshl_add_u32', V(vQ), V(vY2), 3, V(vQ)))
        a_(valu('v_lshlrev_b32', V(vG), 2, V(vG)))
        a_(valu('v_lshrrev_b32', V(vY2), 2, V(vL)))
        a_(valu('v_lshlrev_b32', V(vYR), 6, V(vY2)))
        a_(valu('v_lshlrev_b32', V(vY2), 12, V(vY2)))
        a_(valu('v_and_b32', V(vB), 3, V(vL)))
        a_(valu('v_lshl_add_u32', V(vY2), V(vB), 4, V(vY2)))
        a_(valu('v_lshl_add_u32', V(vYR), V(vB), 3, V(vYR)))
        a_(salu('s_lshl_b32', ja, sWv, 12))
        a_(valu('v_add_u32', V(vYR), ja, V(vYR)))
        a_(salu('s_and_b32', ja, 's2', 1))
        a_(salu('s_lshl_b32', ja, ja, 3))
        a_(salu('s_bfe_u32', jb, 's2', hex(3 | (3 << 16))))
        a_(salu('s_add_u32', ja, ja, jb))
        a_(salu('s_lshr_b32', jb, 's2', 6))
        a_(salu('s_lshl_b32', jc, ja, 2))
        a_(salu('s_add_u32', 's78', jc, jb))
        a_(salu('s_add_u32', ja, jc, sWv))
        a_(salu('s_lshl_b32', jc, 's78', 2))
        a_(salu('s_add_u32', 's79', jc, sQ))
        a_(salu('s_lshl_b32', 's79', 's79', 2))
        a_(salu('s_add_u32', 's79', 's79', sWv))
        a_(salu('s_mul_i32', 's79', 's79', 6144))
        a_(salu('s_add_u32', sRc, 's79', WS_R))
        a_(salu('s_add_u32', WI[1], sRc, 4096))
        a_(salu('s_add_u32', jc, jc, sWv))
        a_(salu('s_lshl_b32', jc, jc, 12))
        a_(salu('s_and_b32', 's78', sQ, 1))
        a_(salu('s_lshl_b32', 's79', 's78', 3))
        a_(salu('s_add_u32', jc, jc, 's79'))
        a_(salu('s_add_u32', sRc8, jc, WS_R8))
        a_(salu('s_mul_i32', jb, jb, 9))
        a_(salu('s_lshl_b32', jc, sQ, 1))
        a_(salu('s_add_u32', jc, jc, jb))
        a_(salu('s_add_u32', jb, jb, 8))
        a_(salu('s_mul_i32', 's79', ja, 32 * 1152))
        a_(salu('s_lshl_b32', sQ0, jc, 5))
        a_(salu('s_add_u32', sQ0, sQ0, 's79'))
        a_(salu('s_add_u32', sQ1, sQ0, 18432))
        a_(salu('s_lshl_b32', sQ8, jb, 5))
        a_(salu('s_add_u32', sQ8, sQ8, 's79'))
        a_(salu('s_mul_i32', 's79', 's78', 18432))
        a_(salu('s_add_u32', sQ8, sQ8, 's79'))
        a_(salu('s_lshl_b32', sG0, ja, 7))
        a_(salu('s_add_u32', sG0, sG0, WS_G))
        a_(salu('s_lshl_b32', ja, ja, 6))
        a_(salu('s_add_u32', ja, ja, WS_Y2))
        a_(salu('s_lshl_b32', sY0, jc, 16))
        a_(salu('s_add_u32', sY0, sY0, ja))
        a_(salu('s_lshl_b32', sY8, jb, 16))
        a_(salu('s_add_u32', sY8, sY8, ja))
        a_(salu('s_lshl_b32', 's79', 's78', 5))
        a_(salu('s_add_u32', sY8, sY8, 's79'))
        a_(salu('s_lshl_b32', 's79', 's78', 6))
        a_(salu('s_add_u32', 's79', 's79', sG0))
        fs += mksrd(sT, pOUT, 2048 * 1152)
        sJ.spread(fs, G2 + 330, G2 + 400, G2 + 410)
        fl = []; a_ = fl.append
        for tl in range(4):
            s, mh = tl >> 1, tl & 1
            a_(bload(V(QR + 2 * tl, 2), V(vQ), sX, sQ1 if mh else sQ0, off=32 * s, width=2, tag='fq'))
        a_(bload(V(QR + 8, 2), V(vQ), sX, sQ8, width=2, tag='fq'))
        for mh in range(2): a_(bload(V(GR + mh), V(vG), sWS, sG0, off=64 * mh, width=1, tag='fq', flags=SC))
        a_(bload(V(GR + 2), V(vG), sWS, 's79', width=1, tag='fq', flags=SC))
        def ydma(tmp):
            return [salu('s_lshl_b32', 'm0', sWv, 12), bload_lds(V(vY2), sWS, sY0, tag='fy', flags=SC),
                    salu('s_add_u32', tmp, sY0, 65536 - 1024), bload_lds(V(vY2), sWS, tmp, off=1024, tag='fy', flags=SC),
                    salu('s_sub_u32', tmp, sY8, 2048), bload_lds(V(vY2), sWS, tmp, off=2048, tag='fy', flags=SC)]
        fl += ydma(tL)
        def recv_loads(tag):
            r = []
            for t in range(6): r.append(bload(V(RECV + 4 * t, 4), V(vH), sWS, WI[1] if t >= 4 else sRc, off=1024 * (t & 3), tag=tag, flags=SC))
            for u in range(4): r.append(bload(V(RECV + 24 + 2 * u, 2), V(vH), sWS, sRc8, off=1024 * u, width=2, tag=tag, flags=SC))
            return r
        gLend = plan_loads(fl)
        sS = Stream('send', 1)
        gsl = 0
        for sl in sorted(range(2, 9), key=lambda x: slast[x]):
            b = GACC + 8 * sl
            lst = [valu('v_cvt_pk_bf16_f32', V(b + j), V(b + 2 * j), V(b + 2 * j + 1)) for j in range(4)] + [send1(sl, V(b, 4), 'snd')]
            gsl = max(gsl, slast[sl] + 2)
            sS.spread(lst, gsl, gsl + 5, gsl + 8)
            gsl += 5
        gPA = max(gsl + 6, int(gLend) + 2)
        rl = recv_loads('rc')
        sL.spread(rl[:4], max(gPA, GEND - RCV - 30), GEND - RCV - 20)
        sL.spread(rl[4:], max(gPA, GEND - RCV), GEND - RCV + 12)
        def yreads():
            yr = []
            for tl in range(4):
                s, mh = tl >> 1, tl & 1
                yr.append(dsread('ds_read_b64_tr_b16', V(YR + 2 * tl, 2), V(vYR), off=1024 * s + 32 * mh, tag='yr'))
            yr.append(dsread('ds_read_b64_tr_b16', V(YR + 8, 2), V(vYR), off=2048, tag='yr'))
            return yr
        YT = ET + 24
        def yfold():
            r = [valu('v_pk_max_u16', V(YT), V(YR), V(YR + 1)), valu('v_pk_max_u16', V(YT + 1), V(YR + 2), V(YR + 3))]
            for k in range(4, 10): r.append(valu('v_pk_max_u16', V(YT + (k & 1)), V(YT + (k & 1)), V(YR + k)))
            r.append(valu('v_pk_max_u16', V(YT), V(YT), V(YT + 1)))
            r.append(valu('v_lshlrev_b32', V(YT + 1), 16, V(YT)))
            r.append(valu('v_max_u32', V(YT), V(YT), V(YT + 1)))
            return r
        ycmp = lambda: valu('v_cmp_le_u32', 'vcc', sMask, V(YT))
        yr = yreads()
        yr[0].need(vm=['fy'])
        yf = yfold(); yf[0].need(lg=['yr'])
        yr += yf
        yr.append(stamp(24, False) + [ycmp(), raw(f's_cbranch_vccnz SLOW_Y{tagp}', 'branch'), label(f'BACK_Y{tagp}')] + stamp(25, False))
        slow.extend(pad_hazards([label(f'SLOW_Y{tagp}'), raw('s_sleep 4')] + ydma(jb) + [raw('s_waitcnt vmcnt(0)', 'drain_vm')] + yreads() +
                                [raw('s_waitcnt lgkmcnt(0)', 'drain_lg')] + yfold() + [ycmp()] + spin_tail(f'SLOW_Y{tagp}', f'BACK_Y{tagp}')))
        AF = GACC + 16
        pa = list(yr)
        for tl in range(5):
            gi = GR + (tl & 1 if tl < 4 else 2)
            for r_ in range(4):
                sq = V(QR + 2 * tl + (r_ >> 1)); sy = V(YR + 2 * tl + (r_ >> 1))
                d1 = V(AF + 4 * tl + r_); d2 = V(AF + 20 + r_)
                if r_ & 1: i1 = valu('v_and_b32', d1, sMask, sq); i2 = valu('v_and_b32', d2, sMask, sy)
                else: i1 = valu('v_lshlrev_b32', d1, 16, sq); i2 = valu('v_lshlrev_b32', d2, 16, sy)
                if tl == 0 and r_ == 0: i1.need(vm=['fq']); i2.need(lg=['yr'])
                pa += [i1, i2]
            for r_ in range(4): pa.append(valu('v_mul_f32', V(AF + 4 * tl + r_), V(AF + 4 * tl + r_), V(AF + 20 + r_)))
            for r_ in range(4): pa.append(valu('v_mul_f32', V(AF + 4 * tl + r_), V(AF + 4 * tl + r_), V(gi)))
        for k in range(3): pa.append(valu('v_sub_f32', V(GR + k), '1.0', V(GR + k)))
        sE.spread(pa, gPA, GEND - 4)

        log = []
        talog = []
        body = schedule(mf, [sF, sG, sC, sS, sL, sE, sJ, sM, sK], log, pre=P, talog=talog)
        if verbose >= 2: print('TA backlog', [(n, b) for n, b, t in talog if b > 64])
        if verbose:
            print(tagp, "overflow cycles total", sum(x[1] for x in log), "by region:", {k: sum(x[1] for x in log if lo <= x[0] < hi) for k, (lo, hi) in
                  {'Q1': (0, 288), 'Q2': (288, 576), 'S': (576, 648), 'conv': (648, G2), 'A': (G2, GA), 'B': (GA, GEND)}.items()})
        nb = []; n = 0; npf = npst[0]
        marks = {0: 1, 288: 2, 576: 3, G2: 5, GA: 6}
        if not STQ:
            for j in range(1, 6): marks[G2 + 84 * j] = 9 + j
        for ins in body:
            if ins.kind == 'mfma':
                if n == C0:
                    nb += stamp(4)
                    nb.append(salu('s_cmp_lt_u32', 's2', 64))
                    nb.append(raw('s_cbranch_scc1 KF_THREE', 'branch'))
                    nb.append(comment('SPLIT'))
                elif n in marks: nb += stamp(marks[n])
                if PROF and n >= PLO and (n - PLO) % PROF == 0 and npf < 62:
                    nb.append(Inst(f"v_writelane_b32 v{vST}, s0, {npf}", 'valu', rd=['s0', V(vST)], wr=[V(vST)]))
                    nb.append(raw('s_memtime s[0:1]', 'smem', wr=['s[0:1]'])); npf += 1
                n += 1
            nb.append(ins)
        body = nb
        if PROF:
            body.append(Inst(f"v_writelane_b32 v{vST}, s0, {npf}", 'valu', rd=['s0', V(vST)], wr=[V(vST)]))
            body.append(raw('s_memtime s[0:1]', 'smem', wr=['s[0:1]'])); npf += 1
        body += stamp(7)
        MX = AF + 24
        def sent(need):
            r = []
            i0 = valu('v_max3_u32', V(MX), V(RECV), V(RECV + 1), V(RECV + 2))
            if need: i0.need(vm=['rc'])
            r.append(i0)
            r.append(valu('v_max3_u32', V(MX + 1), V(RECV + 3), V(RECV + 4), V(RECV + 5)))
            for k in range(6, 32, 4):
                r.append(valu('v_max3_u32', V(MX), V(MX), V(RECV + k), V(RECV + k + 1)))
                if k + 3 < 32: r.append(valu('v_max3_u32', V(MX + 1), V(MX + 1), V(RECV + k + 2), V(RECV + k + 3)))
            r.append(valu('v_max_u32', V(MX), V(MX), V(MX + 1)))
            r.append(valu('v_cmp_eq_u32', 'vcc', -1, V(MX)))
            return r
        body += sent(True)
        body += [raw(f's_cbranch_vccnz SLOW_R{tagp}', 'branch'), label(f'BACK_R{tagp}')]
        slow.extend(pad_hazards([label(f'SLOW_R{tagp}'), raw('s_sleep 2')] + recv_loads('rc') + [raw('s_waitcnt vmcnt(0)', 'drain_vm')] + sent(False) +
                                spin_tail(f'SLOW_R{tagp}', f'BACK_R{tagp}')))
        body += stamp(8)
        UT = RECV + 32
        def unpk(d, src, r_):
            return valu('v_and_b32', V(d), sMask, V(src + (r_ >> 1))) if r_ & 1 else valu('v_lshlrev_b32', V(d), 16, V(src + (r_ >> 1)))
        for tl in [0, 1, 2, 3, 4]:
            s_, mh = tl >> 1, tl & 1
            if tl < 4:
                accb = GACC + 8 * s_ + 4 * mh
                src = [RECV + 8 * u + 4 * s_ + 2 * mh for u in range(3)]
            else:
                accb = UT + 12
                for r_ in range(4): body.append(unpk(accb + r_, RECV + 24, r_))
                src = [RECV + 24 + 2 * u for u in range(1, 4)]
            gi = GR + (mh if tl < 4 else 2)
            for u in range(3):
                for r_ in range(4): body.append(unpk(UT + 4 * u + r_, src[u], r_))
            for r_ in range(4): body.append(valu('v_add_f32', V(UT + r_), V(UT + r_), V(UT + 4 + r_)))
            for r_ in range(4): body.append(valu('v_add_f32', V(accb + r_), V(accb + r_), V(UT + 8 + r_)))
            for r_ in range(4): body.append(valu('v_add_f32', V(accb + r_), V(accb + r_), V(UT + r_)))
            for r_ in range(4): body.append(valu('v_fmac_f32', V(AF + 4 * tl + r_), V(accb + r_), V(gi)))
            body.append(valu('v_cvt_pk_bf16_f32', V(AF + 4 * tl), V(AF + 4 * tl), V(AF + 4 * tl + 1)))
            body.append(valu('v_cvt_pk_bf16_f32', V(AF + 4 * tl + 1), V(AF + 4 * tl + 2), V(AF + 4 * tl + 3)))
            if tl < 4: body.append(bstore(V(AF + 4 * tl, 2), V(vQ), sT, sQ1 if mh else sQ0, off=32 * s_, width=2))
            else: body.append(bstore(V(AF + 4 * tl, 2), V(vQ), sT, sQ8, width=2))
        if stamps:
            body.append(raw('s_waitcnt vmcnt(0)', 'drain_vm'))
            body += stamp(9)
            if PROF:
                body += [raw('s_waitcnt lgkmcnt(0)', 'drain_lg'), Inst(f"v_writelane_b32 v{vST}, s0, {min(npf, 62)}", 'valu', rd=['s0', V(vST)], wr=[V(vST)]),
                         raw('s_memtime s[0:1]', 'smem', wr=['s[0:1]']), raw('s_waitcnt lgkmcnt(0)', 'drain_lg'), Inst(f"v_writelane_b32 v{vST}, s0, 63", 'valu', rd=['s0', V(vST)], wr=[V(vST)])]
            body += [salu('s_lshl_b32', ja, 's2', 2), salu('s_add_u32', ja, ja, sWv), salu('s_lshl_b32', ja, ja, 8), salu('s_add_u32', ja, ja, 64 << 20),
                     valu('v_lshlrev_b32', V(vT0), 2, V(vL)), bstore(V(vST), V(vT0), sWS, ja, width=1)]
        body.append(raw('s_endpgm', 'end'))
        allins = pad_hazards(insert_waits(P + body))
        return allins, slow

    two, slow2 = build(False)
    thr, slow3 = build(True)
    def split(l):
        k = next(i for i, x in enumerate(l) if x.kind == 'comment' and 'SPLIT' in x.text)
        return l[:k + 1], l[k + 1:]
    p2, s2_ = split(two); p3, s3_ = split(thr)
    assert [x.text for x in p2] == [x.text for x in p3], "prefix mismatch"
    out = p2 + s2_ + [label('KF_THREE'), nop(7)] + s3_ + slow2 + slow3 + [label('KF_END'), raw('s_endpgm', 'end')]
    return out

if __name__ == '__main__':
    ins = gen_f(verbose=True)
    print(len(ins))
```

```python
from asmlib import *
class Item:
    __slots__ = ('ins', 'at', 'dl')
    def __init__(self, ins, at, dl): self.ins = ins; self.at = at; self.dl = dl

def icost1(ins):
    k = ins.kind
    if k == 'trans': return 8
    if k in ('comment', 'label'): return 0
    if k == 'nop': return 4 * ins.cost
    if ins.text.startswith('v_swap'): return 8
    return 4
def icost(ins):
    if isinstance(ins, list): return sum(icost1(i) for i in ins)
    return icost1(ins)
def aslist(ins): return ins if isinstance(ins, list) else [ins]
def tacost(ins): return sum(i.ta for i in aslist(ins))
def first_real(ins):
    for i in aslist(ins):
        if i.kind not in ('comment', 'label'): return i
    return None

class Stream:
    def __init__(self, name, prio=0): self.name = name; self.prio = prio; self.items = []; self.pos = 0
    def add(self, ins, at, dl=10**9): self.items.append(Item(ins, int(at), dl))
    def head(self): return self.items[self.pos] if self.pos < len(self.items) else None
    def spread(self, lst, lo, hi, dl=10**9):
        tot = sum(max(icost(i), 1) for i in lst); acc = 0
        for ins in lst:
            self.add(ins, lo + (acc * (hi - lo)) // tot, dl)
            acc += max(icost(ins), 1)
    def fix(self):
        d = 10**9
        for it in reversed(self.items):
            d = min(d, it.dl); it.dl = d

class WaitState:
    def __init__(self): self.vm = {}; self.lg = {}; self.nvm = 0; self.nlg = 0; self.vd = 0; self.ld = 0
    def needs(self, ins):
        if ins.nvm and max(self.vm.get(t, -1) for t in ins.nvm) + 1 > self.vd: return True
        if ins.nlg and max(self.lg.get(t, -1) for t in ins.nlg) + 1 > self.ld: return True
        return False
    def issue(self, ins):
        if ins.kind in ('drain', 'drain_lg'): self.ld = self.nlg
        if ins.kind in ('drain', 'drain_vm'): self.vd = self.nvm
        if ins.nvm: self.vd = max(self.vd, max(self.vm.get(t, -1) for t in ins.nvm) + 1)
        if ins.nlg: self.ld = max(self.ld, max(self.lg.get(t, -1) for t in ins.nlg) + 1)
        if ins.kind in VM_KINDS: self.vm[ins.tag] = self.nvm; self.nvm += 1
        if ins.kind == 'ds': self.lg[ins.tag] = self.nlg; self.nlg += 1

def schedule(mfmas, streams, log=None, pre=(), TASL=16, talog=None):
    for s in streams: s.fix()
    ws = WaitState()
    for i in pre: ws.issue(i)
    out = []
    T = 0; ta_free = 0
    for n, m in enumerate(mfmas):
        out.append(m); ws.issue(m)
        full = 32 if m.passes == 8 else 16
        budget = full - 4
        if n + 1 < len(mfmas) and ws.needs(mfmas[n + 1]): budget -= 4
        rem = budget
        first = True
        while True:
            c = [s for s in streams if s.head() is not None and s.head().at <= n]
            if not c: break
            c.sort(key=lambda s: (s.head().dl, s.prio))
            def cost(it):
                k = icost(it.ins) + sum(4 for i in aslist(it.ins) if (i.nvm or i.nlg) and ws.needs(i))
                f = first_real(it.ins)
                if first and f is not None and is_valu(f.kind) and not ws.needs(f): k += 4
                return k
            def ok(it):
                if it.dl <= n: return True
                if tacost(it.ins) and ta_free > T + (budget - rem) + TASL: return False
                k = cost(it)
                return k <= rem or (k > budget - 4 and rem >= budget - 4)
            c = [s for s in c if ok(s.head())]
            if not c: break
            pick = c[0]
            if first:
                nv = [s for s in c if first_real(s.head().ins) is not None and (not is_valu(first_real(s.head().ins).kind) or ws.needs(first_real(s.head().ins)))]
                if nv: pick = nv[0]
            it = pick.head(); k = cost(it)
            ta = tacost(it.ins)
            if ta:
                if talog is not None: talog.append((n, ta_free - (T + budget - rem), first_real(it.ins).tag))
                ta_free = max(ta_free, T + budget - rem) + ta
            for i in aslist(it.ins): out.append(i); ws.issue(i)
            it.at = n
            rem -= k; pick.pos += 1; first = False
        if rem < 0:
            if log is not None: log.append((n, -rem))
            T += -rem
        T += full
    for s in sorted(streams, key=lambda s: s.prio):
        while s.head() is not None:
            it = s.head()
            out += aslist(it.ins)
            it.at = len(mfmas)
            s.pos += 1
    return out
```
